```python
import torch

def _softmax(x, axis=-1):
    return torch.softmax(x, dim=axis)
def _gelu(x):
    return torch.nn.functional.gelu(x, approximate="tanh")
def _silu(x):
    return torch.nn.functional.silu(x)
def _sigmoid(x):
    return torch.sigmoid(x)
def _layernorm(x, axis=-1, eps=1e-5):
    m = x.mean(dim=axis, keepdim=True)
    v = x.var(dim=axis, keepdim=True, unbiased=False)
    return (x - m) / torch.sqrt(v + eps)
def _scatter_add(tgt, idx, src, axis=0):
    return tgt.clone().index_add_(axis, idx, src)
def _segment_sum(src, seg, n):
    out = torch.zeros((n,) + src.shape[1:], dtype=src.dtype)
    return out.index_add_(0, seg, src)
def _pad(x, pw):
    flat = tuple(v for pair in reversed(pw) for v in pair)
    return torch.nn.functional.pad(x, flat)

kernel_name = 'standalone__gqa_softmax__near_ridge'

def setup_inputs():

    _w = (lambda a: (lambda t: t.to(torch.bfloat16) if t.is_floating_point() else t)(torch.as_tensor(a)))
    B, Hq, Hkv, Sq, Sk, D = 8, 32, 32, 736, 736, 128
    return {
        "q": _w((lambda *s: torch.randn(*s, dtype=torch.bfloat16) * 0.8)(B, Hq, Sq, D)),
        "k": _w((lambda *s: torch.randn(*s, dtype=torch.bfloat16) * 0.8)(B, Hkv, Sk, D)),
        "v": _w((lambda *s: torch.randn(*s, dtype=torch.bfloat16) * 0.05)(B, Hkv, Sk, D)),
    }

def reference(q, k, v):
    B, Hq, Sq, D = q.shape
    Hkv = k.shape[1]
    rep = Hq // Hkv
    k = (lambda x, n, axis: torch.repeat_interleave(x, n, dim=axis))(k, rep, axis=1)
    v = (lambda x, n, axis: torch.repeat_interleave(x, n, dim=axis))(v, rep, axis=1)
    scale = D ** -0.5
    scores = torch.einsum("bhqd,bhkd->bhqk", q, k) * scale
    p = _softmax(scores, axis=-1)
    return torch.einsum("bhqk,bhkd->bhqd", p, v)
```

```python
import sys
NAME = "standalone__gqa_softmax__near_ridge"
R = 6
TILE = 8192
VBASE = R * TILE
LDS_BYTES = 2 * R * TILE
HEAD_BYTES = 736 * 256
TOTAL_BYTES = 256 * HEAD_BYTES
NT = 23
import struct
def f2u(x): return struct.unpack("<I", struct.pack("<f", x))[0]
CSCALE = 1.4426950408889634 / (128 ** 0.5)

def O(u, j): return (u * 8 + j) * 4
KA = 192; VA = 224
QB = 16
KB = 112
VB = 144
SB = 176
PB = 192
CB = 200
LB = 224
KAD = 236
VAD = 240
QOFF = 248
OOFF = 249
DK = QB + 5 * 16
DV = DK + 4
T0 = 2
def Q(u, s): return QB + (u * 4 + s) * 4
def vr(b, n=4): return f"v[{b}:{b+n-1}]"
def ar(b, n=4): return f"a[{b}:{b+n-1}]"
def Kf(par, f, n=4, o=0):
    return ar(KA + f * 4 + o, n) if par == 0 else vr(KB + f * 4 + o, n)
def Vf(par, j, n=4, o=0):
    return ar(VA + j * 4 + o, n) if par == 0 else vr(VB + j * 4 + o, n)
SQ, SK, SV, SO = 8, 12, 16, 20
S_WAVE = 24
S_HOFF = 25
S_HOFF2 = 26
S_ROUND = 27
S_CNT = 28
S_T = 29
S_C = 30
S_DOFF = 32
S_DCNT = 33
S_DSLOT = 34
S_D2 = 35
S_T2 = 36
S_OOB = 37

class G:
    def __init__(self): self.L = []
    def e(self, s): self.L.append("    " + s)
    def lab(self, s): self.L.append(s + ":")
    def c(self, s): self.L.append("    ; " + s)
g = G()

def mfma(d, a, b, c): return f"v_mfma_f32_16x16x32_bf16 {d}, {a}, {b}, {c}"

def qk_mfmas(u, par, sbuf, cinit=True, kts=(0, 1)):
    M = []
    for s in range(4):
        for kt in kts:
            d = vr(SB + sbuf * 8 + kt * 4)
            c = (vr(CB + u * 4) if cinit else "0") if s == 0 else d
            M.append(mfma(d, Kf(par, kt * 4 + s), vr(Q(u, s)), c))
    return M
def pv_mfmas(u, par, pbuf, first):
    return [mfma(ar(O(u, j)), Vf(par, j), vr(PB + pbuf * 4), "0" if first else ar(O(u, j))) for j in range(8)]
def sm_units(u, sbuf, pbuf):
    s = SB + sbuf * 8; p = PB + pbuf * 4
    E = lambda i: f"v_exp_f32 v{s+i}, v{s+i}"
    A = lambda i: f"v_add_f32 v{LB+u*2+(i&1)}, v{LB+u*2+(i&1)}, v{s+i}"
    C = lambda i: f"v_cvt_pk_bf16_f32 v{p+i}, v{s+2*i}, v{s+2*i+1}"
    return [[E(0)], [E(1)], [E(2)], [A(0)], [E(3)], [A(1), C(0)], [E(4)], [A(2)], [E(5)], [A(3), C(1)],
            [E(6)], [A(4)], [E(7)], [A(5), C(2)], [A(6)], [A(7), C(3)]]
FREE = [3, 7, 11, 14]
def k_reads(slot, par):
    return [f"ds_read_b128 {Kf(par, kt*4+s)}, v{KAD+s} offset:{slot*TILE+kt*4096}" for s in range(4) for kt in range(2)]
def v_reads(slot, par):
    return [f"ds_read_b64_tr_b16 {Vf(par, j, 2, 2*h)}, v{VAD+j} offset:{slot*TILE+h*4096}" for j in range(8) for h in range(2)]

def dma_tile_ops():
    ops = []
    for which in range(2):
        srd = SK if which == 0 else SV
        for hh in range(2):
            for i in range(4):
                pre = []
                if i == 0:
                    off = (VBASE if which else 0) + hh * 4096
                    pre.append(f"s_add_u32 m0, s{S_DSLOT}, {off}")
                so = S_DOFF if hh == 0 else S_D2
                va = DK + i if which == 0 else DV + (i & 1)
                ops.append((pre, f"buffer_load_dwordx4 v{va}, s[{srd}:{srd+3}], s{so} offen offset:{i*1024} lds"))
    return ops
def dma_advance():
    return [
        [f"s_add_u32 s{S_DCNT}, s{S_DCNT}, 1"],
        [f"s_add_u32 s{S_DOFF}, s{S_DOFF}, {TILE}"],
        [f"s_cmp_eq_u32 s{S_DCNT}, 24"], [f"s_cselect_b32 s{S_DOFF}, s{S_HOFF2}, s{S_DOFF}"],
        [f"s_cmp_eq_u32 s{S_DCNT}, 23"], [f"s_cselect_b32 s{S_DOFF}, s{S_OOB}, s{S_DOFF}"],
        [f"s_cmp_eq_u32 s{S_DCNT}, 47"], [f"s_cselect_b32 s{S_DOFF}, s{S_OOB}, s{S_DOFF}"],
        [f"s_add_u32 s{S_D2}, s{S_DOFF}, 4096"],
        [f"s_add_u32 s{S_DSLOT}, s{S_DSLOT}, {TILE}"],
        [f"s_cmp_eq_u32 s{S_DSLOT}, {R*TILE}"], [f"s_cselect_b32 s{S_DSLOT}, 0, s{S_DSLOT}"],
    ]
def emit_dma_tile_plain():
    for pre, d in dma_tile_ops():
        for p in pre: g.e(p); g.e("s_nop 0")
        g.e(d)
    for a in dma_advance():
        for x in a: g.e(x)

def emit_gaps(M, salu, mem, valu):
    for i, m in enumerate(M):
        g.e(m)
        for x in salu[i]: g.e(x)
        for x in mem[i]: g.e(x)
        for x in valu[i]: g.e(x)

def emit_body(NQ, i_par, slot_v, slot_k, dma, first=False, last=False, tail_salu=None, n0=0):
    M = []; salu = []; mem = []; valu = []
    free = []
    stepstart = []
    for k in range(NQ):
        n = n0 + 2 + k
        uq = k + 2
        if uq < NQ: qk = qk_mfmas(uq, i_par, n & 1)
        elif not last: qk = qk_mfmas(uq - NQ, i_par ^ 1, n & 1)
        else: qk = []
        us = k + 1
        do_sm = (us < NQ) or not last
        us %= NQ
        pv = pv_mfmas(k, i_par, n & 1, first)
        ms = qk + pv
        base = len(M)
        stepstart.append(base)
        M += ms
        for _ in ms: salu.append([]); mem.append([]); valu.append([])
        if do_sm:
            U = sm_units(us, (n - 1) & 1, (n - 1) & 1)
            if len(ms) == 16:
                for t in range(16): valu[base + t] = U[t]
                free += [base + f for f in FREE]
            else:
                for t in range(8): valu[base + t] = U[2 * t] + U[2 * t + 1]
        if not qk:
            valu[base - 1] = valu[base - 1] + ["s_nop 1"]
    kstep = NQ - 2
    salu[0].append("s_waitcnt lgkmcnt(8)")
    if not last:
        vr_ = v_reads(slot_v, i_par ^ 1)
        kr_ = k_reads(slot_k, i_par)
        vfree = [f for f in free if f < stepstart[kstep]]
        kfree = [f for f in free if f >= stepstart[kstep]]
        extra = len(vr_) - len(vfree)
        pos = list(vfree)
        if extra > 0:
            cand = [x for x in range(1, stepstart[kstep]) if x not in vfree and (x % 16) in (5, 9)]
            pos = sorted(pos + cand[:extra])
        for p, r in zip(pos, vr_): mem[p].append(r)
        assert len(pos) == len(vr_)
        for p, r in zip(kfree, kr_): mem[p].append(r)
        assert len(kfree) == len(kr_)
        nv = sum(1 for p in pos if p < stepstart[1])
        salu[stepstart[1]].append(f"s_waitcnt lgkmcnt({nv})")
    bpos = stepstart[kstep]
    if dma: salu[bpos].append(f"s_waitcnt vmcnt({16*(R-3)})")
    salu[bpos + 1].append("s_barrier")
    if dma:
        ops = dma_tile_ops()
        n_after = 6
        n = len(M)
        cand_after = [x for x in range(bpos + 3, n) if not mem[x]]
        stepa = max(1, len(cand_after) // n_after)
        pa = cand_after[::stepa][:n_after]
        if last:
            pa = None
        cand_before = [x for x in range(2, bpos - 14) if not mem[x]]
        nb = 16 - n_after
        stepb = len(cand_before) / nb
        pb = [cand_before[int(t * stepb)] for t in range(nb)]
        def place(p, op):
            pre, d = op
            for x in pre: salu[p - 1].append(x)
            mem[p].append(d)
        if not first:
            for p, op in zip(pb, ops[n_after:]): place(p, op)
            adv = dma_advance()
            q = pb[-1] + 1
            for a in adv:
                while salu[q]: q += 1
                salu[q] += a
                q += 1
            assert q <= bpos + 1, (q, bpos)
        if not last:
            for p, op in zip(pa, ops[:n_after]): place(p, op)
    if tail_salu:
        q = len(M) - len(tail_salu)
        for t, x in enumerate(tail_salu):
            salu[q + t].append(x)
    emit_gaps(M, salu, mem, valu)

def emit_variant(NQ, dma, tag):
    g.lab(f"L_start_{tag}")
    if dma:
        g.c("DMA source voffsets")
        g.e(f"v_and_b32 v2, 63, v0")
        g.e(f"v_lshrrev_b32 v3, 4, v2")
        g.e(f"v_and_b32 v4, 15, v2")
        for i in range(4):
            g.e(f"v_add_u32 v5, {4*i}, v3")
            g.e(f"v_xor_b32 v5, v5, v4")
            g.e(f"v_lshlrev_b32 v5, 4, v5")
            g.e(f"v_lshl_add_u32 v{DK+i}, v3, 8, v5")
        for i in range(2):
            g.e(f"v_add_u32 v5, {4*i}, v3")
            g.e(f"v_lshlrev_b32 v5, 1, v5")
            g.e(f"v_xor_b32 v5, v5, v4")
            g.e(f"v_lshlrev_b32 v5, 4, v5")
            g.e(f"v_lshl_add_u32 v{DV+i}, v3, 8, v5")
        g.e(f"s_mov_b32 s{S_DOFF}, s{S_HOFF}")
        g.e(f"s_add_u32 s{S_D2}, s{S_DOFF}, 4096")
        g.e(f"s_mov_b32 s{S_DCNT}, 0")
        g.e(f"s_mov_b32 s{S_DSLOT}, 0")
        g.e(f"s_mov_b32 s{S_OOB}, 0x10000000")
        emit_dma_tile_plain()
    g.lab(f"L_round_{tag}")
    g.c("Q loads")
    for u in range(NQ):
        g.e(f"s_add_u32 s{S_T}, s{S_HOFF}, {u*4096}")
        for s in range(4):
            g.e(f"buffer_load_dwordx4 {vr(Q(u,s))}, v{QOFF}, s[{SQ}:{SQ+3}], s{S_T} offen offset:{s*64}")
    if dma:
        emit_dma_tile_plain()
    for u in range(NQ):
        g.e(f"v_mov_b32 v{LB+2*u}, 0"); g.e(f"v_mov_b32 v{LB+2*u+1}, 0")
    g.c("prescale Q")
    extra = 16 if dma else 0
    for u in range(NQ):
        g.e(f"s_waitcnt vmcnt({(NQ-1-u)*4+extra})")
        for r in range(Q(u, 0), Q(u, 0) + 16, 2):
            for k in range(2):
                t = T0 + 2 * k
                g.e(f"v_lshlrev_b32 v{t}, 16, v{r+k}")
                g.e(f"v_and_b32 v{t+1}, 0xffff0000, v{r+k}")
            for k in range(2):
                t = T0 + 2 * k
                g.e(f"v_pk_mul_f32 v[{t}:{t+1}], v[{t}:{t+1}], s[{S_C}:{S_C+1}]")
            for k in range(2):
                t = T0 + 2 * k
                g.e(f"v_cvt_pk_bf16_f32 v{r+k}, v{t}, v{t+1}")
    if dma:
        g.e("s_waitcnt vmcnt(0)")
    g.e("s_barrier")
    if dma:
        g.e(f"s_cmp_lg_u32 s{S_ROUND}, 0")
        g.e(f"s_cbranch_scc1 L_skip_fill_{tag}")
        for t in range(2, R - 1): emit_dma_tile_plain()
        g.lab(f"L_skip_fill_{tag}")
    for x in k_reads(0, 0): g.e(x)
    for x in v_reads(0, 0)[:7]: g.e(x)
    g.e("s_waitcnt lgkmcnt(7)")
    g.c("stand-in max pre-pass (first 16 keys)")
    for u in range(NQ):
        for s in range(4):
            d = vr(CB + u * 4)
            g.e(mfma(d, Kf(0, s), vr(Q(u, s)), "0" if s == 0 else d))
    for x in v_reads(0, 0)[7:]: g.e(x)
    for x in k_reads(1, 1)[:6]: g.e(x)
    g.e("s_nop 7")
    for u in range(NQ):
        c = CB + u * 4
        g.e(f"v_max3_f32 v{c}, v{c}, v{c+1}, v{c+2}")
    for u in range(NQ):
        c = CB + u * 4
        g.e(f"v_max_f32 v{c}, v{c}, v{c+3}")
    for sw in ("v_permlane16_swap_b32", "v_permlane32_swap_b32"):
        for u in range(NQ):
            c = CB + u * 4
            g.e(f"v_mov_b32 v{c+1}, v{c}")
        g.e("s_nop 1")
        for u in range(NQ):
            c = CB + u * 4
            g.e(f"{sw} v{c}, v{c+1}")
        g.e("s_nop 1")
        for u in range(NQ):
            c = CB + u * 4
            g.e(f"v_max_f32 v{c}, v{c}, v{c+1}")
    for u in range(NQ):
        c = CB + u * 4
        g.e(f"v_sub_f32 v{c}, 0, v{c}")
    for u in range(NQ):
        c = CB + u * 4
        for k in range(1, 4): g.e(f"v_mov_b32 v{c+k}, v{c}")
    for x in k_reads(1, 1)[6:]: g.e(x)
    if dma:
        g.e(f"s_cmp_lg_u32 s{S_ROUND}, 0")
        g.e(f"s_cbranch_scc1 L_skip_fill2_{tag}")
        g.e("s_waitcnt vmcnt(40)")
        emit_dma_tile_plain()
        g.lab(f"L_skip_fill2_{tag}")
    g.e("s_nop 1")
    g.c("pipeline prologue: step 0, step 1")
    for m in qk_mfmas(0, 0, 0): g.e(m)
    M = qk_mfmas(1, 0, 1)
    U = sm_units(0, 0, 0)
    for m in M: g.e(m)
    g.e("s_nop 1")
    for t in range(16):
        for x in U[t]: g.e(x)
        if t in (2, 4, 6, 8, 10, 12): g.e("s_nop 0")
    g.e(f"s_mov_b32 s{S_CNT}, 4")
    emit_body(NQ, 0, 1, 2, dma, first=True, n0=0)
    g.L.append(".p2align 3")
    g.lab(f"L_loop_{tag}")
    for ph in [1, 2, 3, 4, 5, 0]:
        tail = None
        if ph == 3:
            tail = [f"s_sub_u32 s{S_CNT}, s{S_CNT}, 1", f"s_cmp_eq_u32 s{S_CNT}, 0"]
        emit_body(NQ, ph & 1, (ph + 1) % R, (ph + 2) % R, dma, n0=(NQ * ph) & 1, tail_salu=tail)
        if ph == 3: g.e(f"s_cbranch_scc1 L_exit_{tag}")
    g.e(f"s_branch L_loop_{tag}")
    g.lab(f"L_exit_{tag}")
    emit_body(NQ, 0, None, None, dma, last=True, n0=(NQ * 22) & 1)
    if dma:
        emit_dma_tile_plain()
    g.c("epilogue")
    g.e("s_waitcnt lgkmcnt(0)")
    for u in range(NQ):
        l = LB + 2 * u
        g.e(f"v_add_f32 v{l}, v{l}, v{l+1}")
    for sw in ("v_permlane16_swap_b32", "v_permlane32_swap_b32"):
        for u in range(NQ):
            l = LB + 2 * u
            g.e(f"v_mov_b32 v{l+1}, v{l}")
        g.e("s_nop 1")
        for u in range(NQ):
            l = LB + 2 * u
            g.e(f"{sw} v{l}, v{l+1}")
        g.e("s_nop 1")
        for u in range(NQ):
            l = LB + 2 * u
            g.e(f"v_add_f32 v{l}, v{l}, v{l+1}")
    for u in range(NQ):
        l = LB + 2 * u
        g.e(f"v_rcp_f32 v{l}, v{l}")
    g.e("s_nop 0")
    TB = [KB, KB + 12, VB, VB + 12]
    cnt = 0
    for u in range(NQ):
        l = LB + 2 * u
        g.e(f"s_add_u32 s{S_T}, s{S_HOFF}, {u*4096}")
        for jp in range(4):
            t = TB[cnt % 4]; cnt += 1
            for k in range(8):
                g.e(f"v_accvgpr_read_b32 v{t+k}, a{O(u, 2*jp)+k}")
            for k in range(0, 8, 2):
                g.e(f"v_pk_mul_f32 v[{t+k}:{t+k+1}], v[{t+k}:{t+k+1}], v[{l}:{l+1}] op_sel_hi:[1,0]")
            for k in range(4):
                g.e(f"v_cvt_pk_bf16_f32 v{t+8+k}, v{t+2*k}, v{t+2*k+1}")
            g.e("s_nop 1")
            g.e(f"v_permlane16_swap_b32 v{t+8}, v{t+10}")
            g.e(f"v_permlane16_swap_b32 v{t+9}, v{t+11}")
            g.e(f"buffer_store_dwordx4 {vr(t+8)}, v{OOFF}, s[{SO}:{SO+3}], s{S_T} offen offset:{jp*64}")
    g.e(f"s_mov_b32 s{S_HOFF}, s{S_HOFF2}")
    g.e(f"s_add_u32 s{S_ROUND}, s{S_ROUND}, 1")
    g.e(f"s_cmp_lt_u32 s{S_ROUND}, 2")
    g.e(f"s_cbranch_scc1 L_round_{tag}")
    g.e("s_endpgm")

def main():
    hdr = open("cdna_kernels/" + NAME + ".s.ref").read().split("; @launch")[0]
    out = hdr + f"; @launch grid=(256,1,1) block=(256,1,1) lds={LDS_BYTES}\n"
    out += f'''.amdgcn_target "amdgcn-amd-amdhsa--gfx950"
.text
.globl {NAME}_kernel
.p2align 8
.type {NAME}_kernel,@function
{NAME}_kernel:
'''
    g.e("s_cmp_ge_u32 s2, 256")
    g.e("s_cbranch_scc1 L_done")
    g.e("s_load_dwordx8 s[40:47], s[0:1], 0")
    g.e("v_lshrrev_b32 v1, 6, v0")
    g.e("v_and_b32 v2, 63, v0")
    g.e(f"v_readfirstlane_b32 s{S_WAVE}, v1")
    g.e("s_and_b32 s3, s2, 7")
    g.e("s_lshr_b32 s4, s2, 3")
    g.e("s_lshr_b32 s5, s4, 1")
    g.e("s_and_b32 s4, s4, 1")
    g.e("s_lshl_b32 s3, s3, 5")
    g.e("s_add_u32 s3, s3, s5")
    g.e(f"s_mul_i32 s{S_HOFF}, s3, {HEAD_BYTES}")
    g.e(f"s_add_u32 s{S_HOFF2}, s{S_HOFF}, {16*HEAD_BYTES}")
    g.e(f"s_mov_b32 s{S_ROUND}, 0")
    g.e(f"s_mov_b32 s{S_C}, {hex(f2u(CSCALE))}")
    g.e(f"s_mov_b32 s{S_C+1}, {hex(f2u(CSCALE))}")
    g.e("s_mul_i32 s4, s4, 368")
    g.e(f"s_mul_i32 s5, s{S_WAVE}, 96")
    g.e("s_add_u32 s4, s4, s5")
    g.e("v_and_b32 v3, 15, v2")
    g.e("v_lshrrev_b32 v4, 4, v2")
    g.e("v_add_u32 v5, s4, v3")
    g.e("v_lshlrev_b32 v5, 8, v5")
    g.e(f"v_lshl_add_u32 v{QOFF}, v4, 4, v5")
    g.e("v_and_b32 v6, 1, v4")
    g.e("v_lshrrev_b32 v7, 1, v4")
    g.e("v_lshl_add_u32 v5, v6, 5, v5")
    g.e(f"v_lshl_add_u32 v{OOFF}, v7, 4, v5")
    for s in range(4):
        g.e(f"v_add_u32 v5, {4*s}, v4")
        g.e("v_xor_b32 v5, v5, v3")
        g.e("v_lshlrev_b32 v5, 4, v5")
        g.e(f"v_lshl_add_u32 v{KAD+s}, v3, 8, v5")
    g.e("v_lshrrev_b32 v6, 2, v2")
    g.e("v_and_b32 v7, 3, v2")
    g.e("v_lshlrev_b32 v8, 8, v6")
    g.e("v_lshl_add_u32 v8, v7, 3, v8")
    g.e(f"v_add_u32 v8, {VBASE}, v8")
    g.e("v_and_b32 v6, 7, v6")
    for j in range(8):
        g.e(f"v_xor_b32 v5, {j}, v6")
        g.e(f"v_lshl_add_u32 v{VAD+j}, v5, 5, v8")
    g.e("s_waitcnt lgkmcnt(0)")
    for i, srd in enumerate((SQ, SK, SV, SO)):
        g.e(f"s_mov_b32 s{srd}, s{40+2*i}")
        g.e(f"s_and_b32 s{srd+1}, s{41+2*i}, 0xffff")
        g.e(f"s_mov_b32 s{srd+2}, {TOTAL_BYTES}")
        g.e(f"s_mov_b32 s{srd+3}, 0x20000")
    g.e(f"s_cmp_eq_u32 s{S_WAVE}, 3")
    g.e("s_cbranch_scc1 L_start_w3")
    emit_variant(6, False, "w0")
    emit_variant(5, True, "w3")
    g.lab("L_done")
    g.e("s_endpgm")
    out += "\n".join(g.L) + "\n"
    out += f'''.section .rodata,"a"
.p2align 6
.amdhsa_kernel {NAME}_kernel
  .amdhsa_next_free_vgpr 512
  .amdhsa_next_free_sgpr 64
  .amdhsa_accum_offset 256
  .amdhsa_group_segment_fixed_size 0
  .amdhsa_kernarg_size 48
  .amdhsa_user_sgpr_count 2
  .amdhsa_user_sgpr_kernarg_segment_ptr 1
  .amdhsa_system_sgpr_workgroup_id_x 1
.end_amdhsa_kernel
'''
    fn = sys.argv[1] if len(sys.argv) > 1 else "cdna_kernels/" + NAME + ".s"
    open(fn, "w").write(out)
main()
```

```python
import sys, os, struct
NAME = "standalone__gqa_softmax__near_ridge"
R = int(os.environ.get("R", "4"))
TILE = 8192
VBASE = R * TILE
STAGE = 2 * R * TILE
LDS_BYTES = STAGE + 23 * 4096
assert LDS_BYTES <= 163840
HEAD_BYTES = 736 * 256
TOTAL_BYTES = 256 * HEAD_BYTES
STAMP = int(os.environ.get("STAMP", "0"))
NT_KV = os.environ.get("NT_KV", "")
NT_Q = os.environ.get("NT_Q", "")
NT_O = os.environ.get("NT_O", "")
def f2u(x): return struct.unpack("<I", struct.pack("<f", x))[0]
CSCALE = 1.4426950408889634 / (128 ** 0.5)

def O(u, j): return (u * 8 + j) * 4
KA = 192; VA = 224
QB = 16; KB = 112; VB = 144; SB = 176; PB = 192; CB = 200; LB = 224
KAD = 236; VAD = 240
DK = 248
DV = 252
OOFF = 254
EA0 = 255
T0 = 2
def Q(u, s): return QB + (u * 4 + s) * 4
def vr(b, n=4): return f"v[{b}:{b+n-1}]"
def ar(b, n=4): return f"a[{b}:{b+n-1}]"
def Kf(par, f, n=4, o=0): return ar(KA + f * 4 + o, n) if par == 0 else vr(KB + f * 4 + o, n)
def Vf(par, j, n=4, o=0): return ar(VA + j * 4 + o, n) if par == 0 else vr(VB + j * 4 + o, n)
SQ, SK, SV, SO = 8, 12, 16, 20
S_WAVE = 24
S_HOFF = 25
S_HOFF2 = 26
S_ROUND = 27
S_CNT = 28
S_T = 29
S_C = 30
S_DOFF = 32; S_DCNT = 33; S_DSLOT = 34; S_D2 = 35
S_T2 = 36
S_OOB = 37
S_ROWB = 50
S_STG = 51
S_QP = 52
S_QPO = 53
S_QPL = 54
S_M0S = 55

class G:
    def __init__(self): self.L = []
    def e(self, s): self.L.append("    " + s)
    def lab(self, s): self.L.append(s + ":")
    def c(self, s): self.L.append("    ; " + s)
g = G()

def stamp(i, per_round=True):
    if not STAMP: return
    g.e("s_memtime s[38:39]")
    g.e("s_waitcnt lgkmcnt(0)")
    if per_round:
        g.e(f"s_cmp_eq_u32 s{S_ROUND}, 0")
        g.e(f"s_cselect_b32 s{64+i}, s38, s{64+i}")
        g.e(f"s_cselect_b32 s{64+i+6}, s{64+i+6}, s38")
    else:
        g.e(f"s_mov_b32 s{64+i}, s38")
def stamp_out():
    if not STAMP: return
    g.e("s_waitcnt vmcnt(0)")
    stamp(13, False)
    g.e("s_memrealtime s[38:39]")
    g.e("s_load_dwordx2 s[48:49], s[0:1], 40")
    g.e("s_waitcnt lgkmcnt(0)")
    g.e("s_mov_b32 s95, s38")
    g.e("s_lshl_b32 s3, s2, 2")
    g.e(f"s_add_u32 s3, s3, s{S_WAVE}")
    g.e("s_lshl_b32 s3, s3, 7")
    g.e("v_mov_b32 v2, s3")
    g.e("s_mov_b64 exec, 1")
    for i in list(range(14)) + [30, 31]:
        g.e(f"v_mov_b32 v3, s{64+i}")
        g.e(f"global_store_dword v2, v3, s[48:49] offset:{i*4}")

def mfma(d, a, b, c): return f"v_mfma_f32_16x16x32_bf16 {d}, {a}, {b}, {c}"
def qk_mfmas(u, par, sbuf):
    M = []
    for s in range(4):
        for kt in range(2):
            d = vr(SB + sbuf * 8 + kt * 4)
            c = vr(CB + u * 4) if s == 0 else d
            M.append(mfma(d, Kf(par, kt * 4 + s), vr(Q(u, s)), c))
    return M
def pv_mfmas(u, par, pbuf, first):
    return [mfma(ar(O(u, j)), Vf(par, j), vr(PB + pbuf * 4), "0" if first else ar(O(u, j))) for j in range(8)]
def sm_units(u, sbuf, pbuf):
    s = SB + sbuf * 8; p = PB + pbuf * 4
    E = lambda i: f"v_exp_f32 v{s+i}, v{s+i}"
    A = lambda i: f"v_add_f32 v{LB+u*2+(i&1)}, v{LB+u*2+(i&1)}, v{s+i}"
    C = lambda i: f"v_cvt_pk_bf16_f32 v{p+i}, v{s+2*i}, v{s+2*i+1}"
    return [[], [E(0)], [], [E(1)], [E(2)], [A(0), A(1)], [E(3)], [C(0), A(2)], [E(4)], [A(3), C(1)],
            [E(5)], [E(6)], [A(4), A(5)], [E(7)], [C(2), A(6)], [A(7), C(3)]]
FREE = [0, 0, 2, 2]
def k_reads(slot, par):
    return [f"ds_read_b128 {Kf(par, kt*4+s)}, v{KAD+s} offset:{slot*TILE+kt*4096}" for s in range(4) for kt in range(2)]
def v_reads(slot, par):
    return [f"ds_read_b64_tr_b16 {Vf(par, j, 2, 2*h)}, v{VAD+j} offset:{slot*TILE+h*4096}" for j in range(8) for h in range(2)]

def dma_tile_ops():
    ops = []
    for which in range(2):
        srd = SK if which == 0 else SV
        for hh in range(2):
            for i in range(4):
                pre = []
                if i == 0:
                    off = (VBASE if which else 0) + hh * 4096
                    pre.append(f"s_add_u32 m0, s{S_DSLOT}, {off}")
                so = S_DOFF if hh == 0 else S_D2
                va = DK + i if which == 0 else DV + (i & 1)
                ops.append((pre, f"buffer_load_dwordx4 v{va}, s[{srd}:{srd+3}], s{so} offen offset:{i*1024}{NT_KV} lds"))
    return ops
def dma_advance():
    return [
        f"s_add_u32 s{S_DCNT}, s{S_DCNT}, 1",
        f"s_add_u32 s{S_DOFF}, s{S_DOFF}, {TILE}",
        f"s_cmp_eq_u32 s{S_DCNT}, 24", f"s_cselect_b32 s{S_DOFF}, s{S_HOFF2}, s{S_DOFF}",
        f"s_cmp_eq_u32 s{S_DCNT}, 23", f"s_cselect_b32 s{S_DOFF}, s{S_OOB}, s{S_DOFF}",
        f"s_cmp_eq_u32 s{S_DCNT}, 47", f"s_cselect_b32 s{S_DOFF}, s{S_OOB}, s{S_DOFF}",
        f"s_add_u32 s{S_D2}, s{S_DOFF}, 4096",
        f"s_add_u32 s{S_DSLOT}, s{S_DSLOT}, {TILE}",
        f"s_cmp_eq_u32 s{S_DSLOT}, {R*TILE}", f"s_cselect_b32 s{S_DSLOT}, 0, s{S_DSLOT}",
    ]
def emit_dma_tile_plain(advance=True):
    for pre, d in dma_tile_ops():
        for p in pre: g.e(p); g.e("s_nop 0")
        g.e(d)
    if advance:
        for x in dma_advance(): g.e(x)
def emit_q_dma():
    g.e(f"s_mov_b32 m0, s{S_QPL}")
    g.e(f"s_add_u32 s{S_QPL}, s{S_QPL}, 4096")
    for i in range(4):
        g.e(f"buffer_load_dwordx4 v{DK+i}, s[{SQ}:{SQ+3}], s{S_QPO} offen offset:{i*1024}{NT_Q} lds")
    g.e(f"s_add_u32 s{S_QPO}, s{S_QPO}, 4096")

def emit_gaps(M, salu, mem, valu):
    for i, m in enumerate(M):
        g.e(m)
        for x in salu[i]: g.e(x)
        for x in mem[i]: g.e(x)
        for x in valu[i]: g.e(x)

def emit_body(NQ, i_par, slot_v, slot_k, dma, first=False, last=False, tail_salu=None, n0=0):
    M = []; salu = []; mem = []; valu = []
    free = []; stepstart = []
    for k in range(NQ):
        n = n0 + 2 + k
        uq = k + 2
        if uq < NQ: qk = qk_mfmas(uq, i_par, n & 1)
        elif not last: qk = qk_mfmas(uq - NQ, i_par ^ 1, n & 1)
        else: qk = []
        us = k + 1
        do_sm = (us < NQ) or not last
        us %= NQ
        pv = pv_mfmas(k, i_par, n & 1, first)
        ms = qk + pv
        base = len(M)
        stepstart.append(base)
        M += ms
        for _ in ms: salu.append([]); mem.append([]); valu.append([])
        if do_sm:
            U = sm_units(us, (n - 1) & 1, (n - 1) & 1)
            if len(ms) == 16:
                for t in range(16): valu[base + t] = list(U[t])
                free += [base + f for f in FREE]
            else:
                for t in range(8): valu[base + t] = U[2 * t] + U[2 * t + 1]
        if not qk:
            valu[base - 1] = valu[base - 1] + ["s_nop 1"]
    kstep = NQ - 2
    bpos = stepstart[kstep]
    if not last:
        vr_ = v_reads(slot_v, i_par ^ 1)
        kr_ = k_reads(slot_k, i_par)
        vfree = [f for f in free if f < bpos]
        kfree = [f for f in free if f >= bpos]
        extra = len(vr_) - len(vfree)
        pos = list(vfree)
        if extra > 0:
            cand = [x for x in range(1, bpos) if (x % 16) in (5, 9)]
            pos = sorted(pos + cand[:extra])
        assert len(pos) == len(vr_) and len(kfree) == len(kr_)
        for p, r in zip(pos, vr_): mem[p].append(r)
        for p, r in zip(kfree, kr_): mem[p].append(r)
    w = "s_waitcnt lgkmcnt(0)"
    if dma: w = f"s_waitcnt vmcnt({16*(R-2)}) lgkmcnt(0)"
    salu[bpos - 1].append(w)
    salu[bpos].append("s_barrier")
    if dma:
        q = 1
        for a in dma_advance():
            salu[q].append(a); q += 1
        assert q < bpos - 1
        ops = dma_tile_ops()
        n = len(M)
        cand = [x for x in range(bpos + 3, n - 2) if not mem[x]]
        if len(cand) >= 16:
            st = len(cand) / 16
            pa = [cand[int(t * st)] for t in range(16)]
        else:
            pa = [bpos + 2 + (t * (n - bpos - 2)) // 16 for t in range(16)]
        for p, (pre, d) in zip(pa, ops):
            if pre:
                mem[p].append(pre[0]); mem[p].append("s_nop 0") if False else None
                mem[p].pop()
                if mem[p]:
                    mem[p] += [pre[0], "s_nop 0"]
                elif mem[p - 1] and "lds" in mem[p - 1][-1]:
                    salu[p] += [pre[0], "s_nop 0"]
                else:
                    salu[p - 1].append(pre[0])
            mem[p].append(d)
    if tail_salu:
        q = len(M) - len(tail_salu)
        for t, x in enumerate(tail_salu): salu[q + t].append(x)
    emit_gaps(M, salu, mem, valu)

def emit_prescale(u):
    for r in range(Q(u, 0), Q(u, 0) + 16, 2):
        for k in range(2):
            t = T0 + 2 * k
            g.e(f"v_lshlrev_b32 v{t}, 16, v{r+k}")
            g.e(f"v_and_b32 v{t+1}, 0xffff0000, v{r+k}")
        for k in range(2):
            t = T0 + 2 * k
            g.e(f"v_pk_mul_f32 v[{t}:{t+1}], v[{t}:{t+1}], s[{S_C}:{S_C+1}]")
        for k in range(2):
            t = T0 + 2 * k
            g.e(f"v_cvt_pk_bf16_f32 v{r+k}, v{t}, v{t+1}")
QA = 8
def emit_qaddr():
    for s in range(4): g.e(f"v_add_u32 v{QA+s}, s{S_STG}, v{KAD+s}")
def q_reads(u):
    return [f"ds_read_b128 {vr(Q(u,s))}, v{QA+s} offset:{u*4096}" for s in range(4)]

def emit_variant(NQ, dma, tag):
    g.lab(f"L_start_{tag}")
    order = ["K0"] * 2 + ["Q0"] * 4 + ["Q1"] * 4 + ["V0"] * 2 + ["K1"] * 2 + ["Q2"] * 4 + ["V1"] * 2 + ["Q3"] * 4 + ["Q4"] * 4
    if NQ == 6:
        emit_q_dma(); order += ["Q5"] * 4
    if dma:
        g.e(f"s_add_u32 s{S_DOFF}, s{S_HOFF}, {2*TILE}")
        g.e(f"s_add_u32 s{S_D2}, s{S_DOFF}, 4096")
        g.e(f"s_mov_b32 s{S_DCNT}, 2")
        g.e(f"s_mov_b32 s{S_DSLOT}, {2*TILE}")
        g.e(f"s_mov_b32 s{S_OOB}, 0x10000000")
        for t in range(2, R):
            emit_dma_tile_plain(); order += ["T"] * 16
    g.e(f"s_mov_b32 s{S_QP}, {NQ}")
    g.e(f"s_add_u32 s{S_QPO}, s{S_HOFF2}, s{S_ROWB}")
    g.e(f"s_mov_b32 s{S_QPL}, s{S_STG}")
    emit_addr_setup()
    stamp(1)
    emit_qaddr()
    def after(name): return len(order) - 1 - max(i for i, x in enumerate(order) if x == name)
    for u in range(NQ):
        g.e(f"s_waitcnt vmcnt({min(63, after(f'Q{u}'))})")
        for x in q_reads(u): g.e(x)
        if u > 0:
            g.e("s_waitcnt lgkmcnt(4)")
            emit_prescale(u - 1)
    g.e("s_waitcnt lgkmcnt(0)")
    emit_prescale(NQ - 1)
    g.lab(f"L_round_{tag}")
    stamp(2)
    g.e("s_barrier")
    stamp(3)
    for x in k_reads(0, 0): g.e(x)
    for x in v_reads(0, 0)[:7]: g.e(x)
    for u in range(NQ):
        g.e(f"v_mov_b32 v{LB+2*u}, 0"); g.e(f"v_mov_b32 v{LB+2*u+1}, 0")
    g.e("s_waitcnt lgkmcnt(7)")
    g.c("stand-in max pre-pass (first 16 keys)")
    rest = v_reads(0, 0)[7:] + k_reads(1, 1)
    for u in range(NQ):
        for s in range(4):
            d = vr(CB + u * 4)
            g.e(mfma(d, Kf(0, s), vr(Q(u, s)), "0" if s == 0 else d))
            if rest: g.e(rest.pop(0))
    assert not rest
    g.e("s_nop 7")
    for u in range(NQ):
        c = CB + u * 4
        g.e(f"v_max3_f32 v{c}, v{c}, v{c+1}, v{c+2}")
    for u in range(NQ):
        c = CB + u * 4
        g.e(f"v_max_f32 v{c}, v{c}, v{c+3}")
    for sw in ("v_permlane16_swap_b32", "v_permlane32_swap_b32"):
        for u in range(NQ):
            c = CB + u * 4
            g.e(f"v_mov_b32 v{c+1}, v{c}")
        g.e("s_nop 1")
        for u in range(NQ):
            c = CB + u * 4
            g.e(f"{sw} v{c}, v{c+1}")
        g.e("s_nop 1")
        for u in range(NQ):
            c = CB + u * 4
            g.e(f"v_max_f32 v{c}, v{c}, v{c+1}")
    for u in range(NQ):
        c = CB + u * 4
        for k in range(3, -1, -1): g.e(f"v_sub_f32 v{c+k}, 0, v{c}")
    g.e("s_waitcnt lgkmcnt(0)")
    g.e("s_barrier")
    g.c("pipeline prologue: step 0, step 1")
    M = qk_mfmas(0, 0, 0) + qk_mfmas(1, 0, 1)
    ops = dma_tile_ops() if dma else []
    for t, m in enumerate(M):
        g.e(m)
        if ops:
            pre, d = ops[t]
            for p in pre: g.e(p); g.e("s_nop 0")
            g.e(d)
    g.e("s_nop 1")
    U = sm_units(0, 0, 0)
    for t in range(16):
        for x in U[t]: g.e(x)
    stamp(4)
    npass = (21 + R - 1) // R
    exit_ph = 21 % R
    g.e(f"s_mov_b32 s{S_CNT}, {npass}")
    emit_body(NQ, 0, 1 % R, 2 % R, dma, first=True, n0=0)
    g.L.append(".p2align 3")
    g.lab(f"L_loop_{tag}")
    phs = list(range(1, R)) + [0]
    for ph in phs:
        tail = None
        if ph == exit_ph:
            tail = [f"s_sub_u32 s{S_CNT}, s{S_CNT}, 1", f"s_cmp_eq_u32 s{S_CNT}, 0"]
        if ph == phs[-1]:
            tail = [f"s_cmp_eq_u32 s{S_QP}, 0"]
        emit_body(NQ, ph & 1, (ph + 1) % R, (ph + 2) % R, dma, n0=(NQ * ph) & 1, tail_salu=tail)
        if ph == exit_ph: g.e(f"s_cbranch_scc1 L_exit_{tag}")
    g.e(f"s_cbranch_scc1 L_loop_{tag}")
    emit_q_dma()
    g.e(f"s_sub_u32 s{S_QP}, s{S_QP}, 1")
    g.e(f"s_cmp_eq_u32 s{S_QP}, 0")
    g.e(f"s_cbranch_scc1 L_loop_{tag}")
    emit_q_dma()
    g.e(f"s_sub_u32 s{S_QP}, s{S_QP}, 1")
    g.e(f"s_branch L_loop_{tag}")
    g.lab(f"L_exit_{tag}")
    emit_body(NQ, 0, None, None, dma, last=True, n0=(NQ * 22) & 1)
    if dma:
        for x in dma_advance(): g.e(x)
    stamp(5)
    g.c("epilogue")
    g.e(f"s_waitcnt vmcnt({32 if dma else 0})")
    emit_qaddr()
    for u in range(NQ):
        for x in q_reads(u): g.e(x)
    for u in range(NQ):
        l = LB + 2 * u
        g.e(f"v_add_f32 v{l}, v{l}, v{l+1}")
    for sw in ("v_permlane16_swap_b32", "v_permlane32_swap_b32"):
        for u in range(NQ):
            l = LB + 2 * u
            g.e(f"v_mov_b32 v{l+1}, v{l}")
        g.e("s_nop 1")
        for u in range(NQ):
            l = LB + 2 * u
            g.e(f"{sw} v{l}, v{l+1}")
        g.e("s_nop 1")
        for u in range(NQ):
            l = LB + 2 * u
            g.e(f"v_add_f32 v{l}, v{l}, v{l+1}")
    for u in range(NQ):
        l = LB + 2 * u
        g.e(f"v_rcp_f32 v{l}, v{l}")
    g.e(f"v_add_u32 v2, s{S_STG}, v{EA0}")
    for j in range(1, 4): g.e(f"v_xor_b32 v{2+j}, {j<<5}, v2")
    g.e(f"v_add_u32 v6, s{S_STG}, v{DK}")
    g.e(f"v_add_u32 v7, s{S_STG}, v{DK+1}")
    g.e(f"s_add_u32 s{S_T}, s{S_HOFF}, s{S_ROWB}")
    g.e("s_waitcnt lgkmcnt(0)")
    TB = [KB, KB + 12]
    RB = [VB, VB + 16]
    cnt = 0
    def stores(u):
        for i in range(4):
            g.e(f"buffer_store_dwordx4 {vr(RB[u&1]+4*i)}, v{OOFF}, s[{SO}:{SO+3}], s{S_T} offen offset:{i*1024}{NT_O}")
        g.e(f"s_add_u32 s{S_T}, s{S_T}, 4096")
    for u in range(NQ):
        l = LB + 2 * u
        for jp in range(4):
            t = TB[cnt % 2]; cnt += 1
            for k in range(8):
                g.e(f"v_accvgpr_read_b32 v{t+k}, a{O(u, 2*jp)+k}")
            for k in range(0, 8, 2):
                g.e(f"v_pk_mul_f32 v[{t+k}:{t+k+1}], v[{t+k}:{t+k+1}], v[{l}:{l+1}] op_sel_hi:[1,0]")
            for k in range(4):
                g.e(f"v_cvt_pk_bf16_f32 v{t+8+k}, v{t+2*k}, v{t+2*k+1}")
            if jp == 1 and u > 0:
                g.e("s_waitcnt lgkmcnt(2)")
                stores(u - 1)
            for k in range(2):
                j = 2 * jp + k
                g.e(f"ds_write_b64 v{2+(j&3)}, v[{t+8+2*k}:{t+9+2*k}] offset:{u*4096+(j>>2)*128}")
        for i in range(4):
            g.e(f"ds_read_b128 {vr(RB[u&1]+4*i)}, v{6+(i&1)} offset:{u*4096+i*1024}")
    g.e("s_waitcnt lgkmcnt(0)")
    stores(NQ - 1)
    stamp(6)
    g.e(f"s_mov_b32 s{S_HOFF}, s{S_HOFF2}")
    g.e(f"s_add_u32 s{S_ROUND}, s{S_ROUND}, 1")
    g.e(f"s_cmp_ge_u32 s{S_ROUND}, 2")
    g.e(f"s_cbranch_scc1 L_end_{tag}")
    stamp(1)
    for u in range(NQ): emit_prescale(u)
    if dma:
        g.e(f"s_waitcnt vmcnt({min(63, 32 + 4*NQ)})")
    g.e(f"s_branch L_round_{tag}")
    g.lab(f"L_end_{tag}")
    stamp_out()
    g.e("s_endpgm")

def emit_addr_setup():
    for s in range(4):
        g.e(f"v_add_u32 v5, {4*s}, v14")
        g.e("v_xor_b32 v5, v5, v13")
        g.e("v_lshlrev_b32 v5, 4, v5")
        g.e(f"v_lshl_add_u32 v{KAD+s}, v13, 8, v5")
    g.e("v_lshrrev_b32 v6, 2, v12")
    g.e("v_and_b32 v7, 3, v12")
    g.e("v_lshlrev_b32 v8, 8, v6")
    g.e("v_lshl_add_u32 v8, v7, 3, v8")
    g.e(f"v_add_u32 v8, {VBASE}, v8")
    g.e("v_and_b32 v6, 7, v6")
    for j in range(8):
        g.e(f"v_xor_b32 v5, {j}, v6")
        g.e(f"v_lshl_add_u32 v{VAD+j}, v5, 5, v8")
    g.e(f"v_lshlrev_b32 v{OOFF}, 4, v12")
    g.e("v_lshrrev_b32 v5, 1, v14")
    g.e("v_and_b32 v6, 7, v13")
    g.e("v_xor_b32 v5, v5, v6")
    g.e("v_lshlrev_b32 v5, 4, v5")
    g.e("v_lshl_add_u32 v5, v13, 8, v5")
    g.e("v_and_b32 v6, 1, v14")
    g.e(f"v_lshl_add_u32 v{EA0}, v6, 3, v5")
    g.e(f"s_mov_b32 s{S_C}, {hex(f2u(CSCALE))}")
    g.e(f"s_mov_b32 s{S_C+1}, {hex(f2u(CSCALE))}")
    g.e(f"s_mov_b32 s{SO}, s46")
    g.e(f"s_and_b32 s{SO+1}, s47, 0xffff")
    g.e(f"s_mov_b32 s{SO+2}, {TOTAL_BYTES}")
    g.e(f"s_mov_b32 s{SO+3}, 0x20000")

def main():
    hdr = open("cdna_kernels/" + NAME + ".s.ref").read().split("; @launch")[0]
    out = hdr + f"; @launch grid=(256,1,1) block=(256,1,1) lds={LDS_BYTES}\n"
    out += f'''.amdgcn_target "amdgcn-amd-amdhsa--gfx950"
.text
.globl {NAME}_kernel
.p2align 8
.type {NAME}_kernel,@function
{NAME}_kernel:
'''
    if STAMP:
        for i in range(64, 96): g.e(f"s_mov_b32 s{i}, 0")
        g.e("s_memrealtime s[38:39]")
        g.e("s_waitcnt lgkmcnt(0)")
        g.e("s_mov_b32 s94, s38")
        stamp(0, False)
    g.e("s_load_dwordx8 s[40:47], s[0:1], 0")
    g.e("s_cmp_ge_u32 s2, 256")
    g.e("s_cbranch_scc1 L_done")
    g.e("v_lshrrev_b32 v1, 6, v0")
    g.e("v_and_b32 v12, 63, v0")
    g.e(f"v_readfirstlane_b32 s{S_WAVE}, v1")
    g.e("v_and_b32 v13, 15, v12")
    g.e("v_lshrrev_b32 v14, 4, v12")
    g.e("s_and_b32 s3, s2, 7")
    g.e("s_lshr_b32 s4, s2, 3")
    g.e("s_lshr_b32 s5, s4, 1")
    g.e("s_and_b32 s4, s4, 1")
    g.e("s_lshl_b32 s3, s3, 5")
    g.e("s_add_u32 s3, s3, s5")
    g.e(f"s_mul_i32 s{S_HOFF}, s3, {HEAD_BYTES}")
    g.e(f"s_add_u32 s{S_HOFF2}, s{S_HOFF}, {16*HEAD_BYTES}")
    g.e(f"s_mov_b32 s{S_ROUND}, 0")
    g.e(f"s_mul_i32 s4, s4, {368*256}")
    g.e(f"s_mul_i32 s5, s{S_WAVE}, {96*256}")
    g.e(f"s_add_u32 s{S_ROWB}, s4, s5")
    g.e(f"s_add_u32 s{S_STG}, s5, {STAGE}")
    g.e(f"s_add_u32 s{S_QPO}, s{S_HOFF}, s{S_ROWB}")
    g.e(f"s_mov_b32 s{S_QPL}, s{S_STG}")
    g.e("v_lshlrev_b32 v15, 8, v14")
    for i in range(4):
        g.e(f"v_add_u32 v5, {4*i}, v14")
        g.e("v_xor_b32 v5, v5, v13")
        g.e(f"v_lshl_add_u32 v{DK+i}, v5, 4, v15")
    for i in range(2):
        g.e(f"v_lshl_add_u32 v5, v14, 1, {8*i}")
        g.e("v_xor_b32 v5, v5, v13")
        g.e(f"v_lshl_add_u32 v{DV+i}, v5, 4, v15")
    g.e("v_lshl_add_u32 v5, v1, 2, v14")
    g.e("v_xor_b32 v6, v5, v13")
    g.e("v_lshl_add_u32 v2, v6, 4, v15")
    g.e("v_and_b32 v5, 7, v5")
    g.e("v_lshlrev_b32 v5, 1, v5")
    g.e("v_xor_b32 v6, v5, v13")
    g.e("v_lshl_add_u32 v3, v6, 4, v15")
    g.e(f"s_lshl_b32 s6, s{S_WAVE}, 10")
    g.e(f"s_add_u32 s7, s{S_HOFF}, s6")
    g.e("s_waitcnt lgkmcnt(0)")
    for i, srd in ((1, SK), (0, SQ), (2, SV)):
        g.e(f"s_mov_b32 s{srd}, s{40+2*i}")
        g.e(f"s_and_b32 s{srd+1}, s{41+2*i}, 0xffff")
        g.e(f"s_mov_b32 s{srd+2}, {TOTAL_BYTES}")
        g.e(f"s_mov_b32 s{srd+3}, 0x20000")
    def coop(which, t):
        srd = SK if which == 0 else SV
        for hh in range(2):
            off = t * TILE + hh * 4096
            g.e(f"s_add_u32 m0, s6, {off + (VBASE if which else 0)}")
            g.e(f"s_add_u32 s{S_T}, s7, {off}")
            g.e(f"buffer_load_dwordx4 v{2+which}, s[{srd}:{srd+3}], s{S_T} offen{NT_KV} lds")
    coop(0, 0); emit_q_dma(); emit_q_dma(); coop(1, 0); coop(0, 1); emit_q_dma(); coop(1, 1); emit_q_dma(); emit_q_dma()
    g.e(f"s_cmp_eq_u32 s{S_WAVE}, 3")
    g.e("s_cbranch_scc1 L_start_w3")
    emit_variant(6, False, "w0")
    emit_variant(5, True, "w3")
    g.lab("L_done")
    g.e("s_endpgm")
    out += "\n".join(g.L) + "\n"
    out += f'''.section .rodata,"a"
.p2align 6
.amdhsa_kernel {NAME}_kernel
  .amdhsa_next_free_vgpr 512
  .amdhsa_next_free_sgpr 96
  .amdhsa_accum_offset 256
  .amdhsa_group_segment_fixed_size 0
  .amdhsa_kernarg_size 48
  .amdhsa_user_sgpr_count 2
  .amdhsa_user_sgpr_kernarg_segment_ptr 1
  .amdhsa_system_sgpr_workgroup_id_x 1
.end_amdhsa_kernel
'''
    fn = sys.argv[1] if len(sys.argv) > 1 else "cdna_kernels/" + NAME + ".s"
    open(fn, "w").write(out)
main()
```

```python
import sys, os, struct
NAME = "standalone__gqa_softmax__near_ridge"
R = int(os.environ.get("R", "4"))
TILE = 8192
VBASE = R * TILE
STAGE = 2 * R * TILE
LDS_BYTES = STAGE + 23 * 4096
assert LDS_BYTES <= 163840
HEAD_BYTES = 736 * 256
TOTAL_BYTES = 256 * HEAD_BYTES
STAMP = int(os.environ.get("STAMP", "0"))
NT_KV = os.environ.get("NT_KV", "")
NT_Q = os.environ.get("NT_Q", "")
NT_O = os.environ.get("NT_O", "")
def f2u(x): return struct.unpack("<I", struct.pack("<f", x))[0]
CSCALE = 1.4426950408889634 / (128 ** 0.5)

def O(u, j): return (u * 8 + j) * 4
KA = 192; VA = 224
QB = 16; KB = 112; VB = 144; SB = 176; PB = 192; CB = 200; LB = 224
KAD = 236; VAD = 240
DK = 248
DV = 252
OOFF = 254
EA0 = 255
T0 = 2
def Q(u, s): return QB + (u * 4 + s) * 4
def vr(b, n=4): return f"v[{b}:{b+n-1}]"
def ar(b, n=4): return f"a[{b}:{b+n-1}]"
def Kf(par, f, n=4, o=0): return ar(KA + f * 4 + o, n) if par == 0 else vr(KB + f * 4 + o, n)
def Vf(par, j, n=4, o=0): return ar(VA + j * 4 + o, n) if par == 0 else vr(VB + j * 4 + o, n)
SQ, SK, SV, SO = 8, 12, 16, 20
S_WAVE = 24
S_HOFF = 25
S_HOFF2 = 26
S_ROUND = 27
S_CNT = 28
S_T = 29
S_C = 30
S_DOFF = 32; S_DCNT = 33; S_DSLOT = 34; S_D2 = 35
S_T2 = 36
S_OOB = 37
S_ROWB = 50
S_STG = 51
S_QP = 52
S_QPO = 53
S_QPL = 54
S_M0S = 55

class G:
    def __init__(self): self.L = []
    def e(self, s): self.L.append("    " + s)
    def lab(self, s): self.L.append(s + ":")
    def c(self, s): self.L.append("    ; " + s)
g = G()

def stamp(i, per_round=True):
    if not STAMP: return
    g.e("s_memtime s[38:39]")
    g.e("s_waitcnt lgkmcnt(0)")
    if per_round:
        g.e(f"s_cmp_eq_u32 s{S_ROUND}, 0")
        g.e(f"s_cselect_b32 s{64+i}, s38, s{64+i}")
        g.e(f"s_cselect_b32 s{64+i+6}, s{64+i+6}, s38")
    else:
        g.e(f"s_mov_b32 s{64+i}, s38")
def stamp_out():
    if not STAMP: return
    g.e("s_waitcnt vmcnt(0)")
    stamp(13, False)
    g.e("s_memrealtime s[38:39]")
    g.e("s_load_dwordx2 s[48:49], s[0:1], 40")
    g.e("s_waitcnt lgkmcnt(0)")
    g.e("s_mov_b32 s95, s38")
    if STAMP == 2:
        g.e("s_load_dwordx2 s[48:49], s[0:1], 32")
        g.e("s_waitcnt lgkmcnt(0)")
        g.e("s_lshl_b32 s3, s2, 2")
        g.e(f"s_add_u32 s3, s3, s{S_WAVE}")
        g.e("s_cmp_lg_u32 s3, 400")
        g.e("s_cbranch_scc1 L_done")
        g.e("v_mov_b32 v2, 0")
        g.e("s_mov_b64 exec, 1")
        g.e("s_sub_u32 s95, s95, s94")
        for i in range(1, 14):
            g.e(f"s_sub_u32 s3, s{64+i}, s64")
            g.e(f"v_mov_b32 v3, s3")
            g.e(f"global_store_dword v2, v3, s[48:49] offset:{i*4}")
        g.e(f"v_mov_b32 v3, s95")
        g.e(f"global_store_dword v2, v3, s[48:49] offset:0")
        return
    g.e("s_lshl_b32 s3, s2, 2")
    g.e(f"s_add_u32 s3, s3, s{S_WAVE}")
    g.e("s_lshl_b32 s3, s3, 7")
    g.e("v_mov_b32 v2, s3")
    g.e("s_mov_b64 exec, 1")
    for i in list(range(14)) + [30, 31]:
        g.e(f"v_mov_b32 v3, s{64+i}")
        g.e(f"global_store_dword v2, v3, s[48:49] offset:{i*4}")

def mfma(d, a, b, c): return f"v_mfma_f32_16x16x32_bf16 {d}, {a}, {b}, {c}"
def qk_mfmas(u, par, sbuf):
    M = []
    for s in range(4):
        for kt in range(2):
            d = vr(SB + sbuf * 8 + kt * 4)
            c = vr(CB + u * 4) if s == 0 else d
            M.append(mfma(d, Kf(par, kt * 4 + s), vr(Q(u, s)), c))
    return M
def pv_mfmas(u, par, pbuf, first):
    return [mfma(ar(O(u, j)), Vf(par, j), vr(PB + pbuf * 4), "0" if first else ar(O(u, j))) for j in range(8)]
def sm_units(u, sbuf, pbuf):
    s = SB + sbuf * 8; p = PB + pbuf * 4
    E = lambda i: f"v_exp_f32 v{s+i}, v{s+i}"
    A = lambda i: f"v_add_f32 v{LB+u*2+(i&1)}, v{LB+u*2+(i&1)}, v{s+i}"
    C = lambda i: f"v_cvt_pk_bf16_f32 v{p+i}, v{s+2*i}, v{s+2*i+1}"
    return [[], [E(0)], [], [E(1)], [E(2)], [A(0), A(1)], [E(3)], [C(0), A(2)], [E(4)], [A(3), C(1)],
            [E(5)], [E(6)], [A(4), A(5)], [E(7)], [C(2), A(6)], [A(7), C(3)]]
FREE = [0, 0, 2, 2]
def k_reads(slot, par):
    return [f"ds_read_b128 {Kf(par, kt*4+s)}, v{KAD+s} offset:{slot*TILE+kt*4096}" for s in range(4) for kt in range(2)]
def v_reads(slot, par):
    return [f"ds_read_b64_tr_b16 {Vf(par, j, 2, 2*h)}, v{VAD+j} offset:{slot*TILE+h*4096}" for j in range(8) for h in range(2)]

def dma_tile_ops():
    ops = []
    for which in range(2):
        srd = SK if which == 0 else SV
        for hh in range(2):
            for i in range(4):
                pre = []
                if i == 0:
                    off = (VBASE if which else 0) + hh * 4096
                    pre.append(f"s_add_u32 m0, s{S_DSLOT}, {off}")
                so = S_DOFF if hh == 0 else S_D2
                va = DK + i if which == 0 else DV + (i & 1)
                ops.append((pre, f"buffer_load_dwordx4 v{va}, s[{srd}:{srd+3}], s{so} offen offset:{i*1024}{NT_KV} lds"))
    return ops
def dma_advance():
    return [
        f"s_add_u32 s{S_DCNT}, s{S_DCNT}, 1",
        f"s_add_u32 s{S_DOFF}, s{S_DOFF}, {TILE}",
        f"s_cmp_eq_u32 s{S_DCNT}, 24", f"s_cselect_b32 s{S_DOFF}, s{S_HOFF2}, s{S_DOFF}",
        f"s_cmp_eq_u32 s{S_DCNT}, 23", f"s_cselect_b32 s{S_DOFF}, s{S_OOB}, s{S_DOFF}",
        f"s_cmp_eq_u32 s{S_DCNT}, 47", f"s_cselect_b32 s{S_DOFF}, s{S_OOB}, s{S_DOFF}",
        f"s_add_u32 s{S_D2}, s{S_DOFF}, 4096",
        f"s_add_u32 s{S_DSLOT}, s{S_DSLOT}, {TILE}",
        f"s_cmp_eq_u32 s{S_DSLOT}, {R*TILE}", f"s_cselect_b32 s{S_DSLOT}, 0, s{S_DSLOT}",
    ]
def emit_dma_tile_plain(advance=True):
    for pre, d in dma_tile_ops():
        for p in pre: g.e(p); g.e("s_nop 0")
        g.e(d)
    if advance:
        for x in dma_advance(): g.e(x)
def emit_q_dma():
    g.e(f"s_mov_b32 m0, s{S_QPL}")
    g.e(f"s_add_u32 s{S_QPL}, s{S_QPL}, 4096")
    for i in range(4):
        g.e(f"buffer_load_dwordx4 v{DK+i}, s[{SQ}:{SQ+3}], s{S_QPO} offen offset:{i*1024}{NT_Q} lds")
    g.e(f"s_add_u32 s{S_QPO}, s{S_QPO}, 4096")

def emit_gaps(M, salu, mem, valu):
    for i, m in enumerate(M):
        g.e(m)
        for x in salu[i]: g.e(x)
        for x in mem[i]: g.e(x)
        for x in valu[i]: g.e(x)

def emit_body(NQ, i_par, slot_v, slot_k, dma, first=False, last=False, tail_salu=None, n0=0):
    M = []; salu = []; mem = []; valu = []
    free = []; stepstart = []
    for k in range(NQ):
        n = n0 + 2 + k
        uq = k + 2
        if uq < NQ: qk = qk_mfmas(uq, i_par, n & 1)
        elif not last: qk = qk_mfmas(uq - NQ, i_par ^ 1, n & 1)
        else: qk = []
        us = k + 1
        do_sm = (us < NQ) or not last
        us %= NQ
        pv = pv_mfmas(k, i_par, n & 1, first)
        ms = qk + pv
        base = len(M)
        stepstart.append(base)
        M += ms
        for _ in ms: salu.append([]); mem.append([]); valu.append([])
        if do_sm:
            U = sm_units(us, (n - 1) & 1, (n - 1) & 1)
            if len(ms) == 16:
                for t in range(16): valu[base + t] = list(U[t])
                free += [base + f for f in FREE]
            else:
                for t in range(8): valu[base + t] = U[2 * t] + U[2 * t + 1]
        if not qk:
            valu[base - 1] = valu[base - 1] + ["s_nop 1"]
    kstep = NQ - 2
    bpos = stepstart[kstep]
    if not last:
        vr_ = v_reads(slot_v, i_par ^ 1)
        kr_ = k_reads(slot_k, i_par)
        vfree = [f for f in free if f < bpos]
        kfree = [f for f in free if f >= bpos]
        extra = len(vr_) - len(vfree)
        pos = list(vfree)
        if extra > 0:
            cand = [x for x in range(1, bpos) if (x % 16) in (5, 9)]
            pos = sorted(pos + cand[:extra])
        assert len(pos) == len(vr_) and len(kfree) == len(kr_)
        for p, r in zip(pos, vr_): mem[p].append(r)
        for p, r in zip(kfree, kr_): mem[p].append(r)
    w = "s_waitcnt lgkmcnt(0)"
    if dma: w = f"s_waitcnt vmcnt({16*(R-2)}) lgkmcnt(0)"
    salu[bpos - 1].append(w)
    salu[bpos].append("s_barrier")
    if dma:
        q = 1
        for a in dma_advance():
            salu[q].append(a); q += 1
        assert q < bpos - 1
        ops = dma_tile_ops()
        n = len(M)
        cand = [x for x in range(bpos + 3, n - 2) if not mem[x]]
        if len(cand) >= 16:
            st = len(cand) / 16
            pa = [cand[int(t * st)] for t in range(16)]
        else:
            pa = [bpos + 2 + (t * (n - bpos - 2)) // 16 for t in range(16)]
        for p, (pre, d) in zip(pa, ops):
            if pre:
                mem[p].append(pre[0]); mem[p].append("s_nop 0") if False else None
                mem[p].pop()
                if mem[p]:
                    mem[p] += [pre[0], "s_nop 0"]
                elif mem[p - 1] and "lds" in mem[p - 1][-1]:
                    salu[p] += [pre[0], "s_nop 0"]
                else:
                    salu[p - 1].append(pre[0])
            mem[p].append(d)
    if tail_salu:
        q = len(M) - len(tail_salu)
        for t, x in enumerate(tail_salu): salu[q + t].append(x)
    emit_gaps(M, salu, mem, valu)

def emit_prescale(u):
    for r in range(Q(u, 0), Q(u, 0) + 16, 2):
        for k in range(2):
            t = T0 + 2 * k
            g.e(f"v_lshlrev_b32 v{t}, 16, v{r+k}")
            g.e(f"v_and_b32 v{t+1}, 0xffff0000, v{r+k}")
        for k in range(2):
            t = T0 + 2 * k
            g.e(f"v_pk_mul_f32 v[{t}:{t+1}], v[{t}:{t+1}], s[{S_C}:{S_C+1}]")
        for k in range(2):
            t = T0 + 2 * k
            g.e(f"v_cvt_pk_bf16_f32 v{r+k}, v{t}, v{t+1}")
QA = 8
def emit_qaddr():
    for s in range(4): g.e(f"v_add_u32 v{QA+s}, s{S_STG}, v{KAD+s}")
def q_reads(u):
    return [f"ds_read_b128 {vr(Q(u,s))}, v{QA+s} offset:{u*4096}" for s in range(4)]

def emit_variant(NQ, dma, tag):
    g.lab(f"L_start_{tag}")
    order = ["K0"] * 2 + ["Q0"] * 4 + ["Q1"] * 4 + ["V0"] * 2 + ["K1"] * 2 + ["Q2"] * 4 + ["V1"] * 2 + ["Q3"] * 4 + ["Q4"] * 4
    if NQ == 6:
        emit_q_dma(); order += ["Q5"] * 4
    if dma:
        g.e(f"s_add_u32 s{S_DOFF}, s{S_HOFF}, {2*TILE}")
        g.e(f"s_add_u32 s{S_D2}, s{S_DOFF}, 4096")
        g.e(f"s_mov_b32 s{S_DCNT}, 2")
        g.e(f"s_mov_b32 s{S_DSLOT}, {2*TILE}")
        g.e(f"s_mov_b32 s{S_OOB}, 0x10000000")
        for t in range(2, R):
            emit_dma_tile_plain(); order += ["T"] * 16
    g.e(f"s_mov_b32 s{S_QP}, {NQ}")
    g.e(f"s_add_u32 s{S_QPO}, s{S_HOFF2}, s{S_ROWB}")
    g.e(f"s_mov_b32 s{S_QPL}, s{S_STG}")
    emit_addr_setup()
    stamp(1)
    emit_qaddr()
    def after(name): return len(order) - 1 - max(i for i, x in enumerate(order) if x == name)
    for u in range(NQ):
        g.e(f"s_waitcnt vmcnt({min(63, after(f'Q{u}'))})")
        for x in q_reads(u): g.e(x)
        if u > 0:
            g.e("s_waitcnt lgkmcnt(4)")
            emit_prescale(u - 1)
    g.e("s_waitcnt lgkmcnt(0)")
    emit_prescale(NQ - 1)
    g.lab(f"L_round_{tag}")
    stamp(2)
    g.e("s_barrier")
    stamp(3)
    for x in k_reads(0, 0): g.e(x)
    for x in v_reads(0, 0)[:7]: g.e(x)
    for u in range(NQ):
        g.e(f"v_mov_b32 v{LB+2*u}, 0"); g.e(f"v_mov_b32 v{LB+2*u+1}, 0")
    g.e("s_waitcnt lgkmcnt(7)")
    g.c("stand-in max pre-pass (first 16 keys)")
    rest = v_reads(0, 0)[7:] + k_reads(1, 1)
    for u in range(NQ):
        for s in range(4):
            d = vr(CB + u * 4)
            g.e(mfma(d, Kf(0, s), vr(Q(u, s)), "0" if s == 0 else d))
            if rest: g.e(rest.pop(0))
    assert not rest
    g.e("s_nop 7")
    for u in range(NQ):
        c = CB + u * 4
        g.e(f"v_max3_f32 v{c}, v{c}, v{c+1}, v{c+2}")
    for u in range(NQ):
        c = CB + u * 4
        g.e(f"v_max_f32 v{c}, v{c}, v{c+3}")
    for sw in ("v_permlane16_swap_b32", "v_permlane32_swap_b32"):
        for u in range(NQ):
            c = CB + u * 4
            g.e(f"v_mov_b32 v{c+1}, v{c}")
        g.e("s_nop 1")
        for u in range(NQ):
            c = CB + u * 4
            g.e(f"{sw} v{c}, v{c+1}")
        g.e("s_nop 1")
        for u in range(NQ):
            c = CB + u * 4
            g.e(f"v_max_f32 v{c}, v{c}, v{c+1}")
    for u in range(NQ):
        c = CB + u * 4
        for k in range(3, -1, -1): g.e(f"v_sub_f32 v{c+k}, 0, v{c}")
    g.e("s_waitcnt lgkmcnt(0)")
    g.e("s_barrier")
    g.c("pipeline prologue: step 0, step 1")
    M = qk_mfmas(0, 0, 0) + qk_mfmas(1, 0, 1)
    ops = dma_tile_ops() if dma else []
    for t, m in enumerate(M):
        g.e(m)
        if ops:
            pre, d = ops[t]
            for p in pre: g.e(p); g.e("s_nop 0")
            g.e(d)
    g.e("s_nop 1")
    U = sm_units(0, 0, 0)
    for t in range(16):
        for x in U[t]: g.e(x)
    stamp(4)
    npass = (21 + R - 1) // R
    exit_ph = 21 % R
    g.e(f"s_mov_b32 s{S_CNT}, {npass}")
    emit_body(NQ, 0, 1 % R, 2 % R, dma, first=True, n0=0)
    g.L.append(".p2align 3")
    g.lab(f"L_loop_{tag}")
    phs = list(range(1, R)) + [0]
    for ph in phs:
        tail = None
        if ph == exit_ph:
            tail = [f"s_sub_u32 s{S_CNT}, s{S_CNT}, 1", f"s_cmp_eq_u32 s{S_CNT}, 0"]
        if ph == phs[-1]:
            tail = [f"s_cmp_eq_u32 s{S_QP}, 0"]
        emit_body(NQ, ph & 1, (ph + 1) % R, (ph + 2) % R, dma, n0=(NQ * ph) & 1, tail_salu=tail)
        if ph == exit_ph: g.e(f"s_cbranch_scc1 L_exit_{tag}")
    g.e(f"s_cbranch_scc1 L_loop_{tag}")
    emit_q_dma()
    g.e(f"s_sub_u32 s{S_QP}, s{S_QP}, 1")
    g.e(f"s_cmp_eq_u32 s{S_QP}, 0")
    g.e(f"s_cbranch_scc1 L_loop_{tag}")
    emit_q_dma()
    g.e(f"s_sub_u32 s{S_QP}, s{S_QP}, 1")
    g.e(f"s_branch L_loop_{tag}")
    g.lab(f"L_exit_{tag}")
    emit_body(NQ, 0, None, None, dma, last=True, n0=(NQ * 22) & 1)
    if dma:
        for x in dma_advance(): g.e(x)
    stamp(5)
    g.c("epilogue")
    g.e(f"s_waitcnt vmcnt({32 if dma else 0})")
    emit_qaddr()
    for u in range(NQ):
        for x in q_reads(u): g.e(x)
    for u in range(NQ):
        l = LB + 2 * u
        g.e(f"v_add_f32 v{l}, v{l}, v{l+1}")
    for sw in ("v_permlane16_swap_b32", "v_permlane32_swap_b32"):
        for u in range(NQ):
            l = LB + 2 * u
            g.e(f"v_mov_b32 v{l+1}, v{l}")
        g.e("s_nop 1")
        for u in range(NQ):
            l = LB + 2 * u
            g.e(f"{sw} v{l}, v{l+1}")
        g.e("s_nop 1")
        for u in range(NQ):
            l = LB + 2 * u
            g.e(f"v_add_f32 v{l}, v{l}, v{l+1}")
    for u in range(NQ):
        l = LB + 2 * u
        g.e(f"v_rcp_f32 v{l}, v{l}")
    g.e(f"v_add_u32 v2, s{S_STG}, v{EA0}")
    for j in range(1, 4): g.e(f"v_xor_b32 v{2+j}, {j<<5}, v2")
    g.e(f"v_add_u32 v6, s{S_STG}, v{DK}")
    g.e(f"v_add_u32 v7, s{S_STG}, v{DK+1}")
    g.e(f"s_add_u32 s{S_T}, s{S_HOFF}, s{S_ROWB}")
    g.e("s_waitcnt lgkmcnt(0)")
    TB = [KB, KB + 12]
    RB = [VB, VB + 16]
    cnt = 0
    def stores(u):
        for i in range(4):
            g.e(f"buffer_store_dwordx4 {vr(RB[u&1]+4*i)}, v{OOFF}, s[{SO}:{SO+3}], s{S_T} offen offset:{i*1024}{NT_O}")
        g.e(f"s_add_u32 s{S_T}, s{S_T}, 4096")
    for u in range(NQ):
        l = LB + 2 * u
        for jp in range(4):
            t = TB[cnt % 2]; cnt += 1
            for k in range(8):
                g.e(f"v_accvgpr_read_b32 v{t+k}, a{O(u, 2*jp)+k}")
            for k in range(0, 8, 2):
                g.e(f"v_pk_mul_f32 v[{t+k}:{t+k+1}], v[{t+k}:{t+k+1}], v[{l}:{l+1}] op_sel_hi:[1,0]")
            for k in range(4):
                g.e(f"v_cvt_pk_bf16_f32 v{t+8+k}, v{t+2*k}, v{t+2*k+1}")
            if jp == 1 and u > 0:
                g.e("s_waitcnt lgkmcnt(2)")
                stores(u - 1)
            for k in range(2):
                j = 2 * jp + k
                g.e(f"ds_write_b64 v{2+(j&3)}, v[{t+8+2*k}:{t+9+2*k}] offset:{u*4096+(j>>2)*128}")
        for i in range(4):
            g.e(f"ds_read_b128 {vr(RB[u&1]+4*i)}, v{6+(i&1)} offset:{u*4096+i*1024}")
    g.e("s_waitcnt lgkmcnt(0)")
    stores(NQ - 1)
    stamp(6)
    g.e(f"s_mov_b32 s{S_HOFF}, s{S_HOFF2}")
    g.e(f"s_add_u32 s{S_ROUND}, s{S_ROUND}, 1")
    g.e(f"s_cmp_ge_u32 s{S_ROUND}, 2")
    g.e(f"s_cbranch_scc1 L_end_{tag}")
    stamp(1)
    for u in range(NQ): emit_prescale(u)
    if dma:
        g.e(f"s_waitcnt vmcnt({min(63, 32 + 4*NQ)})")
    g.e(f"s_branch L_round_{tag}")
    g.lab(f"L_end_{tag}")
    stamp_out()
    g.e("s_endpgm")

def emit_addr_setup():
    for s in range(4):
        g.e(f"v_add_u32 v5, {4*s}, v14")
        g.e("v_xor_b32 v5, v5, v13")
        g.e("v_lshlrev_b32 v5, 4, v5")
        g.e(f"v_lshl_add_u32 v{KAD+s}, v13, 8, v5")
    g.e("v_lshrrev_b32 v6, 2, v12")
    g.e("v_and_b32 v7, 3, v12")
    g.e("v_lshlrev_b32 v8, 8, v6")
    g.e("v_lshl_add_u32 v8, v7, 3, v8")
    g.e(f"v_add_u32 v8, {VBASE}, v8")
    g.e("v_and_b32 v6, 7, v6")
    for j in range(8):
        g.e(f"v_xor_b32 v5, {j}, v6")
        g.e(f"v_lshl_add_u32 v{VAD+j}, v5, 5, v8")
    g.e(f"v_lshlrev_b32 v{OOFF}, 4, v12")
    g.e("v_lshrrev_b32 v5, 1, v14")
    g.e("v_and_b32 v6, 7, v13")
    g.e("v_xor_b32 v5, v5, v6")
    g.e("v_lshlrev_b32 v5, 4, v5")
    g.e("v_lshl_add_u32 v5, v13, 8, v5")
    g.e("v_and_b32 v6, 1, v14")
    g.e(f"v_lshl_add_u32 v{EA0}, v6, 3, v5")
    g.e(f"s_mov_b32 s{S_C}, {hex(f2u(CSCALE))}")
    g.e(f"s_mov_b32 s{S_C+1}, {hex(f2u(CSCALE))}")
    g.e(f"s_mov_b32 s{SO}, s46")
    g.e(f"s_and_b32 s{SO+1}, s47, 0xffff")
    g.e(f"s_mov_b32 s{SO+2}, {TOTAL_BYTES}")
    g.e(f"s_mov_b32 s{SO+3}, 0x20000")

def main():
    hdr = open("cdna_kernels/" + NAME + ".s.ref").read().split("; @launch")[0]
    out = hdr + f"; @launch grid=(256,1,1) block=(256,1,1) lds={LDS_BYTES}\n"
    out += f'''.amdgcn_target "amdgcn-amd-amdhsa--gfx950"
.text
.globl {NAME}_kernel
.p2align 8
.type {NAME}_kernel,@function
{NAME}_kernel:
'''
    if STAMP:
        for i in range(64, 96): g.e(f"s_mov_b32 s{i}, 0")
        g.e("s_memrealtime s[38:39]")
        g.e("s_waitcnt lgkmcnt(0)")
        g.e("s_mov_b32 s94, s38")
        stamp(0, False)
    g.e("s_load_dwordx8 s[40:47], s[0:1], 0")
    g.e("s_cmp_ge_u32 s2, 256")
    g.e("s_cbranch_scc1 L_done")
    g.e("v_lshrrev_b32 v1, 6, v0")
    g.e("v_and_b32 v12, 63, v0")
    g.e(f"v_readfirstlane_b32 s{S_WAVE}, v1")
    g.e("v_and_b32 v13, 15, v12")
    g.e("v_lshrrev_b32 v14, 4, v12")
    g.e("s_and_b32 s3, s2, 7")
    g.e("s_lshr_b32 s4, s2, 3")
    g.e("s_lshr_b32 s5, s4, 1")
    g.e("s_and_b32 s4, s4, 1")
    g.e("s_lshl_b32 s3, s3, 5")
    g.e("s_add_u32 s3, s3, s5")
    g.e(f"s_mul_i32 s{S_HOFF}, s3, {HEAD_BYTES}")
    g.e(f"s_add_u32 s{S_HOFF2}, s{S_HOFF}, {16*HEAD_BYTES}")
    g.e(f"s_mov_b32 s{S_ROUND}, 0")
    g.e(f"s_mul_i32 s4, s4, {368*256}")
    g.e(f"s_mul_i32 s5, s{S_WAVE}, {96*256}")
    g.e(f"s_add_u32 s{S_ROWB}, s4, s5")
    g.e(f"s_add_u32 s{S_STG}, s5, {STAGE}")
    g.e(f"s_add_u32 s{S_QPO}, s{S_HOFF}, s{S_ROWB}")
    g.e(f"s_mov_b32 s{S_QPL}, s{S_STG}")
    g.e("v_lshlrev_b32 v15, 8, v14")
    for i in range(4):
        g.e(f"v_add_u32 v5, {4*i}, v14")
        g.e("v_xor_b32 v5, v5, v13")
        g.e(f"v_lshl_add_u32 v{DK+i}, v5, 4, v15")
    for i in range(2):
        g.e(f"v_lshl_add_u32 v5, v14, 1, {8*i}")
        g.e("v_xor_b32 v5, v5, v13")
        g.e(f"v_lshl_add_u32 v{DV+i}, v5, 4, v15")
    g.e("v_lshl_add_u32 v5, v1, 2, v14")
    g.e("v_xor_b32 v6, v5, v13")
    g.e("v_lshl_add_u32 v2, v6, 4, v15")
    g.e("v_and_b32 v5, 7, v5")
    g.e("v_lshlrev_b32 v5, 1, v5")
    g.e("v_xor_b32 v6, v5, v13")
    g.e("v_lshl_add_u32 v3, v6, 4, v15")
    g.e(f"s_lshl_b32 s6, s{S_WAVE}, 10")
    g.e(f"s_add_u32 s7, s{S_HOFF}, s6")
    g.e("s_waitcnt lgkmcnt(0)")
    for i, srd in ((1, SK), (0, SQ), (2, SV)):
        g.e(f"s_mov_b32 s{srd}, s{40+2*i}")
        g.e(f"s_and_b32 s{srd+1}, s{41+2*i}, 0xffff")
        g.e(f"s_mov_b32 s{srd+2}, {TOTAL_BYTES}")
        g.e(f"s_mov_b32 s{srd+3}, 0x20000")
    def coop(which, t):
        srd = SK if which == 0 else SV
        for hh in range(2):
            off = t * TILE + hh * 4096
            g.e(f"s_add_u32 m0, s6, {off + (VBASE if which else 0)}")
            g.e(f"s_add_u32 s{S_T}, s7, {off}")
            g.e(f"buffer_load_dwordx4 v{2+which}, s[{srd}:{srd+3}], s{S_T} offen{NT_KV} lds")
    coop(0, 0); emit_q_dma(); emit_q_dma(); coop(1, 0); coop(0, 1); emit_q_dma(); coop(1, 1); emit_q_dma(); emit_q_dma()
    g.e(f"s_cmp_eq_u32 s{S_WAVE}, 3")
    g.e("s_cbranch_scc1 L_start_w3")
    emit_variant(6, False, "w0")
    emit_variant(5, True, "w3")
    g.lab("L_done")
    g.e("s_endpgm")
    out += "\n".join(g.L) + "\n"
    out += f'''.section .rodata,"a"
.p2align 6
.amdhsa_kernel {NAME}_kernel
  .amdhsa_next_free_vgpr 512
  .amdhsa_next_free_sgpr 96
  .amdhsa_accum_offset 256
  .amdhsa_group_segment_fixed_size 0
  .amdhsa_kernarg_size 48
  .amdhsa_user_sgpr_count 2
  .amdhsa_user_sgpr_kernarg_segment_ptr 1
  .amdhsa_system_sgpr_workgroup_id_x 1
.end_amdhsa_kernel
'''
    fn = sys.argv[1] if len(sys.argv) > 1 else "cdna_kernels/" + NAME + ".s"
    open(fn, "w").write(out)
main()
```

```python
import sys, os, struct
NAME = "standalone__gqa_softmax__near_ridge"
R = int(os.environ.get("R", "4"))
TILE = 8192
VBASE = R * TILE
STAGE = 2 * R * TILE
LDS_BYTES = STAGE + 23 * 4096
assert LDS_BYTES <= 163840
HEAD_BYTES = 736 * 256
TOTAL_BYTES = 256 * HEAD_BYTES
STAMP = int(os.environ.get("STAMP", "0"))
NT_KV = os.environ.get("NT_KV", "")
NT_Q = os.environ.get("NT_Q", "")
NT_O = os.environ.get("NT_O", "")
def f2u(x): return struct.unpack("<I", struct.pack("<f", x))[0]
CSCALE = 1.4426950408889634 / (128 ** 0.5)

def O(u, j): return (u * 8 + j) * 4
KA = 192; VA = 224
QB = 16; KB = 112; VB = 144; SB = 176; PB = 192; CB = 200; LB = 224
KAD = 236; VAD = 240
DK = 248
DV = 252
OOFF = 254
EA0 = 255
T0 = 2
def Q(u, s): return QB + (u * 4 + s) * 4
def vr(b, n=4): return f"v[{b}:{b+n-1}]"
def ar(b, n=4): return f"a[{b}:{b+n-1}]"
def Kf(par, f, n=4, o=0): return ar(KA + f * 4 + o, n) if par == 0 else vr(KB + f * 4 + o, n)
def Vf(par, j, n=4, o=0): return ar(VA + j * 4 + o, n) if par == 0 else vr(VB + j * 4 + o, n)
SQ, SK, SV, SO = 8, 12, 16, 20
S_WAVE = 24
S_HOFF = 25
S_HOFF2 = 26
S_ROUND = 27
S_CNT = 28
S_T = 29
S_C = 30
S_DOFF = 32; S_DCNT = 33; S_DSLOT = 34; S_D2 = 35
S_T2 = 36
S_OOB = 37
S_ROWB = 50
S_STG = 51
S_QP = 52
S_QPO = 53
S_QPL = 54
S_M0S = 55

class G:
    def __init__(self): self.L = []
    def e(self, s): self.L.append("    " + s)
    def lab(self, s): self.L.append(s + ":")
    def c(self, s): self.L.append("    ; " + s)
g = G()

NSPIN = 0
def stamp(i, per_round=True):
    if not STAMP: return
    g.e("s_memrealtime s[38:39]" if STAMP == 3 else "s_memtime s[38:39]")
    g.e("s_waitcnt lgkmcnt(0)")
    if per_round:
        g.e(f"s_cmp_eq_u32 s{S_ROUND}, 0")
        g.e(f"s_cselect_b32 s{64+i}, s38, s{64+i}")
        g.e(f"s_cselect_b32 s{64+i+6}, s{64+i+6}, s38")
    else:
        g.e(f"s_mov_b32 s{64+i}, s38")
def stamp_out():
    if not STAMP: return
    g.e("s_waitcnt vmcnt(0)")
    stamp(13, False)
    if STAMP == 3:
        ph = int(os.environ.get("PH", "0"))
        global NSPIN
        NSPIN += 1
        g.e(f"s_add_u32 s3, s{64+ph}, 10000")
        g.lab(f"L_spin{NSPIN}")
        g.e("s_sleep 2")
        g.e("s_memrealtime s[38:39]")
        g.e("s_waitcnt lgkmcnt(0)")
        g.e("s_sub_u32 s4, s3, s38")
        g.e("s_cmp_gt_i32 s4, 0")
        g.e(f"s_cbranch_scc1 L_spin{NSPIN}")
        return
    g.e("s_memrealtime s[38:39]")
    g.e("s_load_dwordx2 s[48:49], s[0:1], 40")
    g.e("s_waitcnt lgkmcnt(0)")
    g.e("s_mov_b32 s95, s38")
    if STAMP == 2:
        g.e("s_load_dwordx2 s[48:49], s[0:1], 32")
        g.e("s_waitcnt lgkmcnt(0)")
        g.e("s_lshl_b32 s3, s2, 2")
        g.e(f"s_add_u32 s3, s3, s{S_WAVE}")
        g.e("s_cmp_lg_u32 s3, 400")
        g.e("s_cbranch_scc1 L_done")
        g.e("v_mov_b32 v2, 0")
        g.e("s_mov_b64 exec, 1")
        g.e("s_sub_u32 s95, s95, s94")
        for i in range(1, 14):
            g.e(f"s_sub_u32 s3, s{64+i}, s64")
            g.e(f"v_mov_b32 v3, s3")
            g.e(f"global_store_dword v2, v3, s[48:49] offset:{i*4}")
        g.e(f"v_mov_b32 v3, s95")
        g.e(f"global_store_dword v2, v3, s[48:49] offset:0")
        return
    g.e("s_lshl_b32 s3, s2, 2")
    g.e(f"s_add_u32 s3, s3, s{S_WAVE}")
    g.e("s_lshl_b32 s3, s3, 7")
    g.e("v_mov_b32 v2, s3")
    g.e("s_mov_b64 exec, 1")
    for i in list(range(14)) + [30, 31]:
        g.e(f"v_mov_b32 v3, s{64+i}")
        g.e(f"global_store_dword v2, v3, s[48:49] offset:{i*4}")

def mfma(d, a, b, c): return f"v_mfma_f32_16x16x32_bf16 {d}, {a}, {b}, {c}"
def qk_mfmas(u, par, sbuf):
    M = []
    for s in range(4):
        for kt in range(2):
            d = vr(SB + sbuf * 8 + kt * 4)
            c = vr(CB + u * 4) if s == 0 else d
            M.append(mfma(d, Kf(par, kt * 4 + s), vr(Q(u, s)), c))
    return M
def pv_mfmas(u, par, pbuf, first):
    return [mfma(ar(O(u, j)), Vf(par, j), vr(PB + pbuf * 4), "0" if first else ar(O(u, j))) for j in range(8)]
def sm_units(u, sbuf, pbuf):
    s = SB + sbuf * 8; p = PB + pbuf * 4
    E = lambda i: f"v_exp_f32 v{s+i}, v{s+i}"
    A = lambda i: f"v_add_f32 v{LB+u*2+(i&1)}, v{LB+u*2+(i&1)}, v{s+i}"
    C = lambda i: f"v_cvt_pk_bf16_f32 v{p+i}, v{s+2*i}, v{s+2*i+1}"
    return [[], [E(0)], [], [E(1)], [E(2)], [A(0), A(1)], [E(3)], [C(0), A(2)], [E(4)], [A(3), C(1)],
            [E(5)], [E(6)], [A(4), A(5)], [E(7)], [C(2), A(6)], [A(7), C(3)]]
FREE = [0, 0, 2, 2]
def k_reads(slot, par):
    return [f"ds_read_b128 {Kf(par, kt*4+s)}, v{KAD+s} offset:{slot*TILE+kt*4096}" for s in range(4) for kt in range(2)]
def v_reads(slot, par):
    return [f"ds_read_b64_tr_b16 {Vf(par, j, 2, 2*h)}, v{VAD+j} offset:{slot*TILE+h*4096}" for j in range(8) for h in range(2)]

def dma_tile_ops():
    ops = []
    for which in range(2):
        srd = SK if which == 0 else SV
        for hh in range(2):
            for i in range(4):
                pre = []
                if i == 0:
                    off = (VBASE if which else 0) + hh * 4096
                    pre.append(f"s_add_u32 m0, s{S_DSLOT}, {off}")
                so = S_DOFF if hh == 0 else S_D2
                va = DK + i if which == 0 else DV + (i & 1)
                ops.append((pre, f"buffer_load_dwordx4 v{va}, s[{srd}:{srd+3}], s{so} offen offset:{i*1024}{NT_KV} lds"))
    return ops
def dma_advance():
    return [
        f"s_add_u32 s{S_DCNT}, s{S_DCNT}, 1",
        f"s_add_u32 s{S_DOFF}, s{S_DOFF}, {TILE}",
        f"s_cmp_eq_u32 s{S_DCNT}, 24", f"s_cselect_b32 s{S_DOFF}, s{S_HOFF2}, s{S_DOFF}",
        f"s_cmp_eq_u32 s{S_DCNT}, 23", f"s_cselect_b32 s{S_DOFF}, s{S_OOB}, s{S_DOFF}",
        f"s_cmp_eq_u32 s{S_DCNT}, 47", f"s_cselect_b32 s{S_DOFF}, s{S_OOB}, s{S_DOFF}",
        f"s_add_u32 s{S_D2}, s{S_DOFF}, 4096",
        f"s_add_u32 s{S_DSLOT}, s{S_DSLOT}, {TILE}",
        f"s_cmp_eq_u32 s{S_DSLOT}, {R*TILE}", f"s_cselect_b32 s{S_DSLOT}, 0, s{S_DSLOT}",
    ]
def emit_dma_tile_plain(advance=True):
    for pre, d in dma_tile_ops():
        for p in pre: g.e(p); g.e("s_nop 0")
        g.e(d)
    if advance:
        for x in dma_advance(): g.e(x)
def emit_q_dma():
    g.e(f"s_mov_b32 m0, s{S_QPL}")
    g.e(f"s_add_u32 s{S_QPL}, s{S_QPL}, 4096")
    for i in range(4):
        g.e(f"buffer_load_dwordx4 v{DK+i}, s[{SQ}:{SQ+3}], s{S_QPO} offen offset:{i*1024}{NT_Q} lds")
    g.e(f"s_add_u32 s{S_QPO}, s{S_QPO}, 4096")

def emit_gaps(M, salu, mem, valu):
    for i, m in enumerate(M):
        g.e(m)
        for x in salu[i]: g.e(x)
        for x in mem[i]: g.e(x)
        for x in valu[i]: g.e(x)

def emit_body(NQ, i_par, slot_v, slot_k, dma, first=False, last=False, tail_salu=None, n0=0):
    M = []; salu = []; mem = []; valu = []
    free = []; stepstart = []
    for k in range(NQ):
        n = n0 + 2 + k
        uq = k + 2
        if uq < NQ: qk = qk_mfmas(uq, i_par, n & 1)
        elif not last: qk = qk_mfmas(uq - NQ, i_par ^ 1, n & 1)
        else: qk = []
        us = k + 1
        do_sm = (us < NQ) or not last
        us %= NQ
        pv = pv_mfmas(k, i_par, n & 1, first)
        ms = qk + pv
        base = len(M)
        stepstart.append(base)
        M += ms
        for _ in ms: salu.append([]); mem.append([]); valu.append([])
        if do_sm:
            U = sm_units(us, (n - 1) & 1, (n - 1) & 1)
            if len(ms) == 16:
                for t in range(16): valu[base + t] = list(U[t])
                free += [base + f for f in FREE]
            else:
                for t in range(8): valu[base + t] = U[2 * t] + U[2 * t + 1]
        if not qk:
            valu[base - 1] = valu[base - 1] + ["s_nop 1"]
    kstep = NQ - 2
    bpos = stepstart[kstep]
    if not last:
        vr_ = v_reads(slot_v, i_par ^ 1)
        kr_ = k_reads(slot_k, i_par)
        vfree = [f for f in free if f < bpos]
        kfree = [f for f in free if f >= bpos]
        extra = len(vr_) - len(vfree)
        pos = list(vfree)
        if extra > 0:
            cand = [x for x in range(1, bpos) if (x % 16) in (5, 9)]
            pos = sorted(pos + cand[:extra])
        assert len(pos) == len(vr_) and len(kfree) == len(kr_)
        for p, r in zip(pos, vr_): mem[p].append(r)
        for p, r in zip(kfree, kr_): mem[p].append(r)
    w = "s_waitcnt lgkmcnt(0)"
    if dma: w = f"s_waitcnt vmcnt({16*(R-2)}) lgkmcnt(0)"
    salu[bpos - 1].append(w)
    salu[bpos].append("s_barrier")
    if dma:
        q = 1
        for a in dma_advance():
            salu[q].append(a); q += 1
        assert q < bpos - 1
        ops = dma_tile_ops()
        n = len(M)
        cand = [x for x in range(bpos + 3, n - 2) if not mem[x]]
        if len(cand) >= 16:
            st = len(cand) / 16
            pa = [cand[int(t * st)] for t in range(16)]
        else:
            pa = [bpos + 2 + (t * (n - bpos - 2)) // 16 for t in range(16)]
        for p, (pre, d) in zip(pa, ops):
            if pre:
                mem[p].append(pre[0]); mem[p].append("s_nop 0") if False else None
                mem[p].pop()
                if mem[p]:
                    mem[p] += [pre[0], "s_nop 0"]
                elif mem[p - 1] and "lds" in mem[p - 1][-1]:
                    salu[p] += [pre[0], "s_nop 0"]
                else:
                    salu[p - 1].append(pre[0])
            mem[p].append(d)
    if tail_salu:
        q = len(M) - len(tail_salu)
        for t, x in enumerate(tail_salu): salu[q + t].append(x)
    emit_gaps(M, salu, mem, valu)

def emit_prescale(u):
    for r in range(Q(u, 0), Q(u, 0) + 16, 2):
        for k in range(2):
            t = T0 + 2 * k
            g.e(f"v_lshlrev_b32 v{t}, 16, v{r+k}")
            g.e(f"v_and_b32 v{t+1}, 0xffff0000, v{r+k}")
        for k in range(2):
            t = T0 + 2 * k
            g.e(f"v_pk_mul_f32 v[{t}:{t+1}], v[{t}:{t+1}], s[{S_C}:{S_C+1}]")
        for k in range(2):
            t = T0 + 2 * k
            g.e(f"v_cvt_pk_bf16_f32 v{r+k}, v{t}, v{t+1}")
QA = 8
def emit_qaddr():
    for s in range(4): g.e(f"v_add_u32 v{QA+s}, s{S_STG}, v{KAD+s}")
def q_reads(u):
    return [f"ds_read_b128 {vr(Q(u,s))}, v{QA+s} offset:{u*4096}" for s in range(4)]

def emit_variant(NQ, dma, tag):
    g.lab(f"L_start_{tag}")
    order = ["K0"] * 2 + ["Q0"] * 4 + ["Q1"] * 4 + ["V0"] * 2 + ["K1"] * 2 + ["Q2"] * 4 + ["V1"] * 2 + ["Q3"] * 4 + ["Q4"] * 4
    if NQ == 6:
        emit_q_dma(); order += ["Q5"] * 4
    if dma:
        g.e(f"s_add_u32 s{S_DOFF}, s{S_HOFF}, {2*TILE}")
        g.e(f"s_add_u32 s{S_D2}, s{S_DOFF}, 4096")
        g.e(f"s_mov_b32 s{S_DCNT}, 2")
        g.e(f"s_mov_b32 s{S_DSLOT}, {2*TILE}")
        g.e(f"s_mov_b32 s{S_OOB}, 0x10000000")
        for t in range(2, R):
            emit_dma_tile_plain(); order += ["T"] * 16
    g.e(f"s_mov_b32 s{S_QP}, {NQ}")
    g.e(f"s_add_u32 s{S_QPO}, s{S_HOFF2}, s{S_ROWB}")
    g.e(f"s_mov_b32 s{S_QPL}, s{S_STG}")
    emit_addr_setup()
    stamp(1)
    emit_qaddr()
    def after(name): return len(order) - 1 - max(i for i, x in enumerate(order) if x == name)
    for u in range(NQ):
        g.e(f"s_waitcnt vmcnt({min(63, after(f'Q{u}'))})")
        for x in q_reads(u): g.e(x)
        if u > 0:
            g.e("s_waitcnt lgkmcnt(4)")
            emit_prescale(u - 1)
    g.e("s_waitcnt lgkmcnt(0)")
    emit_prescale(NQ - 1)
    g.lab(f"L_round_{tag}")
    stamp(2)
    g.e("s_barrier")
    stamp(3)
    for x in k_reads(0, 0): g.e(x)
    for x in v_reads(0, 0)[:7]: g.e(x)
    for u in range(NQ):
        g.e(f"v_mov_b32 v{LB+2*u}, 0"); g.e(f"v_mov_b32 v{LB+2*u+1}, 0")
    g.e("s_waitcnt lgkmcnt(7)")
    g.c("stand-in max pre-pass (first 16 keys)")
    rest = v_reads(0, 0)[7:] + k_reads(1, 1)
    for u in range(NQ):
        for s in range(4):
            d = vr(CB + u * 4)
            g.e(mfma(d, Kf(0, s), vr(Q(u, s)), "0" if s == 0 else d))
            if rest: g.e(rest.pop(0))
    assert not rest
    g.e("s_nop 7")
    for u in range(NQ):
        c = CB + u * 4
        g.e(f"v_max3_f32 v{c}, v{c}, v{c+1}, v{c+2}")
    for u in range(NQ):
        c = CB + u * 4
        g.e(f"v_max_f32 v{c}, v{c}, v{c+3}")
    for sw in ("v_permlane16_swap_b32", "v_permlane32_swap_b32"):
        for u in range(NQ):
            c = CB + u * 4
            g.e(f"v_mov_b32 v{c+1}, v{c}")
        g.e("s_nop 1")
        for u in range(NQ):
            c = CB + u * 4
            g.e(f"{sw} v{c}, v{c+1}")
        g.e("s_nop 1")
        for u in range(NQ):
            c = CB + u * 4
            g.e(f"v_max_f32 v{c}, v{c}, v{c+1}")
    for u in range(NQ):
        c = CB + u * 4
        for k in range(3, -1, -1): g.e(f"v_sub_f32 v{c+k}, 0, v{c}")
    g.e("s_waitcnt lgkmcnt(0)")
    g.e("s_barrier")
    g.c("pipeline prologue: step 0, step 1")
    M = qk_mfmas(0, 0, 0) + qk_mfmas(1, 0, 1)
    ops = dma_tile_ops() if dma else []
    for t, m in enumerate(M):
        g.e(m)
        if ops:
            pre, d = ops[t]
            for p in pre: g.e(p); g.e("s_nop 0")
            g.e(d)
    g.e("s_nop 1")
    U = sm_units(0, 0, 0)
    for t in range(16):
        for x in U[t]: g.e(x)
    stamp(4)
    npass = (21 + R - 1) // R
    exit_ph = 21 % R
    g.e(f"s_mov_b32 s{S_CNT}, {npass}")
    emit_body(NQ, 0, 1 % R, 2 % R, dma, first=True, n0=0)
    g.L.append(".p2align 3")
    g.lab(f"L_loop_{tag}")
    phs = list(range(1, R)) + [0]
    for ph in phs:
        tail = None
        if ph == exit_ph:
            tail = [f"s_sub_u32 s{S_CNT}, s{S_CNT}, 1", f"s_cmp_eq_u32 s{S_CNT}, 0"]
        if ph == phs[-1]:
            tail = [f"s_cmp_eq_u32 s{S_QP}, 0"]
        emit_body(NQ, ph & 1, (ph + 1) % R, (ph + 2) % R, dma, n0=(NQ * ph) & 1, tail_salu=tail)
        if ph == exit_ph: g.e(f"s_cbranch_scc1 L_exit_{tag}")
    g.e(f"s_cbranch_scc1 L_loop_{tag}")
    emit_q_dma()
    g.e(f"s_sub_u32 s{S_QP}, s{S_QP}, 1")
    g.e(f"s_cmp_eq_u32 s{S_QP}, 0")
    g.e(f"s_cbranch_scc1 L_loop_{tag}")
    emit_q_dma()
    g.e(f"s_sub_u32 s{S_QP}, s{S_QP}, 1")
    g.e(f"s_branch L_loop_{tag}")
    g.lab(f"L_exit_{tag}")
    emit_body(NQ, 0, None, None, dma, last=True, n0=(NQ * 22) & 1)
    if dma:
        for x in dma_advance(): g.e(x)
    stamp(5)
    g.c("epilogue")
    g.e(f"s_waitcnt vmcnt({32 if dma else 0})")
    emit_qaddr()
    for u in range(NQ):
        for x in q_reads(u): g.e(x)
    for u in range(NQ):
        l = LB + 2 * u
        g.e(f"v_add_f32 v{l}, v{l}, v{l+1}")
    for sw in ("v_permlane16_swap_b32", "v_permlane32_swap_b32"):
        for u in range(NQ):
            l = LB + 2 * u
            g.e(f"v_mov_b32 v{l+1}, v{l}")
        g.e("s_nop 1")
        for u in range(NQ):
            l = LB + 2 * u
            g.e(f"{sw} v{l}, v{l+1}")
        g.e("s_nop 1")
        for u in range(NQ):
            l = LB + 2 * u
            g.e(f"v_add_f32 v{l}, v{l}, v{l+1}")
    for u in range(NQ):
        l = LB + 2 * u
        g.e(f"v_rcp_f32 v{l}, v{l}")
    g.e(f"v_add_u32 v2, s{S_STG}, v{EA0}")
    for j in range(1, 4): g.e(f"v_xor_b32 v{2+j}, {j<<5}, v2")
    g.e(f"v_add_u32 v6, s{S_STG}, v{DK}")
    g.e(f"v_add_u32 v7, s{S_STG}, v{DK+1}")
    g.e(f"s_add_u32 s{S_T}, s{S_HOFF}, s{S_ROWB}")
    g.e("s_waitcnt lgkmcnt(0)")
    TB = [KB, KB + 12]
    RB = [VB, VB + 16]
    cnt = 0
    def stores(u):
        for i in range(4):
            g.e(f"buffer_store_dwordx4 {vr(RB[u&1]+4*i)}, v{OOFF}, s[{SO}:{SO+3}], s{S_T} offen offset:{i*1024}{NT_O}")
        g.e(f"s_add_u32 s{S_T}, s{S_T}, 4096")
    for u in range(NQ):
        l = LB + 2 * u
        for jp in range(4):
            t = TB[cnt % 2]; cnt += 1
            for k in range(8):
                g.e(f"v_accvgpr_read_b32 v{t+k}, a{O(u, 2*jp)+k}")
            for k in range(0, 8, 2):
                g.e(f"v_pk_mul_f32 v[{t+k}:{t+k+1}], v[{t+k}:{t+k+1}], v[{l}:{l+1}] op_sel_hi:[1,0]")
            for k in range(4):
                g.e(f"v_cvt_pk_bf16_f32 v{t+8+k}, v{t+2*k}, v{t+2*k+1}")
            if jp == 1 and u > 0:
                g.e("s_waitcnt lgkmcnt(2)")
                stores(u - 1)
            for k in range(2):
                j = 2 * jp + k
                g.e(f"ds_write_b64 v{2+(j&3)}, v[{t+8+2*k}:{t+9+2*k}] offset:{u*4096+(j>>2)*128}")
        for i in range(4):
            g.e(f"ds_read_b128 {vr(RB[u&1]+4*i)}, v{6+(i&1)} offset:{u*4096+i*1024}")
    g.e("s_waitcnt lgkmcnt(0)")
    stores(NQ - 1)
    stamp(6)
    g.e(f"s_mov_b32 s{S_HOFF}, s{S_HOFF2}")
    g.e(f"s_add_u32 s{S_ROUND}, s{S_ROUND}, 1")
    g.e(f"s_cmp_ge_u32 s{S_ROUND}, 2")
    g.e(f"s_cbranch_scc1 L_end_{tag}")
    stamp(1)
    for u in range(NQ): emit_prescale(u)
    if dma:
        g.e(f"s_waitcnt vmcnt({min(63, 32 + 4*NQ)})")
    g.e(f"s_branch L_round_{tag}")
    g.lab(f"L_end_{tag}")
    stamp_out()
    g.e("s_endpgm")

def emit_addr_setup():
    for s in range(4):
        g.e(f"v_add_u32 v5, {4*s}, v14")
        g.e("v_xor_b32 v5, v5, v13")
        g.e("v_lshlrev_b32 v5, 4, v5")
        g.e(f"v_lshl_add_u32 v{KAD+s}, v13, 8, v5")
    g.e("v_lshrrev_b32 v6, 2, v12")
    g.e("v_and_b32 v7, 3, v12")
    g.e("v_lshlrev_b32 v8, 8, v6")
    g.e("v_lshl_add_u32 v8, v7, 3, v8")
    g.e(f"v_add_u32 v8, {VBASE}, v8")
    g.e("v_and_b32 v6, 7, v6")
    for j in range(8):
        g.e(f"v_xor_b32 v5, {j}, v6")
        g.e(f"v_lshl_add_u32 v{VAD+j}, v5, 5, v8")
    g.e(f"v_lshlrev_b32 v{OOFF}, 4, v12")
    g.e("v_lshrrev_b32 v5, 1, v14")
    g.e("v_and_b32 v6, 7, v13")
    g.e("v_xor_b32 v5, v5, v6")
    g.e("v_lshlrev_b32 v5, 4, v5")
    g.e("v_lshl_add_u32 v5, v13, 8, v5")
    g.e("v_and_b32 v6, 1, v14")
    g.e(f"v_lshl_add_u32 v{EA0}, v6, 3, v5")
    g.e(f"s_mov_b32 s{S_C}, {hex(f2u(CSCALE))}")
    g.e(f"s_mov_b32 s{S_C+1}, {hex(f2u(CSCALE))}")
    g.e(f"s_mov_b32 s{SO}, s46")
    g.e(f"s_and_b32 s{SO+1}, s47, 0xffff")
    g.e(f"s_mov_b32 s{SO+2}, {TOTAL_BYTES}")
    g.e(f"s_mov_b32 s{SO+3}, 0x20000")

def main():
    hdr = open("cdna_kernels/" + NAME + ".s.ref").read().split("; @launch")[0]
    out = hdr + f"; @launch grid=(256,1,1) block=(256,1,1) lds={LDS_BYTES}\n"
    out += f'''.amdgcn_target "amdgcn-amd-amdhsa--gfx950"
.text
.globl {NAME}_kernel
.p2align 8
.type {NAME}_kernel,@function
{NAME}_kernel:
'''
    if STAMP:
        for i in range(64, 96): g.e(f"s_mov_b32 s{i}, 0")
        g.e("s_memrealtime s[38:39]")
        g.e("s_waitcnt lgkmcnt(0)")
        g.e("s_mov_b32 s94, s38")
        stamp(0, False)
    g.e("s_load_dwordx8 s[40:47], s[0:1], 0")
    g.e("s_cmp_ge_u32 s2, 256")
    g.e("s_cbranch_scc1 L_done")
    g.e("v_lshrrev_b32 v1, 6, v0")
    g.e("v_and_b32 v12, 63, v0")
    g.e(f"v_readfirstlane_b32 s{S_WAVE}, v1")
    g.e("v_and_b32 v13, 15, v12")
    g.e("v_lshrrev_b32 v14, 4, v12")
    g.e("s_and_b32 s3, s2, 7")
    g.e("s_lshr_b32 s4, s2, 3")
    g.e("s_lshr_b32 s5, s4, 1")
    g.e("s_and_b32 s4, s4, 1")
    g.e("s_lshl_b32 s3, s3, 5")
    g.e("s_add_u32 s3, s3, s5")
    g.e(f"s_mul_i32 s{S_HOFF}, s3, {HEAD_BYTES}")
    g.e(f"s_add_u32 s{S_HOFF2}, s{S_HOFF}, {16*HEAD_BYTES}")
    g.e(f"s_mov_b32 s{S_ROUND}, 0")
    g.e(f"s_mul_i32 s4, s4, {368*256}")
    g.e(f"s_mul_i32 s5, s{S_WAVE}, {96*256}")
    g.e(f"s_add_u32 s{S_ROWB}, s4, s5")
    g.e(f"s_add_u32 s{S_STG}, s5, {STAGE}")
    g.e(f"s_add_u32 s{S_QPO}, s{S_HOFF}, s{S_ROWB}")
    g.e(f"s_mov_b32 s{S_QPL}, s{S_STG}")
    g.e("v_lshlrev_b32 v15, 8, v14")
    for i in range(4):
        g.e(f"v_add_u32 v5, {4*i}, v14")
        g.e("v_xor_b32 v5, v5, v13")
        g.e(f"v_lshl_add_u32 v{DK+i}, v5, 4, v15")
    for i in range(2):
        g.e(f"v_lshl_add_u32 v5, v14, 1, {8*i}")
        g.e("v_xor_b32 v5, v5, v13")
        g.e(f"v_lshl_add_u32 v{DV+i}, v5, 4, v15")
    g.e("v_lshl_add_u32 v5, v1, 2, v14")
    g.e("v_xor_b32 v6, v5, v13")
    g.e("v_lshl_add_u32 v2, v6, 4, v15")
    g.e("v_and_b32 v5, 7, v5")
    g.e("v_lshlrev_b32 v5, 1, v5")
    g.e("v_xor_b32 v6, v5, v13")
    g.e("v_lshl_add_u32 v3, v6, 4, v15")
    g.e(f"s_lshl_b32 s6, s{S_WAVE}, 10")
    g.e(f"s_add_u32 s7, s{S_HOFF}, s6")
    g.e("s_waitcnt lgkmcnt(0)")
    for i, srd in ((1, SK), (0, SQ), (2, SV)):
        g.e(f"s_mov_b32 s{srd}, s{40+2*i}")
        g.e(f"s_and_b32 s{srd+1}, s{41+2*i}, 0xffff")
        g.e(f"s_mov_b32 s{srd+2}, {TOTAL_BYTES}")
        g.e(f"s_mov_b32 s{srd+3}, 0x20000")
    def coop(which, t):
        srd = SK if which == 0 else SV
        for hh in range(2):
            off = t * TILE + hh * 4096
            g.e(f"s_add_u32 m0, s6, {off + (VBASE if which else 0)}")
            g.e(f"s_add_u32 s{S_T}, s7, {off}")
            g.e(f"buffer_load_dwordx4 v{2+which}, s[{srd}:{srd+3}], s{S_T} offen{NT_KV} lds")
    coop(0, 0); emit_q_dma(); emit_q_dma(); coop(1, 0); coop(0, 1); emit_q_dma(); coop(1, 1); emit_q_dma(); emit_q_dma()
    g.e(f"s_cmp_eq_u32 s{S_WAVE}, 3")
    g.e("s_cbranch_scc1 L_start_w3")
    emit_variant(6, False, "w0")
    emit_variant(5, True, "w3")
    g.lab("L_done")
    g.e("s_endpgm")
    out += "\n".join(g.L) + "\n"
    out += f'''.section .rodata,"a"
.p2align 6
.amdhsa_kernel {NAME}_kernel
  .amdhsa_next_free_vgpr 512
  .amdhsa_next_free_sgpr 96
  .amdhsa_accum_offset 256
  .amdhsa_group_segment_fixed_size 0
  .amdhsa_kernarg_size 48
  .amdhsa_user_sgpr_count 2
  .amdhsa_user_sgpr_kernarg_segment_ptr 1
  .amdhsa_system_sgpr_workgroup_id_x 1
.end_amdhsa_kernel
'''
    fn = sys.argv[1] if len(sys.argv) > 1 else "cdna_kernels/" + NAME + ".s"
    open(fn, "w").write(out)
main()
```

```python
import sys, os, struct
NAME = "standalone__gqa_softmax__near_ridge"
R = int(os.environ.get("R", "4"))
TILE = 8192
VBASE = R * TILE
STAGE = 2 * R * TILE
LDS_BYTES = STAGE + 23 * 4096
assert LDS_BYTES <= 163840
HEAD_BYTES = 736 * 256
TOTAL_BYTES = 256 * HEAD_BYTES
STAMP = int(os.environ.get("STAMP", "0"))
NT_KV = os.environ.get("NT_KV", "")
NT_Q = os.environ.get("NT_Q", "")
NT_O = os.environ.get("NT_O", "")
def f2u(x): return struct.unpack("<I", struct.pack("<f", x))[0]
CSCALE = 1.4426950408889634 / (128 ** 0.5)

def O(u, j): return (u * 8 + j) * 4
KA = 192; VA = 224
QB = 16; KB = 112; VB = 144; SB = 176; PB = 192; CB = 200; LB = 224
KAD = 236; VAD = 240
DK = 248
DV = 252
OOFF = 254
EA0 = 255
T0 = 2
def Q(u, s): return QB + (u * 4 + s) * 4
def vr(b, n=4): return f"v[{b}:{b+n-1}]"
def ar(b, n=4): return f"a[{b}:{b+n-1}]"
def Kf(par, f, n=4, o=0): return ar(KA + f * 4 + o, n) if par == 0 else vr(KB + f * 4 + o, n)
def Vf(par, j, n=4, o=0): return ar(VA + j * 4 + o, n) if par == 0 else vr(VB + j * 4 + o, n)
SQ, SK, SV, SO = 8, 12, 16, 20
S_WAVE = 24
S_HOFF = 25
S_HOFF2 = 26
S_ROUND = 27
S_CNT = 28
S_T = 29
S_C = 30
S_DOFF = 32; S_DCNT = 33; S_DSLOT = 34; S_D2 = 35
S_T2 = 36
S_OOB = 37
S_ROWB = 50
S_STG = 51
S_QP = 52
S_QPO = 53
S_QPL = 54
S_M0S = 55

class G:
    def __init__(self): self.L = []
    def e(self, s): self.L.append("    " + s)
    def lab(self, s): self.L.append(s + ":")
    def c(self, s): self.L.append("    ; " + s)
g = G()

NSPIN = 0
def stamp(i, per_round=True):
    if not STAMP: return
    g.e("s_memrealtime s[38:39]" if STAMP == 3 else "s_memtime s[38:39]")
    g.e("s_waitcnt lgkmcnt(0)")
    if per_round:
        g.e(f"s_cmp_eq_u32 s{S_ROUND}, 0")
        g.e(f"s_cselect_b32 s{64+i}, s38, s{64+i}")
        g.e(f"s_cselect_b32 s{64+i+6}, s{64+i+6}, s38")
    else:
        g.e(f"s_mov_b32 s{64+i}, s38")
def stamp_out():
    if not STAMP: return
    g.e("s_waitcnt vmcnt(0)")
    stamp(13, False)
    if STAMP == 3:
        ph = int(os.environ.get("PH", "0"))
        global NSPIN
        NSPIN += 1
        g.e(f"s_add_u32 s3, s{64+ph}, 10000")
        g.lab(f"L_spin{NSPIN}")
        g.e("s_sleep 2")
        g.e("s_memrealtime s[38:39]")
        g.e("s_waitcnt lgkmcnt(0)")
        g.e("s_sub_u32 s4, s3, s38")
        g.e("s_cmp_gt_i32 s4, 0")
        g.e(f"s_cbranch_scc1 L_spin{NSPIN}")
        return
    g.e("s_memrealtime s[38:39]")
    g.e("s_load_dwordx2 s[48:49], s[0:1], 40")
    g.e("s_waitcnt lgkmcnt(0)")
    g.e("s_mov_b32 s95, s38")
    if STAMP == 2:
        g.e("s_load_dwordx2 s[48:49], s[0:1], 32")
        g.e("s_waitcnt lgkmcnt(0)")
        g.e("s_lshl_b32 s3, s2, 2")
        g.e(f"s_add_u32 s3, s3, s{S_WAVE}")
        g.e("s_cmp_lg_u32 s3, 400")
        g.e("s_cbranch_scc1 L_done")
        g.e("v_mov_b32 v2, 0")
        g.e("s_mov_b64 exec, 1")
        g.e("s_sub_u32 s95, s95, s94")
        for i in range(1, 14):
            g.e(f"s_sub_u32 s3, s{64+i}, s64")
            g.e(f"v_mov_b32 v3, s3")
            g.e(f"global_store_dword v2, v3, s[48:49] offset:{i*4}")
        g.e(f"v_mov_b32 v3, s95")
        g.e(f"global_store_dword v2, v3, s[48:49] offset:0")
        return
    g.e("s_lshl_b32 s3, s2, 2")
    g.e(f"s_add_u32 s3, s3, s{S_WAVE}")
    g.e("s_lshl_b32 s3, s3, 7")
    g.e("v_mov_b32 v2, s3")
    g.e("s_mov_b64 exec, 1")
    for i in list(range(17)) + [30, 31]:
        g.e(f"v_mov_b32 v3, s{64+i}")
        g.e(f"global_store_dword v2, v3, s[48:49] offset:{i*4}")

def mfma(d, a, b, c): return f"v_mfma_f32_16x16x32_bf16 {d}, {a}, {b}, {c}"
def qk_mfmas(u, par, sbuf):
    M = []
    for s in range(4):
        for kt in range(2):
            d = vr(SB + sbuf * 8 + kt * 4)
            c = vr(CB + u * 4) if s == 0 else d
            M.append(mfma(d, Kf(par, kt * 4 + s), vr(Q(u, s)), c))
    return M
def pv_mfmas(u, par, pbuf, first):
    return [mfma(ar(O(u, j)), Vf(par, j), vr(PB + pbuf * 4), "0" if first else ar(O(u, j))) for j in range(8)]
def sm_units(u, sbuf, pbuf):
    s = SB + sbuf * 8; p = PB + pbuf * 4
    E = lambda i: f"v_exp_f32 v{s+i}, v{s+i}"
    A = lambda i: f"v_add_f32 v{LB+u*2+(i&1)}, v{LB+u*2+(i&1)}, v{s+i}"
    C = lambda i: f"v_cvt_pk_bf16_f32 v{p+i}, v{s+2*i}, v{s+2*i+1}"
    return [[], [E(0)], [], [E(1)], [E(2)], [A(0), A(1)], [E(3)], [C(0), A(2)], [E(4)], [A(3), C(1)],
            [E(5)], [E(6)], [A(4), A(5)], [E(7)], [C(2), A(6)], [A(7), C(3)]]
FREE = [0, 0, 2, 2]
def k_reads(slot, par):
    return [f"ds_read_b128 {Kf(par, kt*4+s)}, v{KAD+s} offset:{slot*TILE+kt*4096}" for s in range(4) for kt in range(2)]
def v_reads(slot, par):
    return [f"ds_read_b64_tr_b16 {Vf(par, j, 2, 2*h)}, v{VAD+j} offset:{slot*TILE+h*4096}" for j in range(8) for h in range(2)]

def dma_tile_ops():
    ops = []
    for which in range(2):
        srd = SK if which == 0 else SV
        for hh in range(2):
            for i in range(4):
                pre = []
                if i == 0:
                    off = (VBASE if which else 0) + hh * 4096
                    pre.append(f"s_add_u32 m0, s{S_DSLOT}, {off}")
                so = S_DOFF if hh == 0 else S_D2
                va = DK + i if which == 0 else DV + (i & 1)
                ops.append((pre, f"buffer_load_dwordx4 v{va}, s[{srd}:{srd+3}], s{so} offen offset:{i*1024}{NT_KV} lds"))
    return ops
def dma_advance():
    return [
        f"s_add_u32 s{S_DCNT}, s{S_DCNT}, 1",
        f"s_add_u32 s{S_DOFF}, s{S_DOFF}, {TILE}",
        f"s_cmp_eq_u32 s{S_DCNT}, 24", f"s_cselect_b32 s{S_DOFF}, s{S_HOFF2}, s{S_DOFF}",
        f"s_cmp_eq_u32 s{S_DCNT}, 23", f"s_cselect_b32 s{S_DOFF}, s{S_OOB}, s{S_DOFF}",
        f"s_cmp_eq_u32 s{S_DCNT}, 47", f"s_cselect_b32 s{S_DOFF}, s{S_OOB}, s{S_DOFF}",
        f"s_add_u32 s{S_D2}, s{S_DOFF}, 4096",
        f"s_add_u32 s{S_DSLOT}, s{S_DSLOT}, {TILE}",
        f"s_cmp_eq_u32 s{S_DSLOT}, {R*TILE}", f"s_cselect_b32 s{S_DSLOT}, 0, s{S_DSLOT}",
    ]
def emit_dma_tile_plain(advance=True):
    for pre, d in dma_tile_ops():
        for p in pre: g.e(p); g.e("s_nop 0")
        g.e(d)
    if advance:
        for x in dma_advance(): g.e(x)
def emit_q_dma():
    g.e(f"s_mov_b32 m0, s{S_QPL}")
    g.e(f"s_add_u32 s{S_QPL}, s{S_QPL}, 4096")
    for i in range(4):
        g.e(f"buffer_load_dwordx4 v{DK+i}, s[{SQ}:{SQ+3}], s{S_QPO} offen offset:{i*1024}{NT_Q} lds")
    g.e(f"s_add_u32 s{S_QPO}, s{S_QPO}, 4096")

def emit_gaps(M, salu, mem, valu):
    for i, m in enumerate(M):
        g.e(m)
        for x in salu[i]: g.e(x)
        for x in mem[i]: g.e(x)
        for x in valu[i]: g.e(x)

def emit_body(NQ, i_par, slot_v, slot_k, dma, first=False, last=False, tail_salu=None, n0=0):
    M = []; salu = []; mem = []; valu = []
    free = []; stepstart = []
    for k in range(NQ):
        n = n0 + 2 + k
        uq = k + 2
        if uq < NQ: qk = qk_mfmas(uq, i_par, n & 1)
        elif not last: qk = qk_mfmas(uq - NQ, i_par ^ 1, n & 1)
        else: qk = []
        us = k + 1
        do_sm = (us < NQ) or not last
        us %= NQ
        pv = pv_mfmas(k, i_par, n & 1, first)
        ms = qk + pv
        base = len(M)
        stepstart.append(base)
        M += ms
        for _ in ms: salu.append([]); mem.append([]); valu.append([])
        if do_sm:
            U = sm_units(us, (n - 1) & 1, (n - 1) & 1)
            if len(ms) == 16:
                for t in range(16): valu[base + t] = list(U[t])
                free += [base + f for f in FREE]
            else:
                for t in range(8): valu[base + t] = U[2 * t] + U[2 * t + 1]
        if not qk:
            valu[base - 1] = valu[base - 1] + ["s_nop 1"]
    kstep = NQ - 2
    bpos = stepstart[kstep]
    if not last:
        vr_ = v_reads(slot_v, i_par ^ 1)
        kr_ = k_reads(slot_k, i_par)
        vfree = [f for f in free if f < bpos]
        kfree = [f for f in free if f >= bpos]
        extra = len(vr_) - len(vfree)
        pos = list(vfree)
        if extra > 0:
            cand = [x for x in range(1, bpos) if (x % 16) in (5, 9)]
            pos = sorted(pos + cand[:extra])
        assert len(pos) == len(vr_) and len(kfree) == len(kr_)
        for p, r in zip(pos, vr_): mem[p].append(r)
        for p, r in zip(kfree, kr_): mem[p].append(r)
    w = "s_waitcnt lgkmcnt(0)"
    if dma: w = f"s_waitcnt vmcnt({16*(R-2)}) lgkmcnt(0)"
    salu[bpos - 1].append(w)
    salu[bpos].append("s_barrier")
    if dma:
        q = 1
        for a in dma_advance():
            salu[q].append(a); q += 1
        assert q < bpos - 1
        ops = dma_tile_ops()
        n = len(M)
        cand = [x for x in range(bpos + 3, n - 2) if not mem[x]]
        if len(cand) >= 16:
            st = len(cand) / 16
            pa = [cand[int(t * st)] for t in range(16)]
        else:
            pa = [bpos + 2 + (t * (n - bpos - 2)) // 16 for t in range(16)]
        for p, (pre, d) in zip(pa, ops):
            if pre:
                mem[p].append(pre[0]); mem[p].append("s_nop 0") if False else None
                mem[p].pop()
                if mem[p]:
                    mem[p] += [pre[0], "s_nop 0"]
                elif mem[p - 1] and "lds" in mem[p - 1][-1]:
                    salu[p] += [pre[0], "s_nop 0"]
                else:
                    salu[p - 1].append(pre[0])
            mem[p].append(d)
    if tail_salu:
        q = len(M) - len(tail_salu)
        for t, x in enumerate(tail_salu): salu[q + t].append(x)
    emit_gaps(M, salu, mem, valu)

def emit_prescale(u):
    for r in range(Q(u, 0), Q(u, 0) + 16, 2):
        for k in range(2):
            t = T0 + 2 * k
            g.e(f"v_lshlrev_b32 v{t}, 16, v{r+k}")
            g.e(f"v_and_b32 v{t+1}, 0xffff0000, v{r+k}")
        for k in range(2):
            t = T0 + 2 * k
            g.e(f"v_pk_mul_f32 v[{t}:{t+1}], v[{t}:{t+1}], s[{S_C}:{S_C+1}]")
        for k in range(2):
            t = T0 + 2 * k
            g.e(f"v_cvt_pk_bf16_f32 v{r+k}, v{t}, v{t+1}")
QA = 8
def emit_qaddr():
    for s in range(4): g.e(f"v_add_u32 v{QA+s}, s{S_STG}, v{KAD+s}")
def q_reads(u):
    return [f"ds_read_b128 {vr(Q(u,s))}, v{QA+s} offset:{u*4096}" for s in range(4)]

def emit_variant(NQ, dma, tag):
    g.lab(f"L_start_{tag}")
    order = ["K0"] * 2 + ["Q0"] * 4 + ["Q1"] * 4 + ["V0"] * 2 + ["K1"] * 2 + ["Q2"] * 4 + ["V1"] * 2 + ["Q3"] * 4 + ["Q4"] * 4
    if NQ == 6:
        emit_q_dma(); order += ["Q5"] * 4
    if dma:
        g.e(f"s_add_u32 s{S_DOFF}, s{S_HOFF}, {2*TILE}")
        g.e(f"s_add_u32 s{S_D2}, s{S_DOFF}, 4096")
        g.e(f"s_mov_b32 s{S_DCNT}, 2")
        g.e(f"s_mov_b32 s{S_DSLOT}, {2*TILE}")
        g.e(f"s_mov_b32 s{S_OOB}, 0x10000000")
        for t in range(2, R):
            emit_dma_tile_plain(); order += ["T"] * 16
    g.e(f"s_mov_b32 s{S_QP}, {NQ}")
    g.e(f"s_add_u32 s{S_QPO}, s{S_HOFF2}, s{S_ROWB}")
    g.e(f"s_mov_b32 s{S_QPL}, s{S_STG}")
    emit_addr_setup()
    stamp(1)
    emit_qaddr()
    def after(name): return len(order) - 1 - max(i for i, x in enumerate(order) if x == name)
    for u in range(NQ):
        g.e(f"s_waitcnt vmcnt({min(63, after(f'Q{u}'))})")
        if u == 0: stamp(16, False)
        for x in q_reads(u): g.e(x)
        if u > 0:
            g.e("s_waitcnt lgkmcnt(4)")
            emit_prescale(u - 1)
    g.e("s_waitcnt lgkmcnt(0)")
    emit_prescale(NQ - 1)
    g.lab(f"L_round_{tag}")
    stamp(2)
    g.e("s_barrier")
    stamp(3)
    for x in k_reads(0, 0): g.e(x)
    for x in v_reads(0, 0)[:7]: g.e(x)
    for u in range(NQ):
        g.e(f"v_mov_b32 v{LB+2*u}, 0"); g.e(f"v_mov_b32 v{LB+2*u+1}, 0")
    g.e("s_waitcnt lgkmcnt(7)")
    g.c("stand-in max pre-pass (first 16 keys)")
    rest = v_reads(0, 0)[7:] + k_reads(1, 1)
    for u in range(NQ):
        for s in range(4):
            d = vr(CB + u * 4)
            g.e(mfma(d, Kf(0, s), vr(Q(u, s)), "0" if s == 0 else d))
            if rest: g.e(rest.pop(0))
    assert not rest
    g.e("s_nop 7")
    for u in range(NQ):
        c = CB + u * 4
        g.e(f"v_max3_f32 v{c}, v{c}, v{c+1}, v{c+2}")
    for u in range(NQ):
        c = CB + u * 4
        g.e(f"v_max_f32 v{c}, v{c}, v{c+3}")
    for sw in ("v_permlane16_swap_b32", "v_permlane32_swap_b32"):
        for u in range(NQ):
            c = CB + u * 4
            g.e(f"v_mov_b32 v{c+1}, v{c}")
        g.e("s_nop 1")
        for u in range(NQ):
            c = CB + u * 4
            g.e(f"{sw} v{c}, v{c+1}")
        g.e("s_nop 1")
        for u in range(NQ):
            c = CB + u * 4
            g.e(f"v_max_f32 v{c}, v{c}, v{c+1}")
    for u in range(NQ):
        c = CB + u * 4
        for k in range(3, -1, -1): g.e(f"v_sub_f32 v{c+k}, 0, v{c}")
    g.e("s_waitcnt lgkmcnt(0)")
    g.e("s_barrier")
    g.c("pipeline prologue: step 0, step 1")
    M = qk_mfmas(0, 0, 0) + qk_mfmas(1, 0, 1)
    ops = dma_tile_ops() if dma else []
    for t, m in enumerate(M):
        g.e(m)
        if ops:
            pre, d = ops[t]
            for p in pre: g.e(p); g.e("s_nop 0")
            g.e(d)
    g.e("s_nop 1")
    U = sm_units(0, 0, 0)
    for t in range(16):
        for x in U[t]: g.e(x)
    stamp(4)
    npass = (21 + R - 1) // R
    exit_ph = 21 % R
    g.e(f"s_mov_b32 s{S_CNT}, {npass}")
    emit_body(NQ, 0, 1 % R, 2 % R, dma, first=True, n0=0)
    g.L.append(".p2align 3")
    g.lab(f"L_loop_{tag}")
    phs = list(range(1, R)) + [0]
    for ph in phs:
        tail = None
        if ph == exit_ph:
            tail = [f"s_sub_u32 s{S_CNT}, s{S_CNT}, 1", f"s_cmp_eq_u32 s{S_CNT}, 0"]
        if ph == phs[-1]:
            tail = [f"s_cmp_eq_u32 s{S_QP}, 0"]
        emit_body(NQ, ph & 1, (ph + 1) % R, (ph + 2) % R, dma, n0=(NQ * ph) & 1, tail_salu=tail)
        if ph == exit_ph: g.e(f"s_cbranch_scc1 L_exit_{tag}")
    g.e(f"s_cbranch_scc1 L_loop_{tag}")
    emit_q_dma()
    g.e(f"s_sub_u32 s{S_QP}, s{S_QP}, 1")
    g.e(f"s_cmp_eq_u32 s{S_QP}, 0")
    g.e(f"s_cbranch_scc1 L_loop_{tag}")
    emit_q_dma()
    g.e(f"s_sub_u32 s{S_QP}, s{S_QP}, 1")
    g.e(f"s_branch L_loop_{tag}")
    g.lab(f"L_exit_{tag}")
    emit_body(NQ, 0, None, None, dma, last=True, n0=(NQ * 22) & 1)
    if dma:
        for x in dma_advance(): g.e(x)
    stamp(5)
    g.c("epilogue")
    g.e(f"s_waitcnt vmcnt({32 if dma else 0})")
    emit_qaddr()
    for u in range(NQ):
        for x in q_reads(u): g.e(x)
    for u in range(NQ):
        l = LB + 2 * u
        g.e(f"v_add_f32 v{l}, v{l}, v{l+1}")
    for sw in ("v_permlane16_swap_b32", "v_permlane32_swap_b32"):
        for u in range(NQ):
            l = LB + 2 * u
            g.e(f"v_mov_b32 v{l+1}, v{l}")
        g.e("s_nop 1")
        for u in range(NQ):
            l = LB + 2 * u
            g.e(f"{sw} v{l}, v{l+1}")
        g.e("s_nop 1")
        for u in range(NQ):
            l = LB + 2 * u
            g.e(f"v_add_f32 v{l}, v{l}, v{l+1}")
    for u in range(NQ):
        l = LB + 2 * u
        g.e(f"v_rcp_f32 v{l}, v{l}")
    g.e(f"v_add_u32 v2, s{S_STG}, v{EA0}")
    for j in range(1, 4): g.e(f"v_xor_b32 v{2+j}, {j<<5}, v2")
    g.e(f"v_add_u32 v6, s{S_STG}, v{DK}")
    g.e(f"v_add_u32 v7, s{S_STG}, v{DK+1}")
    g.e(f"s_add_u32 s{S_T}, s{S_HOFF}, s{S_ROWB}")
    g.e("s_waitcnt lgkmcnt(0)")
    TB = [KB, KB + 12]
    RB = [VB, VB + 16]
    cnt = 0
    def stores(u):
        for i in range(4):
            g.e(f"buffer_store_dwordx4 {vr(RB[u&1]+4*i)}, v{OOFF}, s[{SO}:{SO+3}], s{S_T} offen offset:{i*1024}{NT_O}")
        g.e(f"s_add_u32 s{S_T}, s{S_T}, 4096")
    for u in range(NQ):
        l = LB + 2 * u
        for jp in range(4):
            t = TB[cnt % 2]; cnt += 1
            for k in range(8):
                g.e(f"v_accvgpr_read_b32 v{t+k}, a{O(u, 2*jp)+k}")
            for k in range(0, 8, 2):
                g.e(f"v_pk_mul_f32 v[{t+k}:{t+k+1}], v[{t+k}:{t+k+1}], v[{l}:{l+1}] op_sel_hi:[1,0]")
            for k in range(4):
                g.e(f"v_cvt_pk_bf16_f32 v{t+8+k}, v{t+2*k}, v{t+2*k+1}")
            if jp == 1 and u > 0:
                g.e("s_waitcnt lgkmcnt(2)")
                stores(u - 1)
            for k in range(2):
                j = 2 * jp + k
                g.e(f"ds_write_b64 v{2+(j&3)}, v[{t+8+2*k}:{t+9+2*k}] offset:{u*4096+(j>>2)*128}")
        for i in range(4):
            g.e(f"ds_read_b128 {vr(RB[u&1]+4*i)}, v{6+(i&1)} offset:{u*4096+i*1024}")
    g.e("s_waitcnt lgkmcnt(0)")
    stores(NQ - 1)
    stamp(6)
    g.e(f"s_mov_b32 s{S_HOFF}, s{S_HOFF2}")
    g.e(f"s_add_u32 s{S_ROUND}, s{S_ROUND}, 1")
    g.e(f"s_cmp_ge_u32 s{S_ROUND}, 2")
    g.e(f"s_cbranch_scc1 L_end_{tag}")
    stamp(1)
    for u in range(NQ): emit_prescale(u)
    if dma:
        g.e(f"s_waitcnt vmcnt({min(63, 32 + 4*NQ)})")
    g.e(f"s_branch L_round_{tag}")
    g.lab(f"L_end_{tag}")
    stamp_out()
    g.e("s_endpgm")

def emit_addr_setup():
    for s in range(4):
        g.e(f"v_add_u32 v5, {4*s}, v14")
        g.e("v_xor_b32 v5, v5, v13")
        g.e("v_lshlrev_b32 v5, 4, v5")
        g.e(f"v_lshl_add_u32 v{KAD+s}, v13, 8, v5")
    g.e("v_lshrrev_b32 v6, 2, v12")
    g.e("v_and_b32 v7, 3, v12")
    g.e("v_lshlrev_b32 v8, 8, v6")
    g.e("v_lshl_add_u32 v8, v7, 3, v8")
    g.e(f"v_add_u32 v8, {VBASE}, v8")
    g.e("v_and_b32 v6, 7, v6")
    for j in range(8):
        g.e(f"v_xor_b32 v5, {j}, v6")
        g.e(f"v_lshl_add_u32 v{VAD+j}, v5, 5, v8")
    g.e(f"v_lshlrev_b32 v{OOFF}, 4, v12")
    g.e("v_lshrrev_b32 v5, 1, v14")
    g.e("v_and_b32 v6, 7, v13")
    g.e("v_xor_b32 v5, v5, v6")
    g.e("v_lshlrev_b32 v5, 4, v5")
    g.e("v_lshl_add_u32 v5, v13, 8, v5")
    g.e("v_and_b32 v6, 1, v14")
    g.e(f"v_lshl_add_u32 v{EA0}, v6, 3, v5")
    g.e(f"s_mov_b32 s{S_C}, {hex(f2u(CSCALE))}")
    g.e(f"s_mov_b32 s{S_C+1}, {hex(f2u(CSCALE))}")
    g.e(f"s_mov_b32 s{SO}, s46")
    g.e(f"s_and_b32 s{SO+1}, s47, 0xffff")
    g.e(f"s_mov_b32 s{SO+2}, {TOTAL_BYTES}")
    g.e(f"s_mov_b32 s{SO+3}, 0x20000")

def main():
    hdr = open("cdna_kernels/" + NAME + ".s.ref").read().split("; @launch")[0]
    out = hdr + f"; @launch grid=(256,1,1) block=(256,1,1) lds={LDS_BYTES}\n"
    out += f'''.amdgcn_target "amdgcn-amd-amdhsa--gfx950"
.text
.globl {NAME}_kernel
.p2align 8
.type {NAME}_kernel,@function
{NAME}_kernel:
'''
    if STAMP:
        if STAMP != 3:
            g.e("s_memrealtime s[38:39]")
            g.e("s_waitcnt lgkmcnt(0)")
            g.e("s_mov_b32 s94, s38")
        stamp(0, False)
    g.e("s_load_dwordx8 s[40:47], s[0:1], 0")
    g.e("s_cmp_ge_u32 s2, 256")
    g.e("s_cbranch_scc1 L_done")
    g.e("v_lshrrev_b32 v1, 6, v0")
    g.e("v_and_b32 v12, 63, v0")
    g.e(f"v_readfirstlane_b32 s{S_WAVE}, v1")
    g.e("v_and_b32 v13, 15, v12")
    g.e("v_lshrrev_b32 v14, 4, v12")
    g.e("s_and_b32 s3, s2, 7")
    g.e("s_lshr_b32 s4, s2, 3")
    g.e("s_lshr_b32 s5, s4, 1")
    g.e("s_and_b32 s4, s4, 1")
    g.e("s_lshl_b32 s3, s3, 5")
    g.e("s_add_u32 s3, s3, s5")
    g.e(f"s_mul_i32 s{S_HOFF}, s3, {HEAD_BYTES}")
    g.e(f"s_add_u32 s{S_HOFF2}, s{S_HOFF}, {16*HEAD_BYTES}")
    g.e(f"s_mov_b32 s{S_ROUND}, 0")
    g.e(f"s_mul_i32 s4, s4, {368*256}")
    g.e(f"s_mul_i32 s5, s{S_WAVE}, {96*256}")
    g.e(f"s_add_u32 s{S_ROWB}, s4, s5")
    g.e(f"s_add_u32 s{S_STG}, s5, {STAGE}")
    g.e(f"s_add_u32 s{S_QPO}, s{S_HOFF}, s{S_ROWB}")
    g.e(f"s_mov_b32 s{S_QPL}, s{S_STG}")
    g.e("v_lshlrev_b32 v15, 8, v14")
    for i in range(4):
        g.e(f"v_add_u32 v5, {4*i}, v14")
        g.e("v_xor_b32 v5, v5, v13")
        g.e(f"v_lshl_add_u32 v{DK+i}, v5, 4, v15")
    for i in range(2):
        g.e(f"v_lshl_add_u32 v5, v14, 1, {8*i}")
        g.e("v_xor_b32 v5, v5, v13")
        g.e(f"v_lshl_add_u32 v{DV+i}, v5, 4, v15")
    g.e("v_lshl_add_u32 v5, v1, 2, v14")
    g.e("v_xor_b32 v6, v5, v13")
    g.e("v_lshl_add_u32 v2, v6, 4, v15")
    g.e("v_and_b32 v5, 7, v5")
    g.e("v_lshlrev_b32 v5, 1, v5")
    g.e("v_xor_b32 v6, v5, v13")
    g.e("v_lshl_add_u32 v3, v6, 4, v15")
    g.e(f"s_lshl_b32 s6, s{S_WAVE}, 10")
    g.e(f"s_add_u32 s7, s{S_HOFF}, s6")
    g.e("s_waitcnt lgkmcnt(0)")
    stamp(14, False)
    for i, srd in ((1, SK), (0, SQ), (2, SV)):
        g.e(f"s_mov_b32 s{srd}, s{40+2*i}")
        g.e(f"s_and_b32 s{srd+1}, s{41+2*i}, 0xffff")
        g.e(f"s_mov_b32 s{srd+2}, {TOTAL_BYTES}")
        g.e(f"s_mov_b32 s{srd+3}, 0x20000")
    def coop(which, t):
        srd = SK if which == 0 else SV
        for hh in range(2):
            off = t * TILE + hh * 4096
            g.e(f"s_add_u32 m0, s6, {off + (VBASE if which else 0)}")
            g.e(f"s_add_u32 s{S_T}, s7, {off}")
            g.e(f"buffer_load_dwordx4 v{2+which}, s[{srd}:{srd+3}], s{S_T} offen{NT_KV} lds")
    coop(0, 0); emit_q_dma(); stamp(15, False); emit_q_dma(); coop(1, 0); coop(0, 1); emit_q_dma(); coop(1, 1); emit_q_dma(); emit_q_dma()
    g.e(f"s_cmp_eq_u32 s{S_WAVE}, 3")
    g.e("s_cbranch_scc1 L_start_w3")
    emit_variant(6, False, "w0")
    emit_variant(5, True, "w3")
    g.lab("L_done")
    g.e("s_endpgm")
    out += "\n".join(g.L) + "\n"
    out += f'''.section .rodata,"a"
.p2align 6
.amdhsa_kernel {NAME}_kernel
  .amdhsa_next_free_vgpr 512
  .amdhsa_next_free_sgpr 96
  .amdhsa_accum_offset 256
  .amdhsa_group_segment_fixed_size 0
  .amdhsa_kernarg_size 48
  .amdhsa_user_sgpr_count 2
  .amdhsa_user_sgpr_kernarg_segment_ptr 1
  .amdhsa_system_sgpr_workgroup_id_x 1
.end_amdhsa_kernel
'''
    fn = sys.argv[1] if len(sys.argv) > 1 else "cdna_kernels/" + NAME + ".s"
    open(fn, "w").write(out)
main()
```

```python
import sys, os, struct
NAME = "standalone__gqa_softmax__near_ridge"
R = 4
TILE = 8192
VBASE = R * TILE
STAGE = 2 * R * TILE
LDS_BYTES = STAGE + 23 * 4096
HEAD_BYTES = 736 * 256
TOTAL_BYTES = 256 * HEAD_BYTES
E = os.environ.get
STAMP = int(E("STAMP", "0"))
NT_KV = E("NT_KV", " nt"); NT_Q = E("NT_Q", " nt"); NT_O0 = E("NT_O0", " nt"); NT_O1 = E("NT_O1", " nt")
X = E("X", "pf,pf0").split(",")
def f2u(x): return struct.unpack("<I", struct.pack("<f", x))[0]
CSCALE = 1.4426950408889634 / (128 ** 0.5)

CUR_NQ = [6]
OVB = 112
def Oisv(u): return u >= CUR_NQ[0] - 2
def Obase(u): return OVB + (u - (CUR_NQ[0] - 2)) * 32 if Oisv(u) else u * 32
def Or(u, off, n=4):
    b = Obase(u) + off
    return (f"v[{b}:{b+n-1}]" if Oisv(u) else f"a[{b}:{b+n-1}]")
KA = 128; VA = 192
QB = 16; SB = 176; PB = 192; CB = 200; LB = 224
KAD = 236; VAD = 240
DK = 248; DV = 252; OOFF = 254
EW = 2
ER = 6
QA = 8
PT = 12
CK_ = 255
CV_ = 1
def Q(u, s): return QB + (u * 4 + s) * 4
def vr(b, n=4): return f"v[{b}:{b+n-1}]"
def ar(b, n=4): return f"a[{b}:{b+n-1}]"
def Kf(par, f, n=4, o=0): return ar(KA + par * 32 + f * 4 + o, n)
def Vf(par, j, n=4, o=0): return ar(VA + par * 32 + j * 4 + o, n)
SQ, SK, SV, SO = 8, 12, 16, 20
S_WAVE = 24; S_HOFF = 25; S_HOFF2 = 26; S_BAD = 27; S_CNT = 28; S_T = 29
S_C = 30
S_DOFF = 32; S_DCNT = 33; S_DSLOT = 34; S_D2 = 35; S_THR = 36; S_OOB = 37
S_ROWB = 50; S_STG = 51; S_QP = 52; S_QPO = 53; S_QPL = 54; S_OST = 55; S_T2 = 56
S_MASK = 57
S_CW = 6; S_CG = 7

class G:
    def __init__(self): self.L = []
    def e(self, s): self.L.append("    " + s)
    def es(self, l):
        for s in l: self.e(s)
    def lab(self, s): self.L.append(s + ":")
    def c(self, s): self.L.append("    ; " + s)
g = G()

NSPIN = 0
def stamp(i):
    if not STAMP: return
    g.e("s_memrealtime s[38:39]" if STAMP in (3, 4) else "s_memtime s[38:39]")
    g.e("s_waitcnt lgkmcnt(0)")
    g.e(f"s_mov_b32 s{64+i}, s38")
def stamp_out():
    if not STAMP: return
    g.e("s_waitcnt vmcnt(0)")
    stamp(13)
    if STAMP == 3:
        ph = int(E("PH", "0"))
        global NSPIN
        NSPIN += 1
        g.e(f"s_add_u32 s3, s{64+ph}, 10000")
        g.lab(f"L_spin{NSPIN}")
        g.es(["s_sleep 2", "s_memrealtime s[38:39]", "s_waitcnt lgkmcnt(0)", "s_sub_u32 s4, s3, s38", "s_cmp_gt_i32 s4, 0", f"s_cbranch_scc1 L_spin{NSPIN}"])
        return
    g.e("s_memrealtime s[38:39]")
    g.e("s_load_dwordx2 s[48:49], s[0:1], 40")
    g.e("s_waitcnt lgkmcnt(0)")
    g.e("s_mov_b32 s95, s38")
    g.e("s_lshl_b32 s3, s2, 2")
    g.e(f"s_add_u32 s3, s3, s{S_WAVE}")
    g.e("s_lshl_b32 s3, s3, 7")
    g.e("v_mov_b32 v2, s3")
    g.e("s_mov_b64 exec, 1")
    for i in list(range(24)) + [30, 31]:
        g.e(f"v_mov_b32 v3, s{64+i}")
        g.e(f"global_store_dword v2, v3, s[48:49] offset:{i*4}")

def mfma(d, a, b, c): return f"v_mfma_f32_16x16x32_bf16 {d}, {a}, {b}, {c}"
def qk_mfmas(u, par, sbuf):
    M = []
    for kt in range(2):
        for s in range(4):
            d = vr(SB + sbuf * 8 + kt * 4)
            c = vr(CB + u * 4) if s == 0 else d
            M.append(mfma(d, Kf(par, kt * 4 + s), vr(Q(u, s)), c))
    return M
def pv_mfmas(u, par, pbuf, first):
    return [mfma(Or(u, 4 * j), Vf(par, j), vr(PB + pbuf * 4), "0" if first else Or(u, 4 * j)) for j in range(8)]
def sm_units(u, buf, first):
    s = SB + buf * 8; p = PB + buf * 4
    Ex = lambda i: f"v_exp_f32 v{s+i}, v{s+i}"
    def A(i):
        l = LB + u * 2 + (i & 1)
        if first and i < 2: return f"v_mov_b32 v{l}, v{s+i}"
        return f"v_add_f32 v{l}, v{l}, v{s+i}"
    C = lambda i: f"v_cvt_pk_bf16_f32 v{p+i}, v{s+2*i}, v{s+2*i+1}"
    return [[], [Ex(0)], [], [Ex(1)], [Ex(2)], [A(0), A(1)], [Ex(3)], [C(0), A(2)], [Ex(4)], [A(3), C(1)],
            [Ex(5)], [Ex(6)], [A(4), A(5)], [Ex(7)], [C(2), A(6)], [A(7), C(3)]]
def k_reads(slot, par):
    return [f"ds_read_b128 {Kf(par, kt*4+s)}, v{KAD+s} offset:{slot*TILE+kt*4096}" for kt in range(2) for s in range(4)]
def v_reads(slot, par):
    return [f"ds_read_b64_tr_b16 {Vf(par, j, 2, 2*h)}, v{VAD+j} offset:{slot*TILE+h*4096}" for j in range(8) for h in range(2)]
def q_reads(u):
    return [f"ds_read_b128 {vr(Q(u,s))}, v{QA+s} offset:{u*4096}" for s in range(4)]

class Step:
    def __init__(self, n, qk, sm, pv):
        self.M = (qk_mfmas(qk[1], qk[0], n & 1) if qk else []) + (pv_mfmas(pv[1], pv[0], n & 1, pv[2]) if pv else [])
        k = len(self.M)
        self.n = n
        self.salu = [[] for _ in range(k)]; self.mem = [[] for _ in range(k)]; self.valu = [[] for _ in range(k)]
        self.pre = []; self.post = []
        if sm:
            U = sm_units(sm[0], (n - 1) & 1, sm[1])
            if k == 16:
                for t in range(16): self.valu[t] = list(U[t])
            else:
                for t in range(8): self.valu[t] = U[2 * t] + U[2 * t + 1]
        if not qk: self.pre.append("s_nop 1")
        if not pv: self.post.append("s_nop 7")
    def prepend(self, ms):
        k = len(ms)
        self.M = list(ms) + self.M
        self.salu = [[] for _ in range(k)] + self.salu; self.mem = [[] for _ in range(k)] + self.mem; self.valu = [[] for _ in range(k)] + self.valu
    def add_mem(self, ops, pos):
        assert len(ops) == len(pos), (len(ops), len(pos))
        for o, p in zip(ops, pos): self.mem[p].append(o)
    def emit(self):
        g.es(self.pre)
        for i, m in enumerate(self.M):
            g.e(m); g.es(self.salu[i]); g.es(self.mem[i]); g.es(self.valu[i])
        g.es(self.post)

def dma_tile_ops():
    ops = []
    for which in range(2):
        srd = SK if which == 0 else SV
        for hh in range(2):
            for i in range(4):
                pre = None
                if i == 0:
                    off = (VBASE if which else 0) + hh * 4096
                    pre = f"s_add_u32 m0, s{S_DSLOT}, {off}"
                so = S_DOFF if hh == 0 else S_D2
                va = DK + i if which == 0 else DV + (i & 1)
                ops.append((pre, f"buffer_load_dwordx4 v{va}, s[{srd}:{srd+3}], s{so} offen offset:{i*1024}{NT_KV} lds"))
    return ops
def dma_advance():
    return [
        f"s_add_u32 s{S_DCNT}, s{S_DCNT}, 1",
        f"s_add_u32 s{S_DOFF}, s{S_DOFF}, {TILE}",
        f"s_cmp_eq_u32 s{S_DCNT}, 23", f"s_cselect_b32 s{S_DOFF}, s{S_HOFF2}, s{S_DOFF}",
        f"s_cmp_eq_u32 s{S_DCNT}, 46", f"s_cselect_b32 s{S_DOFF}, s{S_OOB}, s{S_DOFF}",
        f"s_add_u32 s{S_D2}, s{S_DOFF}, 4096",
        f"s_add_u32 s{S_DSLOT}, s{S_DSLOT}, {TILE}",
        f"s_and_b32 s{S_DSLOT}, s{S_DSLOT}, {R*TILE-1}",
    ]
def emit_dma_tile_plain(advance=True):
    for pre, d in dma_tile_ops():
        if pre: g.e(pre); g.e("s_nop 0")
        g.e(d)
    if advance: g.es(dma_advance())
def place_dma(steps, slots):
    prev = None
    for (st, p), (pre, d) in zip(slots, dma_tile_ops()):
        if pre:
            if p > 0 and prev != (st, p - 1) and prev != (st, p) and not any("s_cmp" in x for x in st.salu[p - 2:p] for x in x):
                st.salu[p - 1].append(pre)
            else:
                st.mem[p] += [pre, "s_nop 0"]
        st.mem[p].append(d)
        prev = (st, p)
def q_dma_groups():
    G_ = [[f"buffer_load_dwordx4 v{DK+i}, s[{SQ}:{SQ+3}], s{S_QPO} offen offset:{i*1024}{NT_Q} lds"] for i in range(4)]
    G_[0] = [f"s_mov_b32 m0, s{S_QPL}", f"s_add_u32 s{S_QPL}, s{S_QPL}, 4096"] + G_[0]
    G_[3] = G_[3] + [f"s_add_u32 s{S_QPO}, s{S_QPO}, 4096"]
    return G_
def coop_groups(which, t):
    srd = SK if which == 0 else SV
    G_ = []
    for hh in range(2):
        off = t * TILE + hh * 4096
        G_.append([f"s_add_u32 m0, s{S_CW}, {off + (VBASE if which else 0)}", f"s_add_u32 s{S_T}, s{S_CG}, {off}",
                   f"buffer_load_dwordx4 v{CV_ if which else CK_}, s[{srd}:{srd+3}], s{S_T} offen{NT_KV} lds"])
    return G_
def emit_q_dma():
    for x in q_dma_groups(): g.es(x)
def emit_coop(which, t):
    for x in coop_groups(which, t): g.es(x)

def prescale(u):
    L = []
    for r in range(Q(u, 0), Q(u, 0) + 16, 2):
        for k in range(2):
            t = PT + 2 * k
            L.append(f"v_lshlrev_b32 v{t}, 16, v{r+k}")
            L.append(f"v_and_b32 v{t+1}, s{S_MASK}, v{r+k}")
        for k in range(2):
            t = PT + 2 * k
            L.append(f"v_pk_mul_f32 v[{t}:{t+1}], v[{t}:{t+1}], s[{S_C}:{S_C+1}]")
        for k in range(2):
            t = PT + 2 * k
            L.append(f"v_cvt_pk_bf16_f32 v{r+k}, v{t}, v{t+1}")
    return L
def bc_reads(slot, ub):
    return [f"v_lshrrev_b32 v{PT}, 4, v{OOFF}", f"v_and_b32 v{PT}, 0x30, v{PT}"] + \
           [f"ds_read_b128 {Or(ub, 16+4*s_)}, v{PT} offset:{slot*TILE+s_*64}" for s_ in range(4)]
def prepass_mfma(u, ub):
    d = vr(CB + u * 4)
    return [mfma(d, Or(ub, 16 + 4 * s_), vr(Q(u, s_)), "0" if s_ == 0 else d) for s_ in range(4)]
def prepass_neg(u):
    c = CB + u * 4
    return [f"v_sub_f32 v{c+k}, 0, v{c+k}" for k in range(4)]
def l_reduce(u, bit):
    l = LB + 2 * u
    return [[f"v_add_f32 v{l}, v{l}, v{l+1}", f"v_mov_b32 v{l+1}, v{l}"],
            [f"v_permlane16_swap_b32 v{l}, v{l+1}"],
            [f"v_add_f32 v{l}, v{l}, v{l+1}", f"v_mov_b32 v{l+1}, v{l}"],
            [f"v_permlane32_swap_b32 v{l}, v{l+1}"],
            [f"v_add_f32 v{l}, v{l}, v{l+1}"],
            [f"v_cmp_ngt_f32 vcc, s{S_THR}, v{l}", f"v_rcp_f32 v{l}, v{l}"]]
def bad_flag(bit):
    return ["s_cmp_lg_u64 vcc, 0", f"s_cselect_b32 s{S_T2}, {1<<bit}, 0", f"s_or_b32 s{S_BAD}, s{S_BAD}, s{S_T2}"]
def epilogue_ops(u, n):
    l = LB + 2 * u
    L = []
    def wr(j, r): return f"ds_write_b64 v{EW+(j&3)}, v[{r}:{r+1}] offset:{u*4096+(j>>2)*128}"
    if Oisv(u):
        b = Obase(u)
        L += [f"v_pk_mul_f32 v[{b+k}:{b+k+1}], v[{b+k}:{b+k+1}], v[{l}:{l+1}] op_sel_hi:[1,0]" for k in range(0, 32, 2)]
        L += [f"v_cvt_pk_bf16_f32 v{b+k}, v{b+2*k}, v{b+2*k+1}" for k in range(16)]
        L += [wr(j, b + 2 * j) for j in range(8)]
        rb = [f"ds_read_b128 {Or(u, 16+4*i)}, v{ER+(i&1)} offset:{u*4096+i*1024}" for i in range(4)]
        return L, rb
    t = SB + ((n - 1) & 1) * 8
    P2 = [PB + (n & 1) * 4, PT]
    for jp in range(4):
        p = P2[jp & 1]
        L += [f"v_accvgpr_read_b32 v{t+k}, a{Obase(u)+8*jp+k}" for k in range(8)]
        L += [f"v_pk_mul_f32 v[{t+k}:{t+k+1}], v[{t+k}:{t+k+1}], v[{l}:{l+1}] op_sel_hi:[1,0]" for k in range(0, 8, 2)]
        L += [f"v_cvt_pk_bf16_f32 v{p+k}, v{t+2*k}, v{t+2*k+1}" for k in range(4)]
        if jp & 1:
            L += [wr(2 * jp - 2, P2[0]), wr(2 * jp - 1, P2[0] + 2), wr(2 * jp, P2[1]), wr(2 * jp + 1, P2[1] + 2)]
    rb = [f"ds_read_b128 {Or(u, 4*i)}, v{ER+(i&1)} offset:{u*4096+i*1024}" for i in range(4)]
    return L, rb
def o_stores(u, nt):
    if "nostore" in X: return ["s_nop 0"] * 5
    o = 16 if Oisv(u) else 0
    return [f"buffer_store_dwordx4 {Or(u, o+4*i)}, v{OOFF}, s[{SO}:{SO+3}], s{S_OST} offen offset:{i*1024}{nt}" for i in range(4)] + \
           [f"s_add_u32 s{S_OST}, s{S_OST}, 4096"]

def make_body(NQ, t, dma, first=False, last=False, newround=False):
    par = t & 1
    steps = []
    for k in range(NQ):
        n = NQ * t + 2 + k
        uq = k + 2
        qk = (par, uq) if uq < NQ else (None if last else (par ^ 1, uq - NQ))
        us = k + 1
        if us < NQ: sm = (us, first)
        else: sm = None if last else (0, newround)
        steps.append(Step(n, qk, sm, (par, k, first)))
    ks = NQ - 2
    if not last:
        vr_ = v_reads((t + 1) % R, par ^ 1); kr_ = k_reads((t + 2) % R, par)
        if NQ == 6:
            for k in range(4): steps[k].add_mem(vr_[4 * k:4 * k + 4], [0, 0, 2, 2])
        else:
            steps[0].add_mem(vr_[0:6], [0, 0, 2, 2, 5, 9]); steps[1].add_mem(vr_[6:12], [0, 0, 2, 2, 5, 9]); steps[2].add_mem(vr_[12:16], [0, 0, 2, 2])
        steps[ks].add_mem(kr_[0:4], [0, 0, 2, 2]); steps[ks + 1].add_mem(kr_[4:8], [0, 0, 2, 2])
        w = f"s_waitcnt vmcnt({16*(R-2)}) lgkmcnt(0)" if dma else "s_waitcnt lgkmcnt(0)"
        steps[ks - 1].salu[-1].append(w)
        steps[ks].salu[0].append("s_barrier")
        if dma:
            for q, a in enumerate(dma_advance()): steps[0].salu[1 + q].append(a)
            sl = [(steps[ks], p) for p in (3, 4, 6, 7, 9, 10, 12, 13, 15)] + [(steps[ks + 1], p) for p in (3, 4, 6, 8, 9, 10, 12)]
            place_dma(steps, sl)
    return steps

def add_lreduce(st, u, bit):
    Gs = l_reduce(u, bit)
    k = len(st.M)
    if k == 16:
        for gi, p in zip(Gs, (0, 2, 4, 6, 8, 10)): st.valu[p] = st.valu[p] + gi
        for x, p in zip(bad_flag(bit), (12, 13, 14)):
            st.salu[p].append(x)
    else:
        for i, gi in enumerate(Gs):
            st.valu[i] = st.valu[i] + (["s_nop 1"] if i in (1, 3) else []) + gi
        st.post += ["s_nop 1"] + bad_flag(bit)

def emit_variant(NQ, dma, tag):
    g.lab(f"L_start_{tag}")
    CUR_NQ[0] = NQ
    order = ["Q0"] * 4 + ["K0"] * 2 + ["K1"] * 2 + ["Q1"] * 4 + ["V0"] * 2 + ["V1"] * 2
    def groups(name):
        if name[0] == "Q":
            if int(name[1]) >= NQ: return []
            order.extend([name] * 4); return q_dma_groups()
        order.extend([name] * 2); return coop_groups(0 if name[0] == "K" else 1, int(name[1]))
    def issue(name):
        if name[0] == "Q":
            if int(name[1]) >= NQ: return
            emit_q_dma(); order.extend([name] * 4)
        elif name[0] == "T":
            emit_dma_tile_plain(); order.extend([name] * 16)
        else:
            emit_coop(0 if name[0] == "K" else 1, int(name[1])); order.extend([name] * 2)
    def wstr(name):
        a = len(order) - 1 - max(i for i, x in enumerate(order) if x == name)
        return f"s_waitcnt vmcnt({min(63, a)})"
    def wait(name): g.e(wstr(name))
    if dma:
        g.e(f"s_add_u32 s{S_DOFF}, s{S_HOFF}, {4*TILE}")
        g.e(f"s_add_u32 s{S_D2}, s{S_DOFF}, 4096")
        g.e(f"s_mov_b32 s{S_DCNT}, 4")
        g.e(f"s_mov_b32 s{S_DSLOT}, 0")
        g.e(f"s_mov_b32 s{S_OOB}, 0x10000000")
    stamp(1)
    topup = {1: ["Q4"], 2: ["Q5"], 3: ["K2", "K3"], 4: ["V2", "V3"]}
    if dma: topup = {1: ["Q4"], 2: ["K2", "K3"], 3: ["V2", "V3"], 4: ["T4"]}
    UB = NQ - 1
    wait("Q0")
    stamp(16)
    g.es(q_reads(0))
    issue("Q2")
    g.e("s_waitcnt lgkmcnt(0)")
    g.es(prescale(0))
    wait("K1")
    g.e("s_barrier")
    stamp(2)
    g.es(bc_reads(0, UB))
    g.es(k_reads(0, 0))
    issue("Q3")
    g.e("s_waitcnt lgkmcnt(8)")
    pm = prepass_mfma(0, UB); kr = k_reads(1, 1)
    for i in range(4): g.e(pm[i]); g.es(kr[2 * i:2 * i + 2])
    g.e("s_nop 5")
    g.es(prepass_neg(0))
    g.e("s_waitcnt lgkmcnt(8)")
    g.e("s_nop 0")
    n = 0
    def prevpair(m): return (m & 1, m >> 1)
    def mkstep(n):
        sm = None; pv = None
        if n >= 1: sm = (prevpair(n - 1)[1], prevpair(n - 1)[0] == 0)
        if n >= 2: pv = (prevpair(n - 2)[0], prevpair(n - 2)[1], prevpair(n - 2)[0] == 0)
        return Step(n, prevpair(n), sm, pv)
    for u in range(NQ):
        if dma and u == NQ - 1: issue("T5")
        st = mkstep(2 * u)
        k = len(st.M)
        if u == 1: st.salu[7].append("s_waitcnt lgkmcnt(0)")
        if u < NQ - 1:
            st.salu[k - 5].append(wstr(f"Q{u+1}"))
            st.add_mem(q_reads(u + 1), [k - 5, k - 5, k - 3, k - 3])
            if u == 0: st.post = []
        else:
            kr = k_reads(2, 0)
            st.salu[7].append(wstr("K3"))
            st.salu[8].append("s_barrier")
            st.add_mem(kr[:4], [8, 10, 11, 13])
        st.emit()
        if u == 1: g.e("s_barrier")
        st = mkstep(2 * u + 1)
        if u < NQ - 1:
            stamp(17 + u)
            g.e("s_waitcnt lgkmcnt(0)")
            g.es(prescale(u + 1))
            if u == 0:
                wait("V1")
                g.e("s_barrier")
                stamp(3)
            st.prepend(prepass_mfma(u + 1, UB))
            gs = []
            for x in topup.get(u + 1, []):
                if x[0] == "T": issue(x)
                else: gs += groups(x)
            for i, gi in enumerate(gs): st.mem[i] += gi
            st.pre.append("s_nop 1")
            k = len(st.M)
            for x, p in zip(prepass_neg(u + 1), (k - 5, k - 4, k - 3, k - 2)): st.valu[p] = st.valu[p] + [x]
            if u == 0:
                vv = v_reads(0, 0) + v_reads(1, 1)
                st.add_mem(vv, [i * k // 32 for i in range(32)])
        else:
            st.add_mem(kr[4:], [0, 0, 2, 2])
            st.salu[15].append("s_waitcnt lgkmcnt(0)")
        st.emit()
    n = 2 * NQ
    st = Step(n, (0, 0), (NQ - 1, False), (0, NQ - 1, True))
    st.add_mem(k_reads(3, 1), [0, 0, 2, 2, 4, 6, 8, 10])
    st.salu[15].append(wstr("V3"))
    st.emit(); n += 1
    st = Step(n, (0, 1), (0, False), (1, NQ - 1, False))
    st.salu[0].append("s_barrier")
    st.add_mem(v_reads(2, 0), [0, 0, 1, 1, 2, 2, 3, 3, 4, 4, 5, 6, 7, 8, 9, 10])
    st.emit(); n += 1
    assert n == NQ * 2 + 2
    g.e("s_waitcnt lgkmcnt(0)")
    g.e("s_barrier")
    if dma: emit_dma_tile_plain(advance=False)
    g.e(f"s_mov_b32 s{S_QP}, {NQ}")
    g.e(f"s_add_u32 s{S_QPO}, s{S_HOFF2}, s{S_ROWB}")
    g.e(f"s_mov_b32 s{S_QPL}, s{S_STG}")
    g.e(f"s_mov_b32 s{S_CNT}, 0")
    stamp(4)
    g.L.append(".p2align 3")
    g.lab(f"L_loop_{tag}")
    for ph in (2, 3, 0, 1):
        if ph == 0: g.lab(f"L_loop0_{tag}")
        steps = make_body(NQ, ph, dma)
        if ph == 0:
            steps[-1].salu[15].append(f"s_cmp_eq_u32 s{S_CNT}, 10")
        if ph == 1:
            steps[-1].salu[14].append(f"s_add_u32 s{S_CNT}, s{S_CNT}, 1")
            steps[-1].salu[15].append(f"s_cmp_gt_u32 s{S_CNT}, 5")
        for st in steps: st.emit()
        if ph == 0: g.e(f"s_cbranch_scc1 L_final_{tag}")
    g.e(f"s_cbranch_scc1 L_loop_{tag}")
    g.e(f"s_cmp_eq_u32 s{S_CNT}, 5")
    g.e(f"s_cbranch_scc1 L_trans_{tag}")
    if "pf" in X:
        g.e(f"s_cmp_eq_u32 s{S_CNT}, 4")
        g.e(f"s_cbranch_scc0 L_nopf_{tag}")
        g.e("s_getpc_b64 s[58:59]")
        g.e(f"v_lshlrev_b32 v{PT}, 3, v{OOFF}")
        for i in range(3):
            g.e(f"global_load_dword v{PT+1}, v{PT}, s[58:59]")
            g.e("s_add_u32 s58, s58, 8192")
            g.e("s_addc_u32 s59, s59, 0")
        g.e(f"s_branch L_loop_{tag}")
        g.lab(f"L_nopf_{tag}")
    g.e(f"s_cmp_eq_u32 s{S_QP}, 0")
    g.e(f"s_cbranch_scc1 L_loop_{tag}")
    emit_q_dma()
    g.e(f"s_sub_u32 s{S_QP}, s{S_QP}, 1")
    g.e(f"s_cmp_eq_u32 s{S_QP}, 0")
    g.e(f"s_cbranch_scc1 L_loop_{tag}")
    emit_q_dma()
    g.e(f"s_sub_u32 s{S_QP}, s{S_QP}, 1")
    g.e(f"s_branch L_loop_{tag}")

    def emit_special(t, final):
        steps = make_body(NQ, t, dma, last=final, newround=True)
        nt = NT_O1 if final else NT_O0
        for k, st in enumerate(steps):
            bit = (6 if final else 0) + k
            if final or k == 0:
                add_lreduce(st, k, bit)
                if not final: st.add_mem(q_reads(k), [4, 4, 6, 6])
            else:
                if k == 1: st.pre.append("s_waitcnt lgkmcnt(4)")
                st.pre.append("s_nop 1")
                st.prepend(prepass_mfma(k - 1, 0))
                st.add_mem(q_reads(k), [1, 1, 3, 3])
                for gi, p in zip(l_reduce(k, bit), (0, 2, 5, 7, 9, 11)): st.valu[p] = st.valu[p] + gi
                for x, p in zip(bad_flag(bit), (13, 14, 15)): st.salu[p].append(x)
                for x, p in zip(prepass_neg(k - 1), (13, 14, 15, 16)): st.valu[p] = st.valu[p] + [x]
            fine = ("fine" in X) and not final and k == int(E("FK", "2"))
            if fine: stamp(8)
            st.emit()
            g.e("s_waitcnt lgkmcnt(0)")
            if fine: stamp(9)
            if k > 0: g.es(o_stores(k - 1, nt))
            if fine: stamp(14)
            L, rb = epilogue_ops(k, st.n)
            g.es(L)
            if not final and k == 0: g.es(bc_reads((t + 1) % R, 0))
            g.es(rb)
            if fine: stamp(15)
            if not final: g.es(prescale(k))
            if fine: stamp(22)
        return nt
    g.lab(f"L_trans_{tag}")
    stamp(5)
    if not dma: g.e("s_waitcnt vmcnt(0)")
    nt = emit_special(22, False)
    stamp(6)
    steps = make_body(NQ, 23, dma, first=True)
    st = steps[0]
    st.pre += ["s_waitcnt lgkmcnt(0)", "s_nop 0"]
    st.prepend(prepass_mfma(NQ - 1, 0))
    st.add_mem(o_stores(NQ - 1, nt)[:4], [0, 1, 2, 3])
    for x, p in zip(prepass_neg(NQ - 1), (13, 14, 15, 16)): st.valu[p] = st.valu[p] + [x]
    st.salu[19].append(f"s_add_u32 s{S_OST}, s{S_HOFF2}, s{S_ROWB}")
    for st in steps: st.emit()
    stamp(10)
    g.e(f"s_branch L_loop0_{tag}")
    g.lab(f"L_final_{tag}")
    stamp(11)
    nt = emit_special(45, True)
    g.e("s_waitcnt lgkmcnt(0)")
    g.es(o_stores(NQ - 1, nt))
    stamp(12)
    stamp_out()
    g.e("s_endpgm")

def emit_addr_setup():
    for s in range(4):
        g.e(f"v_add_u32 v5, {4*s}, v14")
        g.e("v_xor_b32 v5, v5, v13")
        g.e("v_lshlrev_b32 v5, 4, v5")
        g.e(f"v_lshl_add_u32 v{KAD+s}, v13, 8, v5")
    g.e("v_lshrrev_b32 v6, 2, v12")
    g.e("v_and_b32 v7, 3, v12")
    g.e("v_lshlrev_b32 v8, 8, v6")
    g.e("v_lshl_add_u32 v8, v7, 3, v8")
    g.e(f"v_add_u32 v8, {VBASE}, v8")
    g.e("v_and_b32 v6, 7, v6")
    for j in range(8):
        g.e(f"v_xor_b32 v5, {j}, v6")
        g.e(f"v_lshl_add_u32 v{VAD+j}, v5, 5, v8")
    g.e(f"v_lshlrev_b32 v{OOFF}, 4, v12")
    g.e("v_lshrrev_b32 v5, 1, v14")
    g.e("v_and_b32 v6, 7, v13")
    g.e("v_xor_b32 v5, v5, v6")
    g.e("v_lshlrev_b32 v5, 4, v5")
    g.e("v_lshl_add_u32 v5, v13, 8, v5")
    g.e("v_and_b32 v6, 1, v14")
    g.e("v_lshl_add_u32 v5, v6, 3, v5")
    g.e(f"v_add_u32 v{EW}, s{S_STG}, v5")
    for j in range(1, 4): g.e(f"v_xor_b32 v{EW+j}, {j<<5}, v{EW}")
    g.e(f"v_add_u32 v{ER}, s{S_STG}, v{DK}")
    g.e(f"v_add_u32 v{ER+1}, s{S_STG}, v{DK+1}")
    for s in range(4): g.e(f"v_add_u32 v{QA+s}, s{S_STG}, v{KAD+s}")
    g.e(f"s_mov_b32 s{S_C}, {hex(f2u(CSCALE))}")
    g.e(f"s_mov_b32 s{S_C+1}, {hex(f2u(CSCALE))}")
    g.e(f"s_mov_b32 s{S_THR}, {hex(f2u(2.0**60))}")
    g.e(f"s_mov_b32 s{S_BAD}, 0")
    g.e(f"s_mov_b32 s{S_MASK}, 0xffff0000")
    g.e(f"s_add_u32 s{S_OST}, s{S_HOFF}, s{S_ROWB}")

def main():
    hdr = open("cdna_kernels/" + NAME + ".s.ref").read().split("; @launch")[0]
    out = hdr + f"; @launch grid=(256,1,1) block=(256,1,1) lds={LDS_BYTES}\n"
    out += f'''.amdgcn_target "amdgcn-amd-amdhsa--gfx950"
.text
.globl {NAME}_kernel
.p2align 8
.type {NAME}_kernel,@function
{NAME}_kernel:
'''
    if STAMP:
        if STAMP != 3:
            g.es(["s_memrealtime s[38:39]", "s_waitcnt lgkmcnt(0)", "s_mov_b32 s94, s38"])
        stamp(0)
        if STAMP != 3:
            for i in range(65, 88): g.e(f"s_mov_b32 s{i}, s64")
    g.e("s_load_dwordx8 s[40:47], s[0:1], 0")
    g.e("s_cmp_ge_u32 s2, 256")
    g.e("s_cbranch_scc1 L_done")
    if "pf0" in X:
        g.e("s_getpc_b64 s[58:59]")
        g.lab("L_pc0")
        g.e("v_lshlrev_b32 v16, 7, v0")
        g.e("v_cmp_lt_u32 vcc, 127, v0")
        g.e(f"v_mov_b32 v17, L_start_w3-L_pc0-16384")
        g.e("s_nop 0")
        g.e("v_cndmask_b32 v17, 0, v17, vcc")
        g.e("v_add_u32 v16, v16, v17")
        g.e("global_load_dword v17, v16, s[58:59]")
    g.e("v_lshrrev_b32 v11, 6, v0")
    g.e("v_and_b32 v12, 63, v0")
    g.e(f"v_readfirstlane_b32 s{S_WAVE}, v11")
    g.e("v_and_b32 v13, 15, v12")
    g.e("v_lshrrev_b32 v14, 4, v12")
    g.e("s_and_b32 s3, s2, 7")
    g.e("s_lshr_b32 s4, s2, 3")
    g.e("s_lshr_b32 s5, s4, 1")
    g.e("s_and_b32 s4, s4, 1")
    g.e("s_lshl_b32 s3, s3, 5")
    g.e("s_add_u32 s3, s3, s5")
    g.e(f"s_mul_i32 s{S_HOFF}, s3, {HEAD_BYTES}")
    g.e(f"s_add_u32 s{S_HOFF2}, s{S_HOFF}, {16*HEAD_BYTES}")
    g.e(f"s_mul_i32 s4, s4, {368*256}")
    g.e(f"s_mul_i32 s5, s{S_WAVE}, {96*256}")
    g.e(f"s_add_u32 s{S_ROWB}, s4, s5")
    g.e(f"s_add_u32 s{S_STG}, s5, {STAGE}")
    g.e(f"s_add_u32 s{S_QPO}, s{S_HOFF}, s{S_ROWB}")
    g.e(f"s_mov_b32 s{S_QPL}, s{S_STG}")
    g.e("v_lshlrev_b32 v15, 8, v14")
    for i in range(4):
        g.e(f"v_add_u32 v5, {4*i}, v14")
        g.e("v_xor_b32 v5, v5, v13")
        g.e(f"v_lshl_add_u32 v{DK+i}, v5, 4, v15")
    for i in range(2):
        g.e(f"v_lshl_add_u32 v5, v14, 1, {8*i}")
        g.e("v_xor_b32 v5, v5, v13")
        g.e(f"v_lshl_add_u32 v{DV+i}, v5, 4, v15")
    g.e("v_lshl_add_u32 v5, v11, 2, v14")
    g.e("v_xor_b32 v6, v5, v13")
    g.e(f"v_lshl_add_u32 v{CK_}, v6, 4, v15")
    g.e("v_and_b32 v5, 7, v5")
    g.e("v_lshlrev_b32 v5, 1, v5")
    g.e("v_xor_b32 v6, v5, v13")
    g.e(f"v_lshl_add_u32 v{CV_}, v6, 4, v15")
    g.e(f"s_lshl_b32 s{S_CW}, s{S_WAVE}, 10")
    g.e(f"s_add_u32 s{S_CG}, s{S_HOFF}, s{S_CW}")
    g.e("s_waitcnt lgkmcnt(0)")
    for i, srd in ((0, SQ), (1, SK)):
        g.e(f"s_mov_b32 s{srd}, s{40+2*i}")
        g.e(f"s_and_b32 s{srd+1}, s{41+2*i}, 0xffff")
        g.e(f"s_mov_b32 s{srd+2}, {TOTAL_BYTES}")
        g.e(f"s_mov_b32 s{srd+3}, 0x20000")
    stamp(7); emit_q_dma(); emit_coop(0, 0); emit_coop(0, 1)
    emit_addr_setup()
    for i, srd in ((2, SV), (3, SO)):
        g.e(f"s_mov_b32 s{srd}, s{40+2*i}")
        g.e(f"s_and_b32 s{srd+1}, s{41+2*i}, 0xffff")
        g.e(f"s_mov_b32 s{srd+2}, {TOTAL_BYTES}")
        g.e(f"s_mov_b32 s{srd+3}, 0x20000")
    emit_q_dma(); emit_coop(1, 0); emit_coop(1, 1)
    g.e(f"s_cmp_eq_u32 s{S_WAVE}, 3")
    g.e("s_cbranch_scc1 L_start_w3")
    emit_variant(6, False, "w0")
    emit_variant(5, True, "w3")
    g.lab("L_done")
    g.e("s_endpgm")
    if "pf" in X: g.L.append(".fill 2048, 4, 0xbf810000")
    out += "\n".join(g.L) + "\n"
    out += f'''.section .rodata,"a"
.p2align 6
.amdhsa_kernel {NAME}_kernel
  .amdhsa_next_free_vgpr 512
  .amdhsa_next_free_sgpr 96
  .amdhsa_accum_offset 256
  .amdhsa_group_segment_fixed_size 0
  .amdhsa_kernarg_size 48
  .amdhsa_user_sgpr_count 2
  .amdhsa_user_sgpr_kernarg_segment_ptr 1
  .amdhsa_system_sgpr_workgroup_id_x 1
.end_amdhsa_kernel
'''
    fn = sys.argv[1] if len(sys.argv) > 1 else "cdna_kernels/" + NAME + ".s"
    open(fn, "w").write(out)
main()
```

```python
import sys, os, struct
NAME = "standalone__gqa_softmax__near_ridge"
R = 4
TILE = 8192
VBASE = R * TILE
STAGE = 2 * R * TILE
LDS_BYTES = STAGE + 24 * 4096
HEAD_BYTES = 736 * 256
TOTAL_BYTES = 256 * HEAD_BYTES
E = os.environ.get
STAMP = int(E("STAMP", "0"))
NT_KV = E("NT_KV", " nt"); NT_Q = E("NT_Q", " nt"); NT_O0 = E("NT_O0", " sc1"); NT_O1 = E("NT_O1", " sc1")
X = E("X", "pf,pf0").split(",")
def f2u(x): return struct.unpack("<I", struct.pack("<f", x))[0]
CSCALE = 1.4426950408889634 / (128 ** 0.5)

CUR_NQ = [6]
OVB = 112
def Oisv(u): return u >= CUR_NQ[0] - 2
def Obase(u): return OVB + (u - (CUR_NQ[0] - 2)) * 32 if Oisv(u) else u * 32
def Or(u, off, n=4):
    b = Obase(u) + off
    return (f"v[{b}:{b+n-1}]" if Oisv(u) else f"a[{b}:{b+n-1}]")
KA = 128; VA = 192
QB = 16; SB = 176; PB = 192; CB = 200; LB = 224
KAD = 236; VAD = 240
DK = 248; DV = 252; OOFF = 254
EW = 2
ER = 6
QA = 8
PT = 12
CK_ = 255
CV_ = 1
def Q(u, s): return QB + (u * 4 + s) * 4
def vr(b, n=4): return f"v[{b}:{b+n-1}]"
def ar(b, n=4): return f"a[{b}:{b+n-1}]"
def Kf(par, f, n=4, o=0): return ar(KA + par * 32 + f * 4 + o, n)
def Vf(par, j, n=4, o=0): return ar(VA + par * 32 + j * 4 + o, n)
SQ, SK, SV, SO = 8, 12, 16, 20
S_WAVE = 24; S_HOFF = 25; S_HOFF2 = 26; S_BAD = 27; S_CNT = 28; S_T = 29
S_C = 30
S_DOFF = 32; S_DCNT = 33; S_DSLOT = 34; S_D2 = 35; S_THR = 36; S_OOB = 37
S_ROWB = 50; S_STG = 51; S_QP = 52; S_QPO = 53; S_QPL = 54; S_OST = 55; S_T2 = 56
S_MASK = 57
S_POFF = 61
POFF = float(E('POFF', '-11'))
S_CROW = 63
S_INC = 62
ORD = 96
ODAT = 96
S_CW = 6; S_CG = 7

class G:
    def __init__(self): self.L = []
    def e(self, s): self.L.append("    " + s)
    def es(self, l):
        for s in l: self.e(s)
    def lab(self, s): self.L.append(s + ":")
    def c(self, s): self.L.append("    ; " + s)
g = G()

NSPIN = 0
def stamp(i):
    if not STAMP: return
    g.e("s_memrealtime s[38:39]" if STAMP in (3, 4) else "s_memtime s[38:39]")
    g.e("s_waitcnt lgkmcnt(0)")
    g.e(f"s_mov_b32 s{64+i}, s38")
def stamp_out():
    if not STAMP: return
    g.e("s_waitcnt vmcnt(0)")
    stamp(13)
    if STAMP == 3:
        ph = int(E("PH", "0"))
        global NSPIN
        NSPIN += 1
        g.e(f"s_add_u32 s3, s{64+ph}, 10000")
        g.lab(f"L_spin{NSPIN}")
        g.es(["s_sleep 2", "s_memrealtime s[38:39]", "s_waitcnt lgkmcnt(0)", "s_sub_u32 s4, s3, s38", "s_cmp_gt_i32 s4, 0", f"s_cbranch_scc1 L_spin{NSPIN}"])
        return
    g.e("s_memrealtime s[38:39]")
    g.e("s_load_dwordx2 s[48:49], s[0:1], 40")
    g.e("s_waitcnt lgkmcnt(0)")
    g.e("s_mov_b32 s95, s38")
    g.e("s_lshl_b32 s3, s2, 2")
    g.e(f"s_add_u32 s3, s3, s{S_WAVE}")
    g.e("s_lshl_b32 s3, s3, 7")
    g.e("v_mov_b32 v2, s3")
    g.e("s_mov_b64 exec, 1")
    for i in list(range(24)) + [30, 31]:
        g.e(f"v_mov_b32 v3, s{64+i}")
        g.e(f"global_store_dword v2, v3, s[48:49] offset:{i*4}")

def mfma(d, a, b, c): return f"v_mfma_f32_16x16x32_bf16 {d}, {a}, {b}, {c}"
def qk_mfmas(u, par, sbuf):
    M = []
    for kt in range(2):
        for s in range(4):
            d = vr(SB + sbuf * 8 + kt * 4)
            c = vr(CB + u * 4) if s == 0 else d
            M.append(mfma(d, Kf(par, kt * 4 + s), vr(Q(u, s)), c))
    return M
def pv_mfmas(u, par, pbuf, first):
    return [mfma(Or(u, 4 * j), Vf(par, j), vr(PB + pbuf * 4), "0" if first else Or(u, 4 * j)) for j in range(8)]
def sm_units(u, buf, first):
    s = SB + buf * 8; p = PB + buf * 4
    Ex = lambda i: f"v_exp_f32 v{s+i}, v{s+i}"
    def A(i):
        l = LB + u * 2 + (i & 1)
        if first and i < 2: return f"v_mov_b32 v{l}, v{s+i}"
        return f"v_add_f32 v{l}, v{l}, v{s+i}"
    C = lambda i: f"v_cvt_pk_bf16_f32 v{p+i}, v{s+2*i}, v{s+2*i+1}"
    return [[], [Ex(0)], [], [Ex(1)], [Ex(2)], [A(0), A(1)], [Ex(3)], [C(0), A(2)], [Ex(4)], [A(3), C(1)],
            [Ex(5)], [Ex(6)], [A(4), A(5)], [Ex(7)], [C(2), A(6)], [A(7), C(3)]]
def k_reads(slot, par):
    return [f"ds_read_b128 {Kf(par, kt*4+s)}, v{KAD+s} offset:{slot*TILE+kt*4096}" for kt in range(2) for s in range(4)]
def v_reads(slot, par):
    return [f"ds_read_b64_tr_b16 {Vf(par, j, 2, 2*h)}, v{VAD+j} offset:{slot*TILE+h*4096}" for j in range(8) for h in range(2)]
def q_reads(u):
    return [f"ds_read_b128 {vr(Q(u,s))}, v{QA+s} offset:{u*4096}" for s in range(4)]

class Step:
    def __init__(self, n, qk, sm, pv):
        self.M = (qk_mfmas(qk[1], qk[0], n & 1) if qk else []) + (pv_mfmas(pv[1], pv[0], n & 1, pv[2]) if pv else [])
        k = len(self.M)
        self.n = n
        self.salu = [[] for _ in range(k)]; self.mem = [[] for _ in range(k)]; self.valu = [[] for _ in range(k)]
        self.pre = []; self.post = []
        if sm:
            U = sm_units(sm[0], (n - 1) & 1, sm[1])
            if k == 16:
                for t in range(16): self.valu[t] = list(U[t])
            else:
                for t in range(8): self.valu[t] = U[2 * t] + U[2 * t + 1]
        if not qk: self.pre.append("s_nop 1")
        if not pv: self.post.append("s_nop 7")
    def prepend(self, ms):
        k = len(ms)
        self.M = list(ms) + self.M
        self.salu = [[] for _ in range(k)] + self.salu; self.mem = [[] for _ in range(k)] + self.mem; self.valu = [[] for _ in range(k)] + self.valu
    def add_mem(self, ops, pos):
        assert len(ops) == len(pos), (len(ops), len(pos))
        for o, p in zip(ops, pos): self.mem[p].append(o)
    def emit(self):
        if "nodma" in X: self.mem = [[x for x in m if not x.startswith("buffer_load")] for m in self.mem]
        if "nobar" in X: self.salu = [[x for x in m if not x.startswith("s_barrier")] for m in self.salu]
        if "e64" in X:
            self.valu = [[x.replace("v_exp_f32 ", "v_exp_f32_e64 ") for x in m] for m in self.valu]
        g.es(self.pre)
        for i, m in enumerate(self.M):
            g.e(m); g.es(self.salu[i]); g.es(self.mem[i]); g.es(self.valu[i])
        g.es(self.post)

def dma_tile_ops():
    ops = []
    for which in range(2):
        srd = SK if which == 0 else SV
        for hh in range(2):
            for i in range(4):
                pre = None
                if i == 0:
                    off = (VBASE if which else 0) + hh * 4096
                    pre = f"s_add_u32 m0, s{S_DSLOT}, {off}"
                so = S_DOFF if hh == 0 else S_D2
                va = DK + i if which == 0 else DV + (i & 1)
                ops.append((pre, f"buffer_load_dwordx4 v{va}, s[{srd}:{srd+3}], s{so} offen offset:{i*1024}{NT_KV} lds"))
    return ops
def dma_advance():
    return [
        f"s_add_u32 s{S_DCNT}, s{S_DCNT}, 1",
        f"s_add_u32 s{S_DOFF}, s{S_DOFF}, {TILE}",
        f"s_cmp_eq_u32 s{S_DCNT}, 23", f"s_cselect_b32 s{S_DOFF}, s{S_HOFF2}, s{S_DOFF}",
        f"s_cmp_eq_u32 s{S_DCNT}, 46", f"s_cselect_b32 s{S_DOFF}, s{S_OOB}, s{S_DOFF}",
        f"s_add_u32 s{S_D2}, s{S_DOFF}, 4096",
        f"s_add_u32 s{S_DSLOT}, s{S_DSLOT}, {TILE}",
        f"s_and_b32 s{S_DSLOT}, s{S_DSLOT}, {R*TILE-1}",
    ]
def emit_dma_tile_plain(advance=True):
    for pre, d in dma_tile_ops():
        if pre: g.e(pre); g.e("s_nop 0")
        g.e(d)
    if advance: g.es(dma_advance())
def place_dma(steps, slots):
    prev = None
    for (st, p), (pre, d) in zip(slots, dma_tile_ops()):
        if pre:
            if p > 0 and prev != (st, p - 1) and prev != (st, p) and not any("s_cmp" in x for x in st.salu[p - 2:p] for x in x):
                st.salu[p - 1].append(pre)
            else:
                st.mem[p] += [pre, "s_nop 0"]
        st.mem[p].append(d)
        prev = (st, p)
def q_dma_groups():
    G_ = [[f"buffer_load_dwordx4 v{DK+i}, s[{SQ}:{SQ+3}], s{S_QPO} offen offset:{i*1024}{NT_Q} lds"] for i in range(4)]
    G_[0] = [f"s_mov_b32 m0, s{S_QPL}", f"s_add_u32 s{S_QPL}, s{S_QPL}, 4096"] + G_[0]
    G_[3] = G_[3] + [f"s_add_u32 s{S_QPO}, s{S_QPO}, 4096"]
    return G_
def coop_groups(which, t):
    srd = SK if which == 0 else SV
    G_ = []
    for hh in range(2):
        off = t * TILE + hh * 4096
        G_.append([f"s_add_u32 m0, s{S_CW}, {off + (VBASE if which else 0)}", f"s_add_u32 s{S_T}, s{S_CG}, {off}",
                   f"buffer_load_dwordx4 v{CV_ if which else CK_}, s[{srd}:{srd+3}], s{S_T} offen{NT_KV} lds"])
    return G_
def emit_q_dma():
    for x in q_dma_groups(): g.es(x)
def emit_coop(which, t):
    for x in coop_groups(which, t): g.es(x)

def prescale(u):
    L = []
    for r in range(Q(u, 0), Q(u, 0) + 16, 2):
        for k in range(2):
            t = PT + 2 * k
            L.append(f"v_lshlrev_b32 v{t}, 16, v{r+k}")
            L.append(f"v_and_b32 v{t+1}, s{S_MASK}, v{r+k}")
        for k in range(2):
            t = PT + 2 * k
            L.append(f"v_pk_mul_f32 v[{t}:{t+1}], v[{t}:{t+1}], s[{S_C}:{S_C+1}]")
        for k in range(2):
            t = PT + 2 * k
            L.append(f"v_cvt_pk_bf16_f32 v{r+k}, v{t}, v{t+1}")
    return L
def bc_reads(slot, ub):
    return [f"v_lshrrev_b32 v{PT}, 4, v{OOFF}", f"v_and_b32 v{PT}, 0x30, v{PT}"] + \
           [f"ds_read_b128 {Or(ub, 16+4*s_)}, v{PT} offset:{slot*TILE+s_*64}" for s_ in range(4)]
def prepass_mfma(u, ub):
    d = vr(CB + u * 4)
    return [mfma(d, Or(ub, 16 + 4 * s_), vr(Q(u, s_)), "0" if s_ == 0 else d) for s_ in range(4)]
def prepass_neg(u):
    c = CB + u * 4
    return [f"v_sub_f32 v{c+k}, s{S_POFF}, v{c+k}" for k in range(4)]
def l_reduce(u, bit):
    l = LB + 2 * u
    return [[f"v_add_f32 v{l}, v{l}, v{l+1}", f"v_mov_b32 v{l+1}, v{l}"],
            [f"v_permlane16_swap_b32 v{l}, v{l+1}"],
            [f"v_add_f32 v{l}, v{l}, v{l+1}", f"v_mov_b32 v{l+1}, v{l}"],
            [f"v_permlane32_swap_b32 v{l}, v{l+1}"],
            [f"v_add_f32 v{l}, v{l}, v{l+1}"],
            [f"v_cmp_ngt_f32 vcc, s{S_THR}, v{l}", f"v_rcp_f32 v{l}, v{l}"]]
def bad_flag(bit):
    return ["s_cmp_lg_u64 vcc, 0", f"s_cselect_b32 s{S_T2}, {1<<bit}, 0", f"s_or_b32 s{S_BAD}, s{S_BAD}, s{S_T2}"]
def epilogue_ops(u, n):
    l = LB + 2 * u
    L = []
    def wr(j, r): return f"ds_write_b64 v{EW+(j&3)}, v[{r}:{r+1}] offset:{u*4096+(j>>2)*128}"
    if Oisv(u):
        b = Obase(u)
        L += [f"v_pk_mul_f32 v[{b+k}:{b+k+1}], v[{b+k}:{b+k+1}], v[{l}:{l+1}] op_sel_hi:[1,0]" for k in range(0, 32, 2)]
        L += [f"v_cvt_pk_bf16_f32 v{b+k}, v{b+2*k}, v{b+2*k+1}" for k in range(16)]
        L += [wr(j, b + 2 * j) for j in range(8)]
        rb = [f"ds_read_b128 {Or(u, 16+4*i)}, v{ER+(i&1)} offset:{u*4096+i*1024}" for i in range(4)]
        return L, rb
    t = SB + ((n - 1) & 1) * 8
    P2 = [PB + (n & 1) * 4, PT]
    for jp in range(4):
        p = P2[jp & 1]
        L += [f"v_accvgpr_read_b32 v{t+k}, a{Obase(u)+8*jp+k}" for k in range(8)]
        L += [f"v_pk_mul_f32 v[{t+k}:{t+k+1}], v[{t+k}:{t+k+1}], v[{l}:{l+1}] op_sel_hi:[1,0]" for k in range(0, 8, 2)]
        L += [f"v_cvt_pk_bf16_f32 v{p+k}, v{t+2*k}, v{t+2*k+1}" for k in range(4)]
        if jp & 1:
            L += [wr(2 * jp - 2, P2[0]), wr(2 * jp - 1, P2[0] + 2), wr(2 * jp, P2[1]), wr(2 * jp + 1, P2[1] + 2)]
    rb = [f"ds_read_b128 {Or(u, 4*i)}, v{ER+(i&1)} offset:{u*4096+i*1024}" for i in range(4)]
    return L, rb
def o_stores(u, nt):
    if "nostore" in X: return ["s_nop 0"] * 5
    o = 16 if Oisv(u) else 0
    return [f"buffer_store_dwordx4 {Or(u, o+4*i)}, v{OOFF}, s[{SO}:{SO+3}], s{S_OST} offen offset:{i*1024}{nt}" for i in range(4)] + \
           [f"s_add_u32 s{S_OST}, s{S_OST}, 4096"]

def ngroups(t): return 2 if t % 4 == 2 else 1
def qpf_group():
    pre = [f"s_mov_b32 m0, s{S_QPL}"]
    ld = [f"buffer_load_dwordx4 v{DK+i}, s[{SQ}:{SQ+3}], s{S_QPO} offen offset:{i*1024}{NT_Q} lds" for i in range(4)]
    post = [f"s_add_u32 s{S_QPO}, s{S_QPO}, 4096", f"s_add_u32 s{S_QPL}, s{S_QPL}, 4096",
            f"s_min_u32 s{S_QPL}, s{S_QPL}, {STAGE + 23*4096}",
            f"s_cmp_eq_u32 s{S_QPL}, {STAGE + 23*4096}", f"s_cselect_b32 s{S_QPO}, s{S_OOB}, s{S_QPO}"]
    return pre, ld, post
def make_body(NQ, t, dma, first=False, last=False, newround=False, extra=None):
    par = t & 1
    steps = []
    for k in range(NQ):
        n = NQ * t + 2 + k
        uq = k + 2
        qk = (par, uq) if uq < NQ else (None if last else (par ^ 1, uq - NQ))
        us = k + 1
        if us < NQ: sm = (us, first)
        else: sm = None if last else (0, newround)
        steps.append(Step(n, qk, sm, (par, k, first)))
    ks = NQ - 2
    if not last:
        vr_ = v_reads((t + 1) % R, par ^ 1); kr_ = k_reads((t + 2) % R, par)
        if NQ == 6:
            for k in range(4): steps[k].add_mem(vr_[4 * k:4 * k + 4], [0, 0, 2, 2])
        else:
            steps[0].add_mem(vr_[0:6], [0, 0, 2, 2, 5, 9]); steps[1].add_mem(vr_[6:12], [0, 0, 2, 2, 5, 9]); steps[2].add_mem(vr_[12:16], [0, 0, 2, 2])
        steps[ks].add_mem(kr_[0:4], [0, 0, 2, 2]); steps[ks + 1].add_mem(kr_[4:8], [0, 0, 2, 2])
        nx = 4 * (ngroups(t) + ngroups(t - 1) + ngroups(t - 2)) if extra in ("Q", "O") else 0
        w = f"s_waitcnt vmcnt({16*(R-2) + nx}) lgkmcnt(0)" if dma else "s_waitcnt lgkmcnt(0)"
        steps[ks - 1].salu[-1].append(w)
        steps[ks].salu[0].append("s_barrier")
        if dma:
            for q, a in enumerate(dma_advance()): steps[0].salu[1 + q].append(a)
            sl = [(steps[ks], p) for p in (3, 4, 6, 7, 9, 10, 12, 13, 15)] + [(steps[ks + 1], p) for p in (3, 4, 6, 8, 9, 10, 12)]
            place_dma(steps, sl)
        if extra == "Q":
            for gi in range(ngroups(t)):
                st = steps[1 + gi]
                pre, ld, post = qpf_group()
                st.salu[2] += pre
                st.add_mem(ld, [3, 4, 6, 8])
                for q, x in enumerate(post): st.salu[9 + q].append(x)
        if extra == "O":
            ng = ngroups(t)
            for gi in range(ng):
                d = ODAT + 16 * gi
                rd = [f"ds_read_b128 {ar(d+4*i)}, v{ORD+(i&1)} offset:{gi*4096+i*1024}" for i in range(4)]
                steps[0].add_mem(rd, [10, 11, 12, 13] if gi == 0 else [14, 14, 15, 15])
                st = steps[1 + gi]
                so = [f"buffer_store_dwordx4 {ar(d+4*i)}, v{OOFF}, s[{SO}:{SO+3}], s{S_QPO} offen offset:{i*1024}{NT_O0}" for i in range(4)]
                if gi == 0:
                    st.salu[10].append("s_waitcnt lgkmcnt(6)")
                    st.add_mem(so, [10, 11, 13, 14])
                    st2, q0 = steps[2], 0
                    st.salu[15].append(f"s_add_u32 s{S_QPO}, s{S_QPO}, 4096")
                else:
                    st.add_mem(so, [4, 6, 7, 8])
                    st2, q0 = steps[2], 10
                    st.salu[9].append(f"s_add_u32 s{S_QPO}, s{S_QPO}, 4096")
                post = [f"s_sub_u32 s{S_QP}, s{S_QP}, 1", f"s_cmp_le_i32 s{S_QP}, 0", f"s_cselect_b32 s{S_QPO}, s{S_OOB}, s{S_QPO}"]
                for q, x in enumerate(post): st2.salu[q0 + q].append(x)
            steps[2].salu[13].append(f"s_cselect_b32 s{S_INC}, 0, {4096*ng}")
            steps[3].valu[5] = steps[3].valu[5] + [f"v_add_u32 v{ORD}, s{S_INC}, v{ORD}"]
            steps[3].valu[8] = steps[3].valu[8] + [f"v_add_u32 v{ORD+1}, s{S_INC}, v{ORD+1}"]
        if extra == "dummy":
            steps[1].add_mem([f"buffer_store_dwordx4 {ar(ODAT)}, v{OOFF}, s[{SO}:{SO+3}], s{S_OOB} offen" for _ in range(4 * ngroups(t))],
                             [3, 4, 6, 8, 10, 11, 13, 14][:4 * ngroups(t)])
    return steps

def add_lreduce(st, u, bit):
    Gs = l_reduce(u, bit)
    k = len(st.M)
    if k == 16:
        for gi, p in zip(Gs, (0, 2, 4, 6, 8, 10)): st.valu[p] = st.valu[p] + gi
        for x, p in zip(bad_flag(bit), (12, 13, 14)):
            st.salu[p].append(x)
    else:
        for i, gi in enumerate(Gs):
            st.valu[i] = st.valu[i] + (["s_nop 1"] if i in (1, 3) else []) + gi
        st.post += ["s_nop 1"] + bad_flag(bit)

def emit_variant(NQ, dma, tag):
    g.lab(f"L_start_{tag}")
    CUR_NQ[0] = NQ
    order = ["Q0"] * 4 + ["K0"] * 2 + ["K1"] * 2 + ["Q1"] * 4 + ["V0"] * 2 + ["V1"] * 2
    def groups(name):
        if name[0] == "Q":
            if int(name[1]) >= NQ: return []
            order.extend([name] * 4); return q_dma_groups()
        order.extend([name] * 2); return coop_groups(0 if name[0] == "K" else 1, int(name[1]))
    def issue(name):
        if name[0] == "Q":
            if int(name[1]) >= NQ: return
            emit_q_dma(); order.extend([name] * 4)
        elif name[0] == "T":
            emit_dma_tile_plain(); order.extend([name] * 16)
        else:
            emit_coop(0 if name[0] == "K" else 1, int(name[1])); order.extend([name] * 2)
    def wstr(name):
        a = len(order) - 1 - max(i for i, x in enumerate(order) if x == name)
        return f"s_waitcnt vmcnt({min(63, a)})"
    def wait(name): g.e(wstr(name))
    if dma:
        g.e(f"s_add_u32 s{S_DOFF}, s{S_HOFF}, {4*TILE}")
        g.e(f"s_add_u32 s{S_D2}, s{S_DOFF}, 4096")
        g.e(f"s_mov_b32 s{S_DCNT}, 4")
        g.e(f"s_mov_b32 s{S_DSLOT}, 0")
        g.e(f"s_mov_b32 s{S_OOB}, 0x10000000")
    stamp(1)
    topup = {1: ["Q4"], 2: ["Q5"], 3: ["K2", "K3"], 4: ["V2", "V3"]}
    if dma: topup = {1: ["Q4"], 2: ["K2", "K3"], 3: ["V2", "V3"], 4: ["T4"]}
    UB = NQ - 1
    wait("Q0")
    stamp(16)
    g.es(q_reads(0))
    issue("Q2")
    g.e("s_waitcnt lgkmcnt(0)")
    g.es(prescale(0))
    wait("K1")
    g.e("s_barrier")
    stamp(2)
    g.es(bc_reads(0, UB))
    g.es(k_reads(0, 0))
    issue("Q3")
    g.e("s_waitcnt lgkmcnt(8)")
    pm = prepass_mfma(0, UB); kr = k_reads(1, 1)
    for i in range(4): g.e(pm[i]); g.es(kr[2 * i:2 * i + 2])
    g.e("s_nop 5")
    g.es(prepass_neg(0))
    g.e("s_waitcnt lgkmcnt(8)")
    g.e("s_nop 0")
    n = 0
    def prevpair(m): return (m & 1, m >> 1)
    def mkstep(n):
        sm = None; pv = None
        if n >= 1: sm = (prevpair(n - 1)[1], prevpair(n - 1)[0] == 0)
        if n >= 2: pv = (prevpair(n - 2)[0], prevpair(n - 2)[1], prevpair(n - 2)[0] == 0)
        return Step(n, prevpair(n), sm, pv)
    for u in range(NQ):
        if dma and u == NQ - 1: issue("T5")
        st = mkstep(2 * u)
        k = len(st.M)
        if u == 1: st.salu[7].append("s_waitcnt lgkmcnt(0)")
        if u < NQ - 1:
            st.salu[k - 5].append(wstr(f"Q{u+1}"))
            st.add_mem(q_reads(u + 1), [k - 5, k - 5, k - 3, k - 3])
            if u == 0: st.post = []
        else:
            kr = k_reads(2, 0)
            st.salu[7].append(wstr("K3"))
            st.salu[8].append("s_barrier")
            st.add_mem(kr[:4], [8, 10, 11, 13])
        st.emit()
        if u == 1: g.e("s_barrier")
        st = mkstep(2 * u + 1)
        if u < NQ - 1:
            stamp(17 + u)
            g.e("s_waitcnt lgkmcnt(0)")
            g.es(prescale(u + 1))
            if u == 0:
                wait("V1")
                g.e("s_barrier")
                stamp(3)
            st.prepend(prepass_mfma(u + 1, UB))
            gs = []
            for x in topup.get(u + 1, []):
                if x[0] == "T": issue(x)
                else: gs += groups(x)
            for i, gi in enumerate(gs): st.mem[i] += gi
            st.pre.append("s_nop 1")
            k = len(st.M)
            for x, p in zip(prepass_neg(u + 1), (k - 5, k - 4, k - 3, k - 2)): st.valu[p] = st.valu[p] + [x]
            if u == 0:
                vv = v_reads(0, 0) + v_reads(1, 1)
                st.add_mem(vv, [i * k // 32 for i in range(32)])
        else:
            st.add_mem(kr[4:], [0, 0, 2, 2])
            st.salu[15].append("s_waitcnt lgkmcnt(0)")
        st.emit()
    n = 2 * NQ
    st = Step(n, (0, 0), (NQ - 1, False), (0, NQ - 1, True))
    st.add_mem(k_reads(3, 1), [0, 0, 2, 2, 4, 6, 8, 10])
    st.salu[15].append(wstr("V3"))
    st.emit(); n += 1
    st = Step(n, (0, 1), (0, False), (1, NQ - 1, False))
    st.salu[0].append("s_barrier")
    st.add_mem(v_reads(2, 0), [0, 0, 1, 1, 2, 2, 3, 3, 4, 4, 5, 6, 7, 8, 9, 10])
    st.emit(); n += 1
    assert n == NQ * 2 + 2
    g.e("s_waitcnt lgkmcnt(0)")
    g.e("s_barrier")
    if dma:
        g.e(f"s_add_u32 s{S_QPO}, s{S_HOFF2}, s{S_CROW}")
        g.e(f"s_mov_b32 s{S_QPL}, {STAGE}")
        for _ in range(2):
            pre, ld, post = qpf_group()
            g.es(pre + ["s_nop 0"] + ld + post[:2])
        emit_dma_tile_plain(advance=False)
    g.e(f"s_mov_b32 s{S_CNT}, 0")
    stamp(4)
    def code_prefetch(lab):
        g.e("s_getpc_b64 s[58:59]")
        g.lab(f"L_pc_{lab}")
        g.e(f"s_add_u32 s58, s58, {lab}-L_pc_{lab}")
        g.e("s_addc_u32 s59, s59, 0")
        g.e(f"v_lshlrev_b32 v{PT}, 3, v{OOFF}")
        for i in range(3 if dma else 2):
            g.e(f"global_load_dword v{PT+1}, v{PT}, s[58:59]")
            g.e("s_add_u32 s58, s58, 8192")
            g.e("s_addc_u32 s59, s59, 0")
    def emit_loop(name, extra, chk0, chk1):
        g.L.append(".p2align 3")
        g.lab(f"L_{name}_{tag}")
        for ph in (2, 3, 0, 1):
            if ph == 0: g.lab(f"L_{name}0_{tag}")
            steps = make_body(NQ, ph, dma, extra=extra)
            if ph == 0 and chk0:
                steps[-1].salu[15].append(f"s_cmp_eq_u32 s{S_CNT}, 10")
            if ph == 1:
                steps[-1].salu[13].append(f"s_add_u32 s{S_CNT}, s{S_CNT}, 1")
                if chk1:
                    steps[-1].salu[14].append(f"s_and_b32 s{S_T}, s{S_CNT}, 14")
                    steps[-1].salu[15].append(f"s_cmp_lg_u32 s{S_T}, 4")
            for st in steps: st.emit()
            if ph == 0 and chk0: g.e(f"s_cbranch_scc1 L_final_{tag}")
        if chk1:
            g.e(f"s_cbranch_scc1 L_{name}_{tag}")
            g.e(f"s_cmp_eq_u32 s{S_CNT}, 5")
            g.e(f"s_cbranch_scc1 L_trans_{tag}")
            code_prefetch(f"L_trans_{tag}")
        g.e(f"s_branch L_{name}_{tag}")
    if dma: emit_loop("loop", "Q", False, True)
    else: emit_loop("loop", None, True, True)

    def emit_special(t, final):
        steps = make_body(NQ, t, dma, last=final, newround=True, extra=("dummy" if dma and not final else None))
        nt = NT_O1 if final else NT_O0
        for k, st in enumerate(steps):
            bit = (6 if final else 0) + k
            if final or k == 0:
                add_lreduce(st, k, bit)
                if not final: st.add_mem(q_reads(k), [4, 4, 6, 6])
            else:
                if k == 1: st.pre.append("s_waitcnt lgkmcnt(0)")
                st.pre.append("s_nop 1")
                st.prepend(prepass_mfma(k - 1, 0))
                st.add_mem(q_reads(k), [1, 1, 3, 3])
                for gi, p in zip(l_reduce(k, bit), (0, 2, 5, 7, 9, 11)): st.valu[p] = st.valu[p] + gi
                for x, p in zip(bad_flag(bit), (13, 14, 15)): st.salu[p].append(x)
                for x, p in zip(prepass_neg(k - 1), (13, 14, 15, 16)): st.valu[p] = st.valu[p] + [x]
            fine = ("fine" in X) and not final and k == int(E("FK", "2"))
            if fine: stamp(8)
            st.emit()
            g.e("s_waitcnt lgkmcnt(0)")
            if fine: stamp(9)
            if k > 0 and final: g.es(o_stores(k - 1, nt))
            if fine: stamp(14)
            L, rb = epilogue_ops(k, st.n)
            g.es(L)
            if not final and k == 0: g.es(bc_reads((t + 1) % R, 0))
            if final: g.es(rb)
            if fine: stamp(15)
            if not final: g.es(prescale(k))
            if fine: stamp(22)
        return nt
    g.lab(f"L_trans_{tag}")
    stamp(5)
    if not dma: g.e("s_waitcnt vmcnt(0)")
    nt = emit_special(22, False)
    stamp(6)
    steps = make_body(NQ, 23, dma, first=True, extra=("dummy" if dma else None))
    st = steps[0]
    st.pre += ["s_nop 1"]
    st.prepend(prepass_mfma(NQ - 1, 0))
    for x, p in zip(prepass_neg(NQ - 1), (13, 14, 15, 16)): st.valu[p] = st.valu[p] + [x]
    if dma:
        st.salu[0].append(f"s_add_u32 s{S_QPO}, s{S_HOFF}, s{S_CROW}")
        st.salu[1].append(f"s_mov_b32 s{S_QP}, 23")
        st.valu[0].append(f"v_add_u32 v{ORD}, {STAGE}, v{DK}")
        st.valu[1].append(f"v_add_u32 v{ORD+1}, {STAGE}, v{DK+1}")
    for st in steps: st.emit()
    stamp(10)
    if dma:
        g.e(f"s_branch L_loopb0_{tag}")
        emit_loop("loopb", "O", True, False)
    else:
        g.e(f"s_branch L_loop0_{tag}")
    g.lab(f"L_final_{tag}")
    stamp(11)
    nt = emit_special(45, True)
    g.e("s_waitcnt lgkmcnt(0)")
    g.es(o_stores(NQ - 1, nt))
    stamp(12)
    g.e(f"s_cmp_lg_u32 s{S_BAD}, 0")
    g.e("s_cbranch_scc1 L_slow")
    stamp_out()
    g.e("s_endpgm")

def emit_slow():
    SB_, ST_, SH_, SR_, SX_ = 60, 61, 62, 63, 58
    VT = Q(1, 0)
    M_ = Q(2, 0)
    o = OVB; l = LB; c = CB; sreg = SB; p = PB
    def tile_dma(which, ldsoff):
        srd = SK if which == 0 else SV
        for hh in range(2):
            g.e(f"s_add_u32 m0, s{S_STG}, {ldsoff + hh*4096}")
            g.e(f"s_add_u32 s{SX_}, s{ST_}, {hh*4096}")
            for i in range(4):
                va = DK + i if which == 0 else DV + (i & 1)
                g.e(f"buffer_load_dwordx4 v{va}, s[{srd}:{srd+3}], s{SX_} offen offset:{i*1024} lds")
    def kreads():
        for kt in range(2):
            for s_ in range(4): g.e(f"ds_read_b128 {Kf(0, kt*4+s_)}, v{QA+s_} offset:{4096+kt*4096}")
    def qk(cz):
        for kt in range(2):
            for s_ in range(4):
                d = vr(sreg + kt * 4)
                g.e(mfma(d, Kf(0, kt * 4 + s_), vr(Q(0, s_)), (("0" if cz else vr(c)) if s_ == 0 else d)))
        g.e("s_nop 7")
    def xlane(r, t, op):
        for sw in ("v_permlane16_swap_b32", "v_permlane32_swap_b32"):
            g.es([f"v_mov_b32 v{t}, v{r}", "s_nop 1", f"{sw} v{r}, v{t}", "s_nop 1", f"{op} v{r}, v{r}, v{t}"])
    g.lab("L_slow")
    g.e(f"s_sub_u32 s{SX_}, s{S_STG}, {VBASE - 12288}")
    for j in range(8): g.e(f"v_add_u32 v{VT+j}, s{SX_}, v{VAD+j}")
    g.lab("L_slow_next")
    g.e("s_waitcnt vmcnt(0) lgkmcnt(0)")
    g.e(f"s_ff1_i32_b32 s{SB_}, s{S_BAD}")
    g.e(f"s_bitset0_b32 s{S_BAD}, s{SB_}")
    g.e(f"s_cmp_ge_u32 s{SB_}, 6")
    g.e(f"s_cselect_b32 s{SH_}, s{S_HOFF2}, s{S_HOFF}")
    g.e(f"s_cselect_b32 s{SX_}, 6, 0")
    g.e(f"s_sub_u32 s{SB_}, s{SB_}, s{SX_}")
    g.e(f"s_lshl_b32 s{SB_}, s{SB_}, 12")
    g.e(f"s_add_u32 s{SR_}, s{SH_}, s{S_ROWB}")
    g.e(f"s_add_u32 s{SR_}, s{SR_}, s{SB_}")
    g.e(f"s_mov_b32 m0, s{S_STG}")
    g.e("s_nop 0")
    for i in range(4):
        g.e(f"buffer_load_dwordx4 v{DK+i}, s[{SQ}:{SQ+3}], s{SR_} offen offset:{i*1024} lds")
    g.e("s_waitcnt vmcnt(0)")
    g.es(q_reads(0))
    g.e("s_waitcnt lgkmcnt(0)")
    g.es(prescale(0))
    g.e(f"v_mov_b32 v{M_}, 0xff800000")
    g.e(f"s_mov_b32 s{ST_}, s{SH_}")
    g.e(f"s_add_u32 s{SB_}, s{SH_}, {HEAD_BYTES}")
    g.lab("L_slow_p1")
    tile_dma(0, 4096)
    g.e("s_waitcnt vmcnt(0)")
    kreads()
    g.e("s_waitcnt lgkmcnt(0)")
    qk(True)
    for i in range(0, 8, 2): g.e(f"v_max3_f32 v{M_}, v{M_}, v{sreg+i}, v{sreg+i+1}")
    g.e(f"s_add_u32 s{ST_}, s{ST_}, {TILE}")
    g.e(f"s_cmp_lt_u32 s{ST_}, s{SB_}")
    g.e("s_cbranch_scc1 L_slow_p1")
    xlane(M_, M_ + 1, "v_max_f32")
    for k in range(4): g.e(f"v_sub_f32 v{c+k}, 0, v{M_}")
    for k in range(32): g.e(f"v_mov_b32 v{o+k}, 0")
    g.e(f"v_mov_b32 v{l}, 0")
    g.e(f"s_mov_b32 s{ST_}, s{SH_}")
    g.lab("L_slow_p2")
    tile_dma(0, 4096)
    tile_dma(1, 12288)
    g.e("s_waitcnt vmcnt(0)")
    kreads()
    g.e("s_waitcnt lgkmcnt(0)")
    for j in range(8):
        for h in range(2): g.e(f"ds_read_b64_tr_b16 {Vf(0, j, 2, 2*h)}, v{VT+j} offset:{h*4096}")
    qk(False)
    for i in range(8): g.e(f"v_exp_f32 v{sreg+i}, v{sreg+i}")
    g.e("s_nop 0")
    for i in range(8): g.e(f"v_add_f32 v{l}, v{l}, v{sreg+i}")
    for i in range(4): g.e(f"v_cvt_pk_bf16_f32 v{p+i}, v{sreg+2*i}, v{sreg+2*i+1}")
    g.e("s_waitcnt lgkmcnt(0)")
    g.e("s_nop 1")
    for j in range(8): g.e(mfma(vr(o + 4 * j), Vf(0, j), vr(p), vr(o + 4 * j)))
    g.e(f"s_add_u32 s{ST_}, s{ST_}, {TILE}")
    g.e(f"s_cmp_lt_u32 s{ST_}, s{SB_}")
    g.e("s_cbranch_scc1 L_slow_p2")
    xlane(l, l + 1, "v_add_f32")
    g.e(f"v_rcp_f32 v{l}, v{l}")
    g.e("s_nop 7")
    for k in range(0, 32, 2): g.e(f"v_pk_mul_f32 v[{o+k}:{o+k+1}], v[{o+k}:{o+k+1}], v[{l}:{l+1}] op_sel_hi:[1,0]")
    for k in range(16): g.e(f"v_cvt_pk_bf16_f32 v{o+k}, v{o+2*k}, v{o+2*k+1}")
    for j in range(8): g.e(f"ds_write_b64 v{EW+(j&3)}, v[{o+2*j}:{o+2*j+1}] offset:{(j>>2)*128}")
    for i in range(4): g.e(f"ds_read_b128 {vr(o+16+4*i)}, v{ER+(i&1)} offset:{i*1024}")
    g.e("s_waitcnt lgkmcnt(0)")
    for i in range(4): g.e(f"buffer_store_dwordx4 {vr(o+16+4*i)}, v{OOFF}, s[{SO}:{SO+3}], s{SR_} offen offset:{i*1024}")
    g.e(f"s_cmp_lg_u32 s{S_BAD}, 0")
    g.e("s_cbranch_scc1 L_slow_next")
    g.e("s_endpgm")

def emit_addr_setup():
    for s in range(4):
        g.e(f"v_add_u32 v5, {4*s}, v14")
        g.e("v_xor_b32 v5, v5, v13")
        g.e("v_lshlrev_b32 v5, 4, v5")
        g.e(f"v_lshl_add_u32 v{KAD+s}, v13, 8, v5")
    g.e("v_lshrrev_b32 v6, 2, v12")
    g.e("v_and_b32 v7, 3, v12")
    g.e("v_lshlrev_b32 v8, 8, v6")
    g.e("v_lshl_add_u32 v8, v7, 3, v8")
    g.e(f"v_add_u32 v8, {VBASE}, v8")
    g.e("v_and_b32 v6, 7, v6")
    for j in range(8):
        g.e(f"v_xor_b32 v5, {j}, v6")
        g.e(f"v_lshl_add_u32 v{VAD+j}, v5, 5, v8")
    g.e(f"v_lshlrev_b32 v{OOFF}, 4, v12")
    g.e("v_lshrrev_b32 v5, 1, v14")
    g.e("v_and_b32 v6, 7, v13")
    g.e("v_xor_b32 v5, v5, v6")
    g.e("v_lshlrev_b32 v5, 4, v5")
    g.e("v_lshl_add_u32 v5, v13, 8, v5")
    g.e("v_and_b32 v6, 1, v14")
    g.e("v_lshl_add_u32 v5, v6, 3, v5")
    g.e(f"v_add_u32 v{EW}, s{S_STG}, v5")
    for j in range(1, 4): g.e(f"v_xor_b32 v{EW+j}, {j<<5}, v{EW}")
    g.e(f"v_add_u32 v{ER}, s{S_STG}, v{DK}")
    g.e(f"v_add_u32 v{ER+1}, s{S_STG}, v{DK+1}")
    for s in range(4): g.e(f"v_add_u32 v{QA+s}, s{S_STG}, v{KAD+s}")
    g.e(f"s_mov_b32 s{S_C}, {hex(f2u(CSCALE))}")
    g.e(f"s_mov_b32 s{S_C+1}, {hex(f2u(CSCALE))}")
    g.e(f"s_mov_b32 s{S_THR}, {hex(f2u(2.0**64))}")
    g.e(f"s_mov_b32 s{S_BAD}, 0")
    g.e(f"s_mov_b32 s{S_MASK}, 0xffff0000")
    g.e(f"s_mov_b32 s{S_POFF}, {hex(f2u(POFF))}")
    g.e(f"s_add_u32 s{S_OST}, s{S_HOFF2}, s{S_ROWB}")

def main():
    hdr = open("cdna_kernels/" + NAME + ".s.ref").read().split("; @launch")[0]
    out = hdr + f"; @launch grid=(256,1,1) block=(256,1,1) lds={LDS_BYTES}\n"
    out += f'''.amdgcn_target "amdgcn-amd-amdhsa--gfx950"
.text
.globl {NAME}_kernel
.p2align 8
.type {NAME}_kernel,@function
{NAME}_kernel:
'''
    if STAMP:
        if STAMP != 3:
            g.es(["s_memrealtime s[38:39]", "s_waitcnt lgkmcnt(0)", "s_mov_b32 s94, s38"])
        stamp(0)
        if STAMP != 3:
            for i in range(65, 88): g.e(f"s_mov_b32 s{i}, s64")
    g.e("s_load_dwordx8 s[40:47], s[0:1], 0")
    g.e("s_cmp_ge_u32 s2, 256")
    g.e("s_cbranch_scc1 L_done")
    if "pf0" in X:
        g.e("s_getpc_b64 s[58:59]")
        g.lab("L_pc0")
        g.e("v_lshlrev_b32 v16, 7, v0")
        g.e("v_cmp_lt_u32 vcc, 127, v0")
        g.e(f"v_mov_b32 v17, L_start_w3-L_pc0-16384")
        g.e("s_nop 0")
        g.e("v_cndmask_b32 v17, 0, v17, vcc")
        g.e("v_add_u32 v16, v16, v17")
        g.e("global_load_dword v17, v16, s[58:59]")
    g.e("v_lshrrev_b32 v11, 6, v0")
    g.e("v_and_b32 v12, 63, v0")
    g.e(f"v_readfirstlane_b32 s{S_WAVE}, v11")
    g.e("v_and_b32 v13, 15, v12")
    g.e("v_lshrrev_b32 v14, 4, v12")
    g.e("s_and_b32 s3, s2, 7")
    g.e("s_lshr_b32 s4, s2, 3")
    g.e("s_lshr_b32 s5, s4, 1")
    g.e("s_and_b32 s4, s4, 1")
    g.e("s_lshl_b32 s3, s3, 5")
    g.e("s_add_u32 s3, s3, s5")
    g.e(f"s_mul_i32 s{S_HOFF}, s3, {HEAD_BYTES}")
    g.e(f"s_add_u32 s{S_HOFF2}, s{S_HOFF}, {16*HEAD_BYTES}")
    g.e(f"s_mul_i32 s{S_CROW}, s4, {368*256}")
    g.e(f"s_mul_i32 s5, s{S_WAVE}, {96*256}")
    g.e(f"s_add_u32 s{S_ROWB}, s{S_CROW}, s5")
    g.e(f"s_add_u32 s{S_STG}, s5, {STAGE}")
    g.e(f"s_add_u32 s{S_QPO}, s{S_HOFF}, s{S_ROWB}")
    g.e(f"s_mov_b32 s{S_QPL}, s{S_STG}")
    g.e("v_lshlrev_b32 v15, 8, v14")
    for i in range(4):
        g.e(f"v_add_u32 v5, {4*i}, v14")
        g.e("v_xor_b32 v5, v5, v13")
        g.e(f"v_lshl_add_u32 v{DK+i}, v5, 4, v15")
    for i in range(2):
        g.e(f"v_lshl_add_u32 v5, v14, 1, {8*i}")
        g.e("v_xor_b32 v5, v5, v13")
        g.e(f"v_lshl_add_u32 v{DV+i}, v5, 4, v15")
    g.e("v_lshl_add_u32 v5, v11, 2, v14")
    g.e("v_xor_b32 v6, v5, v13")
    g.e(f"v_lshl_add_u32 v{CK_}, v6, 4, v15")
    g.e("v_and_b32 v5, 7, v5")
    g.e("v_lshlrev_b32 v5, 1, v5")
    g.e("v_xor_b32 v6, v5, v13")
    g.e(f"v_lshl_add_u32 v{CV_}, v6, 4, v15")
    g.e(f"s_lshl_b32 s{S_CW}, s{S_WAVE}, 10")
    g.e(f"s_add_u32 s{S_CG}, s{S_HOFF}, s{S_CW}")
    g.e("s_waitcnt lgkmcnt(0)")
    for i, srd in ((0, SQ), (1, SK)):
        g.e(f"s_mov_b32 s{srd}, s{40+2*i}")
        g.e(f"s_and_b32 s{srd+1}, s{41+2*i}, 0xffff")
        g.e(f"s_mov_b32 s{srd+2}, {TOTAL_BYTES}")
        g.e(f"s_mov_b32 s{srd+3}, 0x20000")
    stamp(7); emit_q_dma(); emit_coop(0, 0); emit_coop(0, 1)
    emit_addr_setup()
    for i, srd in ((2, SV), (3, SO)):
        g.e(f"s_mov_b32 s{srd}, s{40+2*i}")
        g.e(f"s_and_b32 s{srd+1}, s{41+2*i}, 0xffff")
        g.e(f"s_mov_b32 s{srd+2}, {TOTAL_BYTES}")
        g.e(f"s_mov_b32 s{srd+3}, 0x20000")
    emit_q_dma(); emit_coop(1, 0); emit_coop(1, 1)
    g.e(f"s_cmp_eq_u32 s{S_WAVE}, 3")
    g.e("s_cbranch_scc1 L_start_w3")
    emit_variant(6, False, "w0")
    emit_variant(5, True, "w3")
    emit_slow()
    g.lab("L_done")
    g.e("s_endpgm")
    if "pf" in X: g.L.append(".fill 2048, 4, 0xbf810000")
    out += "\n".join(g.L) + "\n"
    out += f'''.section .rodata,"a"
.p2align 6
.amdhsa_kernel {NAME}_kernel
  .amdhsa_next_free_vgpr 512
  .amdhsa_next_free_sgpr 96
  .amdhsa_accum_offset 256
  .amdhsa_group_segment_fixed_size 0
  .amdhsa_kernarg_size 48
  .amdhsa_user_sgpr_count 2
  .amdhsa_user_sgpr_kernarg_segment_ptr 1
  .amdhsa_system_sgpr_workgroup_id_x 1
.end_amdhsa_kernel
'''
    fn = sys.argv[1] if len(sys.argv) > 1 else "cdna_kernels/" + NAME + ".s"
    open(fn, "w").write(out)
main()
```

```python
import sys, os, struct
NAME = "standalone__gqa_softmax__near_ridge"
R = 4
TILE = 8192
VBASE = R * TILE
STAGE = 2 * R * TILE
LDS_BYTES = STAGE + 24 * 4096
HEAD_BYTES = 736 * 256
TOTAL_BYTES = 256 * HEAD_BYTES
E = os.environ.get
STAMP = int(E("STAMP", "0"))
NT_KV = E("NT_KV", " nt"); NT_Q = E("NT_Q", " nt"); NT_O0 = E("NT_O0", " sc1"); NT_O1 = E("NT_O1", " sc1")
X = E("X", "pf,pf0,tl1").split(",")
def f2u(x): return struct.unpack("<I", struct.pack("<f", x))[0]
CSCALE = 1.4426950408889634 / (128 ** 0.5)

CUR_NQ = [6]
OVB = 112
def Oisv(u): return u >= CUR_NQ[0] - 2
def Obase(u): return OVB + (u - (CUR_NQ[0] - 2)) * 32 if Oisv(u) else u * 32
def Or(u, off, n=4):
    b = Obase(u) + off
    return (f"v[{b}:{b+n-1}]" if Oisv(u) else f"a[{b}:{b+n-1}]")
KA = 128; VA = 192
QB = 16; SB = 176; PB = 192; CB = 200; LB = 224
KAD = 236; VAD = 240
DK = 248; DV = 252; OOFF = 254
EW = 2
ER = 6
QA = 8
PT = 12
CK_ = 255
CV_ = 1
def Q(u, s): return QB + (u * 4 + s) * 4
def vr(b, n=4): return f"v[{b}:{b+n-1}]"
def ar(b, n=4): return f"a[{b}:{b+n-1}]"
def Kf(par, f, n=4, o=0): return ar(KA + par * 32 + f * 4 + o, n)
def Vf(par, j, n=4, o=0): return ar(VA + par * 32 + j * 4 + o, n)
SQ, SK, SV, SO = 8, 12, 16, 20
S_WAVE = 24; S_HOFF = 25; S_HOFF2 = 26; S_BAD = 27; S_CNT = 28; S_T = 29
S_C = 30
S_DOFF = 32; S_DCNT = 33; S_DSLOT = 34; S_D2 = 35; S_THR = 36; S_OOB = 37
S_ROWB = 50; S_STG = 51; S_QP = 52; S_QPO = 53; S_QPL = 54; S_OST = 55; S_T2 = 56
S_MASK = 57
S_POFF = 61
POFF = float(E('POFF', '-11'))
S_CROW = 63
S_INC = 62
CPF = 98
ORD = 96
ODAT = 96
S_CW = 6; S_CG = 7

class G:
    def __init__(self): self.L = []
    def e(self, s): self.L.append("    " + s)
    def es(self, l):
        for s in l: self.e(s)
    def lab(self, s): self.L.append(s + ":")
    def c(self, s): self.L.append("    ; " + s)
g = G()

NSPIN = 0
def stamp(i):
    if not STAMP: return
    g.e("s_memrealtime s[38:39]" if STAMP in (3, 4) else "s_memtime s[38:39]")
    g.e("s_waitcnt lgkmcnt(0)")
    g.e(f"s_mov_b32 s{64+i}, s38")
def stamp_out():
    if not STAMP: return
    g.e("s_waitcnt vmcnt(0)")
    stamp(13)
    if STAMP == 3:
        ph = int(E("PH", "0"))
        global NSPIN
        NSPIN += 1
        g.e(f"s_add_u32 s3, s{64+ph}, 10000")
        g.lab(f"L_spin{NSPIN}")
        g.es(["s_sleep 2", "s_memrealtime s[38:39]", "s_waitcnt lgkmcnt(0)", "s_sub_u32 s4, s3, s38", "s_cmp_gt_i32 s4, 0", f"s_cbranch_scc1 L_spin{NSPIN}"])
        return
    g.e("s_memrealtime s[38:39]")
    g.e("s_load_dwordx2 s[48:49], s[0:1], 40")
    g.e("s_waitcnt lgkmcnt(0)")
    g.e("s_mov_b32 s95, s38")
    g.e("s_lshl_b32 s3, s2, 2")
    g.e(f"s_add_u32 s3, s3, s{S_WAVE}")
    g.e("s_lshl_b32 s3, s3, 7")
    g.e("v_mov_b32 v2, s3")
    g.e("s_mov_b64 exec, 1")
    for i in list(range(24)) + [30, 31]:
        g.e(f"v_mov_b32 v3, s{64+i}")
        g.e(f"global_store_dword v2, v3, s[48:49] offset:{i*4}")

def mfma(d, a, b, c): return f"v_mfma_f32_16x16x32_bf16 {d}, {a}, {b}, {c}"
def qk_mfmas(u, par, sbuf):
    M = []
    for kt in range(2):
        for s in range(4):
            d = vr(SB + sbuf * 8 + kt * 4)
            c = vr(CB + u * 4) if s == 0 else d
            M.append(mfma(d, Kf(par, kt * 4 + s), vr(Q(u, s)), c))
    return M
def pv_mfmas(u, par, pbuf, first):
    return [mfma(Or(u, 4 * j), Vf(par, j), vr(PB + pbuf * 4), E("OBIAS", "0") if first else Or(u, 4 * j)) for j in range(8)]
def sm_units(u, buf, first, alt=False):
    s = SB + buf * 8; p = PB + buf * 4
    Ex = lambda i: f"v_exp_f32 v{s+i}, v{s+i}"
    def A(i):
        l = LB + u * 2 + (i & 1)
        if first and i < 2: return f"v_mov_b32 v{l}, v{s+i}"
        return f"v_add_f32 v{l}, v{l}, v{s+i}"
    C = lambda i: f"v_cvt_pk_bf16_f32 v{p+i}, v{s+2*i}, v{s+2*i+1}"
    if alt:
        return [[Ex(0)], [Ex(1)], [Ex(2)], [A(0), A(1)], [Ex(3)], [C(0), A(2)], [Ex(4)], [A(3), C(1)], [Ex(5)], [],
                [Ex(6)], [A(4), A(5)], [], [Ex(7)], [C(2), A(6)], [A(7), C(3)]]
    return [[], [Ex(0)], [], [Ex(1)], [Ex(2)], [A(0), A(1)], [Ex(3)], [C(0), A(2)], [Ex(4)], [A(3), C(1)],
            [Ex(5)], [Ex(6)], [A(4), A(5)], [Ex(7)], [C(2), A(6)], [A(7), C(3)]]
def k_reads(slot, par):
    return [f"ds_read_b128 {Kf(par, kt*4+s)}, v{KAD+s} offset:{slot*TILE+kt*4096}" for kt in range(2) for s in range(4)]
def v_reads(slot, par):
    return [f"ds_read_b64_tr_b16 {Vf(par, j, 2, 2*h)}, v{VAD+j} offset:{slot*TILE+h*4096}" for j in range(8) for h in range(2)]
def q_reads(u):
    return [f"ds_read_b128 {vr(Q(u,s))}, v{QA+s} offset:{u*4096}" for s in range(4)]

class Step:
    def __init__(self, n, qk, sm, pv, alt=False):
        self.M = (qk_mfmas(qk[1], qk[0], n & 1) if qk else []) + (pv_mfmas(pv[1], pv[0], n & 1, pv[2]) if pv else [])
        k = len(self.M)
        self.n = n
        self.salu = [[] for _ in range(k)]; self.mem = [[] for _ in range(k)]; self.valu = [[] for _ in range(k)]
        self.pre = []; self.post = []
        if sm:
            U = sm_units(sm[0], (n - 1) & 1, sm[1], alt and k == 16)
            if k == 16:
                for t in range(16): self.valu[t] = list(U[t])
            else:
                for t in range(8): self.valu[t] = U[2 * t] + U[2 * t + 1]
        if not qk: self.pre.append("s_nop 1")
        if not pv: self.post.append("s_nop 7")
    def prepend(self, ms):
        k = len(ms)
        self.M = list(ms) + self.M
        self.salu = [[] for _ in range(k)] + self.salu; self.mem = [[] for _ in range(k)] + self.mem; self.valu = [[] for _ in range(k)] + self.valu
    def add_mem(self, ops, pos):
        assert len(ops) == len(pos), (len(ops), len(pos))
        for o, p in zip(ops, pos): self.mem[p].append(o)
    def emit(self):
        if "nodma" in X: self.mem = [[x for x in m if not x.startswith("buffer_load")] for m in self.mem]
        if "nobar" in X: self.salu = [[x for x in m if not x.startswith("s_barrier")] for m in self.salu]
        if "e64" in X:
            self.valu = [[x.replace("v_exp_f32 ", "v_exp_f32_e64 ") for x in m] for m in self.valu]
        g.es(self.pre)
        for i, m in enumerate(self.M):
            g.e(m); g.es(self.salu[i]); g.es(self.mem[i]); g.es(self.valu[i])
        g.es(self.post)

def dma_tile_ops():
    ops = []
    for which in range(2):
        srd = SK if which == 0 else SV
        for hh in range(2):
            for i in range(4):
                pre = None
                if i == 0:
                    off = (VBASE if which else 0) + hh * 4096
                    pre = f"s_add_u32 m0, s{S_DSLOT}, {off}"
                so = S_DOFF if hh == 0 else S_D2
                va = DK + i if which == 0 else DV + (i & 1)
                ops.append((pre, f"buffer_load_dwordx4 v{va}, s[{srd}:{srd+3}], s{so} offen offset:{i*1024}{NT_KV} lds"))
    return ops
def dma_advance():
    return [
        f"s_add_u32 s{S_DCNT}, s{S_DCNT}, 1",
        f"s_add_u32 s{S_DOFF}, s{S_DOFF}, {TILE}",
        f"s_cmp_eq_u32 s{S_DCNT}, 23", f"s_cselect_b32 s{S_DOFF}, s{S_HOFF2}, s{S_DOFF}",
        f"s_cmp_eq_u32 s{S_DCNT}, 46", f"s_cselect_b32 s{S_DOFF}, s{S_OOB}, s{S_DOFF}",
        f"s_add_u32 s{S_D2}, s{S_DOFF}, 4096",
        f"s_add_u32 s{S_DSLOT}, s{S_DSLOT}, {TILE}",
        f"s_and_b32 s{S_DSLOT}, s{S_DSLOT}, {R*TILE-1}",
    ]
def emit_dma_tile_plain(advance=True):
    for pre, d in dma_tile_ops():
        if pre: g.e(pre); g.e("s_nop 0")
        g.e(d)
    if advance: g.es(dma_advance())
def place_dma(steps, slots):
    prev = None
    for (st, p), (pre, d) in zip(slots, dma_tile_ops()):
        if pre:
            if p > 0 and prev != (st, p - 1) and prev != (st, p) and not any("s_cmp" in x for x in st.salu[p - 2:p] for x in x):
                st.salu[p - 1].append(pre)
            else:
                st.mem[p] += [pre, "s_nop 0"]
        st.mem[p].append(d)
        prev = (st, p)
def q_dma_groups():
    G_ = [[f"buffer_load_dwordx4 v{DK+i}, s[{SQ}:{SQ+3}], s{S_QPO} offen offset:{i*1024}{NT_Q} lds"] for i in range(4)]
    G_[0] = [f"s_mov_b32 m0, s{S_QPL}", f"s_add_u32 s{S_QPL}, s{S_QPL}, 4096"] + G_[0]
    G_[3] = G_[3] + [f"s_add_u32 s{S_QPO}, s{S_QPO}, 4096"]
    return G_
def coop_groups(which, t):
    srd = SK if which == 0 else SV
    G_ = []
    for hh in range(2):
        off = t * TILE + hh * 4096
        G_.append([f"s_add_u32 m0, s{S_CW}, {off + (VBASE if which else 0)}", f"s_add_u32 s{S_T}, s{S_CG}, {off}",
                   f"buffer_load_dwordx4 v{CV_ if which else CK_}, s[{srd}:{srd+3}], s{S_T} offen{NT_KV} lds"])
    return G_
def emit_q_dma():
    for x in q_dma_groups(): g.es(x)
def emit_coop(which, t):
    for x in coop_groups(which, t): g.es(x)

def prescale(u):
    L = []
    for r in range(Q(u, 0), Q(u, 0) + 16, 2):
        for k in range(2):
            t = PT + 2 * k
            L.append(f"v_lshlrev_b32 v{t}, 16, v{r+k}")
            L.append(f"v_and_b32 v{t+1}, s{S_MASK}, v{r+k}")
        for k in range(2):
            t = PT + 2 * k
            L.append(f"v_pk_mul_f32 v[{t}:{t+1}], v[{t}:{t+1}], s[{S_C}:{S_C+1}]")
        for k in range(2):
            t = PT + 2 * k
            L.append(f"v_cvt_pk_bf16_f32 v{r+k}, v{t}, v{t+1}")
    return L
def bc_reads(slot, ub):
    return [f"v_lshrrev_b32 v{PT}, 4, v{OOFF}", f"v_and_b32 v{PT}, 0x30, v{PT}"] + \
           [f"ds_read_b128 {Or(ub, 16+4*s_)}, v{PT} offset:{slot*TILE+s_*64}" for s_ in range(4)]
def prepass_mfma(u, ub):
    d = vr(CB + u * 4)
    return [mfma(d, Or(ub, 16 + 4 * s_), vr(Q(u, s_)), "0" if s_ == 0 else d) for s_ in range(4)]
def prepass_neg(u):
    c = CB + u * 4
    return [f"v_sub_f32 v{c+k}, s{S_POFF}, v{c+k}" for k in range(4)]
def l_reduce(u, bit):
    l = LB + 2 * u
    return [[f"v_add_f32 v{l}, v{l}, v{l+1}", f"v_mov_b32 v{l+1}, v{l}"],
            [f"v_permlane16_swap_b32 v{l}, v{l+1}"],
            [f"v_add_f32 v{l}, v{l}, v{l+1}", f"v_mov_b32 v{l+1}, v{l}"],
            [f"v_permlane32_swap_b32 v{l}, v{l+1}"],
            [f"v_add_f32 v{l}, v{l}, v{l+1}"],
            [f"v_cmp_ngt_f32 vcc, s{S_THR}, v{l}", f"v_rcp_f32 v{l}, v{l}"]]
def bad_flag(bit):
    return ["s_cmp_lg_u64 vcc, 0", f"s_cselect_b32 s{S_T2}, {1<<bit}, 0", f"s_or_b32 s{S_BAD}, s{S_BAD}, s{S_T2}"]
def epilogue_ops(u, n):
    l = LB + 2 * u
    L = []
    def wr(j, r): return f"ds_write_b64 v{EW+(j&3)}, v[{r}:{r+1}] offset:{u*4096+(j>>2)*128}"
    if Oisv(u):
        b = Obase(u)
        L += [f"v_pk_mul_f32 v[{b+k}:{b+k+1}], v[{b+k}:{b+k+1}], v[{l}:{l+1}] op_sel_hi:[1,0]" for k in range(0, 32, 2)]
        L += [f"v_cvt_pk_bf16_f32 v{b+k}, v{b+2*k}, v{b+2*k+1}" for k in range(16)]
        L += [wr(j, b + 2 * j) for j in range(8)]
        rb = [f"ds_read_b128 {Or(u, 16+4*i)}, v{ER+(i&1)} offset:{u*4096+i*1024}" for i in range(4)]
        return L, rb
    t = SB + ((n - 1) & 1) * 8
    P2 = [PB + (n & 1) * 4, PT]
    for jp in range(4):
        p = P2[jp & 1]
        L += [f"v_accvgpr_read_b32 v{t+k}, a{Obase(u)+8*jp+k}" for k in range(8)]
        L += [f"v_pk_mul_f32 v[{t+k}:{t+k+1}], v[{t+k}:{t+k+1}], v[{l}:{l+1}] op_sel_hi:[1,0]" for k in range(0, 8, 2)]
        L += [f"v_cvt_pk_bf16_f32 v{p+k}, v{t+2*k}, v{t+2*k+1}" for k in range(4)]
        if jp & 1:
            L += [wr(2 * jp - 2, P2[0]), wr(2 * jp - 1, P2[0] + 2), wr(2 * jp, P2[1]), wr(2 * jp + 1, P2[1] + 2)]
    rb = [f"ds_read_b128 {Or(u, 4*i)}, v{ER+(i&1)} offset:{u*4096+i*1024}" for i in range(4)]
    return L, rb
def o_stores(u, nt):
    if "nostore" in X: return ["s_nop 0"] * 5
    o = 16 if Oisv(u) else 0
    return [f"buffer_store_dwordx4 {Or(u, o+4*i)}, v{OOFF}, s[{SO}:{SO+3}], s{S_OST} offen offset:{i*1024}{nt}" for i in range(4)] + \
           [f"s_add_u32 s{S_OST}, s{S_OST}, 4096"]

def ngroups(t): return 2 if t % 4 == 2 else 1
def qpf_group():
    pre = [f"s_mov_b32 m0, s{S_QPL}"]
    ld = [f"buffer_load_dwordx4 v{DK+i}, s[{SQ}:{SQ+3}], s{S_QPO} offen offset:{i*1024}{NT_Q} lds" for i in range(4)]
    post = [f"s_add_u32 s{S_QPO}, s{S_QPO}, 4096", f"s_add_u32 s{S_QPL}, s{S_QPL}, 4096",
            f"s_min_u32 s{S_QPL}, s{S_QPL}, {STAGE + 23*4096}",
            f"s_cmp_eq_u32 s{S_QPL}, {STAGE + 23*4096}", f"s_cselect_b32 s{S_QPO}, s{S_OOB}, s{S_QPO}"]
    return pre, ld, post
def make_body(NQ, t, dma, first=False, last=False, newround=False, extra=None):
    par = t & 1
    steps = []
    for k in range(NQ):
        n = NQ * t + 2 + k
        uq = k + 2
        qk = (par, uq) if uq < NQ else (None if last else (par ^ 1, uq - NQ))
        us = k + 1
        if us < NQ: sm = (us, first)
        else: sm = None if last else (0, newround)
        steps.append(Step(n, qk, sm, (par, k, first)))
        M = steps[-1].M
        if len(M) == 16:
            if "ordB" in X: steps[-1].M = M[0:4] + M[8:12] + M[4:8] + M[12:16]
            if "ordC" in X: steps[-1].M = [M[0], M[1]] + [x for i in range(6) for x in (M[8 + i], M[2 + i])] + [M[14], M[15]]
            if "pvrev" in X and (n & 1): steps[-1].M = M[0:8] + M[8:16][::-1]
    ks = NQ - 2
    if not last:
        vr_ = v_reads((t + 1) % R, par ^ 1); kr_ = k_reads((t + 2) % R, par)
        if NQ == 6:
            for k in range(4): steps[k].add_mem(vr_[4 * k:4 * k + 4], [0, 0, 2, 2])
        else:
            steps[0].add_mem(vr_[0:6], [0, 0, 2, 2, 5, 9]); steps[1].add_mem(vr_[6:12], [0, 0, 2, 2, 5, 9]); steps[2].add_mem(vr_[12:16], [0, 0, 2, 2])
        steps[ks].add_mem(kr_[0:4], [0, 0, 2, 2]); steps[ks + 1].add_mem(kr_[4:8], [0, 0, 2, 2])
        nx = 4 * (ngroups(t) + ngroups(t - 1) + ngroups(t - 2)) if extra in ("Q", "O") else 0
        w = f"s_waitcnt vmcnt({16*(R-2) + nx}) lgkmcnt(0)" if dma else "s_waitcnt lgkmcnt(0)"
        bp = int(E("BP", "0"))
        if bp == 0 or newround:
            steps[ks - 1].salu[-1].append(w)
            steps[ks].salu[0].append("s_barrier")
        else:
            steps[ks - 1].salu[-1 - bp].append(w)
            steps[ks - 1].salu[-bp].append("s_barrier")
        if dma:
            for q, a in enumerate(dma_advance()): steps[0].salu[1 + q].append(a)
            sl = [(steps[ks], p) for p in (3, 4, 6, 7, 9, 10, 12, 13, 15)] + [(steps[ks + 1], p) for p in (3, 4, 6, 8, 9, 10, 12)]
            place_dma(steps, sl)
        if extra == "Q":
            for gi in range(ngroups(t)):
                st = steps[1 + gi]
                pre, ld, post = qpf_group()
                st.salu[2] += pre
                st.add_mem(ld, [3, 4, 6, 8])
                for q, x in enumerate(post): st.salu[9 + q].append(x)
        if extra == "O":
            ng = ngroups(t)
            for gi in range(ng):
                d = ODAT + 16 * gi
                rd = [f"ds_read_b128 {ar(d+4*i)}, v{ORD+(i&1)} offset:{gi*4096+i*1024}" for i in range(4)]
                steps[0].add_mem(rd, [10, 11, 12, 13] if gi == 0 else [14, 14, 15, 15])
                st = steps[1 + gi]
                so = [f"buffer_store_dwordx4 {ar(d+4*i)}, v{OOFF}, s[{SO}:{SO+3}], s{S_QPO} offen offset:{i*1024}{NT_O0}" for i in range(4)]
                if gi == 0:
                    st.salu[10].append("s_waitcnt lgkmcnt(6)")
                    st.add_mem(so, [10, 11, 13, 14])
                    st2, q0 = steps[2], 0
                    st.salu[15].append(f"s_add_u32 s{S_QPO}, s{S_QPO}, 4096")
                else:
                    st.add_mem(so, [4, 6, 7, 8])
                    st2, q0 = steps[2], 10
                    st.salu[9].append(f"s_add_u32 s{S_QPO}, s{S_QPO}, 4096")
                post = [f"s_sub_u32 s{S_QP}, s{S_QP}, 1", f"s_cmp_le_i32 s{S_QP}, 0", f"s_cselect_b32 s{S_QPO}, s{S_OOB}, s{S_QPO}"]
                for q, x in enumerate(post): st2.salu[q0 + q].append(x)
            steps[2].salu[13].append(f"s_cselect_b32 s{S_INC}, 0, {4096*ng}")
            steps[3].valu[5] = steps[3].valu[5] + [f"v_add_u32 v{ORD}, s{S_INC}, v{ORD}"]
            steps[3].valu[8] = steps[3].valu[8] + [f"v_add_u32 v{ORD+1}, s{S_INC}, v{ORD+1}"]
        if extra == "dummy":
            steps[1].add_mem([f"buffer_store_dwordx4 {ar(ODAT)}, v{OOFF}, s[{SO}:{SO+3}], s{S_OOB} offen" for _ in range(4 * ngroups(t))],
                             [3, 4, 6, 8, 10, 11, 13, 14][:4 * ngroups(t)])
    return steps

def add_lreduce(st, u, bit):
    Gs = l_reduce(u, bit)
    k = len(st.M)
    if k == 16:
        for gi, p in zip(Gs, (0, 2, 4, 6, 8, 10)): st.valu[p] = st.valu[p] + gi
        for x, p in zip(bad_flag(bit), (12, 13, 14)):
            st.salu[p].append(x)
    else:
        for i, gi in enumerate(Gs):
            st.valu[i] = st.valu[i] + (["s_nop 1"] if i in (1, 3) else []) + gi
        st.post += ["s_nop 1"] + bad_flag(bit)

def emit_variant(NQ, dma, tag):
    g.lab(f"L_start_{tag}")
    CUR_NQ[0] = NQ
    order = ["Q0"] * 4 + ["K0"] * 2 + ["K1"] * 2 + ["Q1"] * 4 + ["V0"] * 2 + ["V1"] * 2
    def groups(name):
        if name[0] == "Q":
            if int(name[1]) >= NQ: return []
            order.extend([name] * 4); return q_dma_groups()
        order.extend([name] * 2); return coop_groups(0 if name[0] == "K" else 1, int(name[1]))
    def issue(name):
        if name[0] == "Q":
            if int(name[1]) >= NQ: return
            emit_q_dma(); order.extend([name] * 4)
        elif name[0] == "T":
            emit_dma_tile_plain(); order.extend([name] * 16)
        else:
            emit_coop(0 if name[0] == "K" else 1, int(name[1])); order.extend([name] * 2)
    def wstr(name):
        a = len(order) - 1 - max(i for i, x in enumerate(order) if x == name)
        return f"s_waitcnt vmcnt({min(63, a)})"
    def wait(name): g.e(wstr(name))
    if dma:
        g.e(f"s_add_u32 s{S_DOFF}, s{S_HOFF}, {4*TILE}")
        g.e(f"s_add_u32 s{S_D2}, s{S_DOFF}, 4096")
        g.e(f"s_mov_b32 s{S_DCNT}, 4")
        g.e(f"s_mov_b32 s{S_DSLOT}, 0")
        g.e(f"s_mov_b32 s{S_OOB}, 0x10000000")
        g.e(f"v_lshlrev_b32 v{CPF+6}, 3, v{OOFF}")
        for i, lab in enumerate(("L_trans_w0", "L_trans_w3", "L_trans_w0+8192", "L_trans_w3+8192", "L_trans_w3+16384", "L_trans_w0+16384")):
            g.e(f"v_add_u32 v{CPF+i}, {lab}-L_pc0, v{CPF+6}")
    stamp(1)
    topup = {1: ["Q4"], 2: ["Q5"], 3: ["K2", "K3"], 4: ["V2", "V3"]}
    if dma: topup = {1: ["Q4"], 2: ["K2", "K3"], 3: ["V2", "V3"], 4: ["T4"]}
    if "deep" in X:
        topup = {1: ["Q4", "Q5"], 2: ["K2", "K3"], 3: ["V2", "V3"]}
        if dma: topup = {1: ["Q4"], 2: ["K2", "K3"], 3: ["V2", "V3"], 4: ["T4"]}
    if "tl1" in X and dma: topup = {1: ["Q4"], 3: ["K2", "K3"], 4: ["V2", "V3"]}
    if "tl2" in X and dma: topup = {1: ["Q4"], 2: ["K2", "K3"], 3: ["V2", "V3"]}
    UB = NQ - 1
    wait("Q0")
    stamp(16)
    g.es(q_reads(0))
    if "q2late" not in X: issue("Q2")
    g.e("s_waitcnt lgkmcnt(0)")
    g.es(prescale(0))
    if "q2late" in X: issue("Q2")
    wait("K1")
    g.e("s_barrier")
    stamp(2)
    g.es(bc_reads(0, UB))
    g.es(k_reads(0, 0))
    issue("Q3")
    g.e("s_waitcnt lgkmcnt(8)")
    pm = prepass_mfma(0, UB); kr = k_reads(1, 1)
    for i in range(4): g.e(pm[i]); g.es(kr[2 * i:2 * i + 2])
    g.e("s_nop 5")
    g.es(prepass_neg(0))
    g.e("s_waitcnt lgkmcnt(8)")
    g.e("s_nop 0")
    n = 0
    def prevpair(m): return (m & 1, m >> 1)
    def mkstep(n):
        sm = None; pv = None
        if n >= 1: sm = (prevpair(n - 1)[1], prevpair(n - 1)[0] == 0)
        if n >= 2: pv = (prevpair(n - 2)[0], prevpair(n - 2)[1], prevpair(n - 2)[0] == 0)
        return Step(n, prevpair(n), sm, pv)
    for u in range(NQ):
        if dma and u == NQ - 1:
            if "tl1" in X or "tl2" in X: issue("T4")
            issue("T5")
        st = mkstep(2 * u)
        k = len(st.M)
        if u == 1: st.salu[7].append("s_waitcnt lgkmcnt(0)")
        if u < NQ - 1:
            st.salu[k - 5].append(wstr(f"Q{u+1}"))
            st.add_mem(q_reads(u + 1), [k - 5, k - 5, k - 3, k - 3])
            if u == 0: st.post = []
        else:
            kr = k_reads(2, 0)
            st.salu[7].append(wstr("K3"))
            st.salu[8].append("s_barrier")
            st.add_mem(kr[:4], [8, 10, 11, 13])
        st.emit()
        if u == 1: g.e("s_barrier")
        st = mkstep(2 * u + 1)
        if u < NQ - 1:
            stamp(17 + u)
            g.e("s_waitcnt lgkmcnt(0)")
            g.es(prescale(u + 1))
            if u == 0:
                wait("V1")
                g.e("s_barrier")
                stamp(3)
            st.prepend(prepass_mfma(u + 1, UB))
            gs = []
            for x in topup.get(u + 1, []):
                if x[0] == "T": issue(x)
                else: gs += groups(x)
            for i, gi in enumerate(gs): st.mem[i if len(gs) <= 4 else (0, 1, 2, 3, 5, 7, 9, 11)[i]] += gi
            st.pre.append("s_nop 1")
            k = len(st.M)
            for x, p in zip(prepass_neg(u + 1), (k - 5, k - 4, k - 3, k - 2)): st.valu[p] = st.valu[p] + [x]
            if u == 0:
                vv = v_reads(0, 0) + v_reads(1, 1)
                st.add_mem(vv, [i * k // 32 for i in range(32)])
        else:
            st.add_mem(kr[4:], [0, 0, 2, 2])
            st.salu[15].append("s_waitcnt lgkmcnt(0)")
        st.emit()
    n = 2 * NQ
    st = Step(n, (0, 0), (NQ - 1, False), (0, NQ - 1, True))
    st.add_mem(k_reads(3, 1), [0, 0, 2, 2, 4, 6, 8, 10])
    st.salu[15].append(wstr("V3"))
    st.emit(); n += 1
    st = Step(n, (0, 1), (0, False), (1, NQ - 1, False))
    st.salu[0].append("s_barrier")
    st.add_mem(v_reads(2, 0), [0, 0, 1, 1, 2, 2, 3, 3, 4, 4, 5, 6, 7, 8, 9, 10])
    st.emit(); n += 1
    assert n == NQ * 2 + 2
    g.e("s_waitcnt lgkmcnt(0)")
    g.e("s_barrier")
    if dma:
        g.e(f"s_add_u32 s{S_QPO}, s{S_HOFF2}, s{S_CROW}")
        g.e(f"s_mov_b32 s{S_QPL}, {STAGE}")
        for _ in range(2):
            pre, ld, post = qpf_group()
            g.es(pre + ["s_nop 0"] + ld + post[:2])
        emit_dma_tile_plain(advance=False)
    g.e(f"s_mov_b32 s{S_CNT}, 0")
    stamp(4)
    def emit_loop(name, extra, chk0, chk1):
        g.L.append(".p2align 3")
        g.lab(f"L_{name}_{tag}")
        for ph in (2, 3, 0, 1):
            if ph == 0: g.lab(f"L_{name}0_{tag}")
            steps = make_body(NQ, ph, dma, extra=extra)
            if ph == 2 and chk0:
                steps[-1].salu[15].append(f"s_cmp_eq_u32 s{S_CNT}, 10")
            if ph == 1:
                steps[-1].salu[13].append(f"s_add_u32 s{S_CNT}, s{S_CNT}, 1")
                if chk1:
                    steps[-1].salu[15].append(f"s_cmp_lt_u32 s{S_CNT}, 4" if dma else f"s_cmp_lg_u32 s{S_CNT}, 5")
            for st in steps: st.emit()
            if ph == 2 and chk0: g.e(f"s_cbranch_scc1 L_final_{tag}")
        if chk1:
            g.e(f"s_cbranch_scc1 L_{name}_{tag}")
            if dma:
                g.e(f"s_cmp_eq_u32 s{S_CNT}, 5")
                g.e(f"s_cbranch_scc1 L_trans_{tag}")
                for i in range(6): g.e(f"global_load_dword v{CPF+6}, v{CPF+i}, s[58:59]")
                g.e(f"s_branch L_{name}_{tag}")
        else: g.e(f"s_branch L_{name}_{tag}")
    if dma: emit_loop("loop", "Q", False, True)
    else: emit_loop("loop", None, True, True)

    def emit_special(t, final):
        steps = make_body(NQ, t, dma, last=final, newround=True, extra=("dummy" if dma and not final else None))
        nt = NT_O1 if final else NT_O0
        for k, st in enumerate(steps):
            bit = (6 if final else 0) + k
            if final or k == 0:
                add_lreduce(st, k, bit)
                if not final: st.add_mem(q_reads(k), [4, 4, 6, 6])
            else:
                if k == 1: st.pre.append("s_waitcnt lgkmcnt(0)")
                st.pre.append("s_nop 1")
                st.prepend(prepass_mfma(k - 1, 0))
                st.add_mem(q_reads(k), [1, 1, 3, 3])
                for gi, p in zip(l_reduce(k, bit), (0, 2, 5, 7, 9, 11)): st.valu[p] = st.valu[p] + gi
                for x, p in zip(bad_flag(bit), (13, 14, 15)): st.salu[p].append(x)
                for x, p in zip(prepass_neg(k - 1), (13, 14, 15, 16)): st.valu[p] = st.valu[p] + [x]
            fine = ("fine" in X) and not final and k == int(E("FK", "2"))
            if fine: stamp(8)
            st.emit()
            g.e("s_waitcnt lgkmcnt(0)")
            if fine: stamp(9)
            if k > 0 and final: g.es(o_stores(k - 1, nt))
            if fine: stamp(14)
            L, rb = epilogue_ops(k, st.n)
            g.es(L)
            if not final and k == 0: g.es(bc_reads((t + 1) % R, 0))
            if final: g.es(rb)
            if fine: stamp(15)
            if not final: g.es(prescale(k))
            if fine: stamp(22)
        return nt
    g.lab(f"L_trans_{tag}")
    stamp(5)
    nt = emit_special(22, False)
    stamp(6)
    steps = make_body(NQ, 23, dma, first=True, extra=("dummy" if dma else None))
    st = steps[0]
    st.pre += ["s_nop 1"]
    st.prepend(prepass_mfma(NQ - 1, 0))
    for x, p in zip(prepass_neg(NQ - 1), (13, 14, 15, 16)): st.valu[p] = st.valu[p] + [x]
    if dma:
        st.salu[0].append(f"s_add_u32 s{S_QPO}, s{S_HOFF}, s{S_CROW}")
        st.salu[1].append(f"s_mov_b32 s{S_QP}, 23")
        st.valu[0].append(f"v_add_u32 v{ORD}, {STAGE}, v{DK}")
        st.valu[1].append(f"v_add_u32 v{ORD+1}, {STAGE}, v{DK+1}")
    for st in steps: st.emit()
    stamp(10)
    if dma:
        g.e(f"s_branch L_loopb0_{tag}")
        emit_loop("loopb", "O", True, False)
    else:
        g.e(f"s_branch L_loop0_{tag}")
    g.lab(f"L_final_{tag}")
    stamp(11)
    nt = NT_O1
    ks = NQ - 2
    steps = make_body(NQ, 43, False)[:ks]
    if dma:
        w = steps[-1].salu[-1]
        assert w == ["s_waitcnt lgkmcnt(0)"]
        steps[-1].salu[-1] = ["s_waitcnt vmcnt(32) lgkmcnt(0)"]
    for st in steps: st.emit()
    stamp(8)
    def pair(m):
        if m < 0: return (1, NQ + m)
        return (m & 1, m >> 1)
    vr45 = v_reads(45 % R, 1)
    for m in range(2 * NQ + 2):
        n = NQ * 44 + m
        qk = pair(m) if m < 2 * NQ else None
        sm = (pair(m - 1)[1], False) if m - 1 < 2 * NQ else None
        pv = pair(m - 2) + (False,)
        has_st = m >= 4 and m % 2 == 0
        st = Step(n, qk, sm, pv, alt=has_st)
        if m == 0:
            st.salu[0].append("s_barrier")
            st.add_mem(k_reads(45 % R, 1), [0, 0, 1, 2, 2, 3, 4, 5])
            st.salu[15].append("s_waitcnt lgkmcnt(0)")
        if m == 1: st.add_mem(vr45[:6], [10, 11, 12, 13, 14, 15])
        if m == 2: st.add_mem(vr45[6:], [0, 0, 1, 2, 2, 3, 4, 6, 8, 10])
        if m == 3: st.salu[7].append("s_waitcnt lgkmcnt(0)")
        if has_st:
            u = (m - 4) // 2
            so = o_stores(u, nt)
            if len(st.M) == 16:
                st.salu[8].append("s_waitcnt lgkmcnt(0)")
                st.add_mem(so[:4], [9, 9, 12, 12])
                st.salu[14].append(so[4])
            else:
                st.salu[3].append("s_waitcnt lgkmcnt(0)")
                st.add_mem(so[:4], [3, 4, 5, 6])
                st.salu[7].append(so[4])
        if m >= 3 and m % 2 == 1:
            u = (m - 3) // 2
            add_lreduce(st, u, 6 + u)
        st.emit()
        if m >= 3 and m % 2 == 1:
            L, rb = epilogue_ops(u, n)
            g.es(L); g.es(rb)
    g.e("s_waitcnt lgkmcnt(0)")
    g.es(o_stores(NQ - 1, nt))
    stamp(12)
    g.e(f"s_cmp_lg_u32 s{S_BAD}, 0")
    g.e("s_cbranch_scc1 L_slow")
    stamp_out()
    g.e("s_endpgm")

def emit_slow():
    SB_, ST_, SH_, SR_, SX_ = 60, 61, 62, 63, 58
    VT = Q(1, 0)
    M_ = Q(2, 0)
    o = OVB; l = LB; c = CB; sreg = SB; p = PB
    def tile_dma(which, ldsoff):
        srd = SK if which == 0 else SV
        for hh in range(2):
            g.e(f"s_add_u32 m0, s{S_STG}, {ldsoff + hh*4096}")
            g.e(f"s_add_u32 s{SX_}, s{ST_}, {hh*4096}")
            for i in range(4):
                va = DK + i if which == 0 else DV + (i & 1)
                g.e(f"buffer_load_dwordx4 v{va}, s[{srd}:{srd+3}], s{SX_} offen offset:{i*1024} lds")
    def kreads():
        for kt in range(2):
            for s_ in range(4): g.e(f"ds_read_b128 {Kf(0, kt*4+s_)}, v{QA+s_} offset:{4096+kt*4096}")
    def qk(cz):
        for kt in range(2):
            for s_ in range(4):
                d = vr(sreg + kt * 4)
                g.e(mfma(d, Kf(0, kt * 4 + s_), vr(Q(0, s_)), (("0" if cz else vr(c)) if s_ == 0 else d)))
        g.e("s_nop 7")
    def xlane(r, t, op):
        for sw in ("v_permlane16_swap_b32", "v_permlane32_swap_b32"):
            g.es([f"v_mov_b32 v{t}, v{r}", "s_nop 1", f"{sw} v{r}, v{t}", "s_nop 1", f"{op} v{r}, v{r}, v{t}"])
    g.lab("L_slow")
    g.e(f"s_sub_u32 s{SX_}, s{S_STG}, {VBASE - 12288}")
    for j in range(8): g.e(f"v_add_u32 v{VT+j}, s{SX_}, v{VAD+j}")
    g.lab("L_slow_next")
    g.e("s_waitcnt vmcnt(0) lgkmcnt(0)")
    g.e(f"s_ff1_i32_b32 s{SB_}, s{S_BAD}")
    g.e(f"s_bitset0_b32 s{S_BAD}, s{SB_}")
    g.e(f"s_cmp_ge_u32 s{SB_}, 6")
    g.e(f"s_cselect_b32 s{SH_}, s{S_HOFF2}, s{S_HOFF}")
    g.e(f"s_cselect_b32 s{SX_}, 6, 0")
    g.e(f"s_sub_u32 s{SB_}, s{SB_}, s{SX_}")
    g.e(f"s_lshl_b32 s{SB_}, s{SB_}, 12")
    g.e(f"s_add_u32 s{SR_}, s{SH_}, s{S_ROWB}")
    g.e(f"s_add_u32 s{SR_}, s{SR_}, s{SB_}")
    g.e(f"s_mov_b32 m0, s{S_STG}")
    g.e("s_nop 0")
    for i in range(4):
        g.e(f"buffer_load_dwordx4 v{DK+i}, s[{SQ}:{SQ+3}], s{SR_} offen offset:{i*1024} lds")
    g.e("s_waitcnt vmcnt(0)")
    g.es(q_reads(0))
    g.e("s_waitcnt lgkmcnt(0)")
    g.es(prescale(0))
    g.e(f"v_mov_b32 v{M_}, 0xff800000")
    g.e(f"s_mov_b32 s{ST_}, s{SH_}")
    g.e(f"s_add_u32 s{SB_}, s{SH_}, {HEAD_BYTES}")
    g.lab("L_slow_p1")
    tile_dma(0, 4096)
    g.e("s_waitcnt vmcnt(0)")
    kreads()
    g.e("s_waitcnt lgkmcnt(0)")
    qk(True)
    for i in range(0, 8, 2): g.e(f"v_max3_f32 v{M_}, v{M_}, v{sreg+i}, v{sreg+i+1}")
    g.e(f"s_add_u32 s{ST_}, s{ST_}, {TILE}")
    g.e(f"s_cmp_lt_u32 s{ST_}, s{SB_}")
    g.e("s_cbranch_scc1 L_slow_p1")
    xlane(M_, M_ + 1, "v_max_f32")
    for k in range(4): g.e(f"v_sub_f32 v{c+k}, 0, v{M_}")
    for k in range(32): g.e(f"v_mov_b32 v{o+k}, 0")
    g.e(f"v_mov_b32 v{l}, 0")
    g.e(f"s_mov_b32 s{ST_}, s{SH_}")
    g.lab("L_slow_p2")
    tile_dma(0, 4096)
    tile_dma(1, 12288)
    g.e("s_waitcnt vmcnt(0)")
    kreads()
    g.e("s_waitcnt lgkmcnt(0)")
    for j in range(8):
        for h in range(2): g.e(f"ds_read_b64_tr_b16 {Vf(0, j, 2, 2*h)}, v{VT+j} offset:{h*4096}")
    qk(False)
    for i in range(8): g.e(f"v_exp_f32 v{sreg+i}, v{sreg+i}")
    g.e("s_nop 0")
    for i in range(8): g.e(f"v_add_f32 v{l}, v{l}, v{sreg+i}")
    for i in range(4): g.e(f"v_cvt_pk_bf16_f32 v{p+i}, v{sreg+2*i}, v{sreg+2*i+1}")
    g.e("s_waitcnt lgkmcnt(0)")
    g.e("s_nop 1")
    for j in range(8): g.e(mfma(vr(o + 4 * j), Vf(0, j), vr(p), vr(o + 4 * j)))
    g.e(f"s_add_u32 s{ST_}, s{ST_}, {TILE}")
    g.e(f"s_cmp_lt_u32 s{ST_}, s{SB_}")
    g.e("s_cbranch_scc1 L_slow_p2")
    xlane(l, l + 1, "v_add_f32")
    g.e(f"v_rcp_f32 v{l}, v{l}")
    g.e("s_nop 7")
    for k in range(0, 32, 2): g.e(f"v_pk_mul_f32 v[{o+k}:{o+k+1}], v[{o+k}:{o+k+1}], v[{l}:{l+1}] op_sel_hi:[1,0]")
    for k in range(16): g.e(f"v_cvt_pk_bf16_f32 v{o+k}, v{o+2*k}, v{o+2*k+1}")
    for j in range(8): g.e(f"ds_write_b64 v{EW+(j&3)}, v[{o+2*j}:{o+2*j+1}] offset:{(j>>2)*128}")
    for i in range(4): g.e(f"ds_read_b128 {vr(o+16+4*i)}, v{ER+(i&1)} offset:{i*1024}")
    g.e("s_waitcnt lgkmcnt(0)")
    for i in range(4): g.e(f"buffer_store_dwordx4 {vr(o+16+4*i)}, v{OOFF}, s[{SO}:{SO+3}], s{SR_} offen offset:{i*1024}")
    g.e(f"s_cmp_lg_u32 s{S_BAD}, 0")
    g.e("s_cbranch_scc1 L_slow_next")
    g.e("s_endpgm")

def emit_addr_setup():
    for s in range(4):
        g.e(f"v_add_u32 v5, {4*s}, v14")
        g.e("v_xor_b32 v5, v5, v13")
        g.e("v_lshlrev_b32 v5, 4, v5")
        g.e(f"v_lshl_add_u32 v{KAD+s}, v13, 8, v5")
    g.e("v_lshrrev_b32 v6, 2, v12")
    g.e("v_and_b32 v7, 3, v12")
    g.e("v_lshlrev_b32 v8, 8, v6")
    g.e("v_lshl_add_u32 v8, v7, 3, v8")
    g.e(f"v_add_u32 v8, {VBASE}, v8")
    g.e("v_and_b32 v6, 7, v6")
    for j in range(8):
        g.e(f"v_xor_b32 v5, {j}, v6")
        g.e(f"v_lshl_add_u32 v{VAD+j}, v5, 5, v8")
    g.e(f"v_lshlrev_b32 v{OOFF}, 4, v12")
    g.e("v_lshrrev_b32 v5, 1, v14")
    g.e("v_and_b32 v6, 7, v13")
    g.e("v_xor_b32 v5, v5, v6")
    g.e("v_lshlrev_b32 v5, 4, v5")
    g.e("v_lshl_add_u32 v5, v13, 8, v5")
    g.e("v_and_b32 v6, 1, v14")
    g.e("v_lshl_add_u32 v5, v6, 3, v5")
    g.e(f"v_add_u32 v{EW}, s{S_STG}, v5")
    for j in range(1, 4): g.e(f"v_xor_b32 v{EW+j}, {j<<5}, v{EW}")
    g.e(f"v_add_u32 v{ER}, s{S_STG}, v{DK}")
    g.e(f"v_add_u32 v{ER+1}, s{S_STG}, v{DK+1}")
    for s in range(4): g.e(f"v_add_u32 v{QA+s}, s{S_STG}, v{KAD+s}")
    g.e(f"s_mov_b32 s{S_C}, {hex(f2u(CSCALE))}")
    g.e(f"s_mov_b32 s{S_C+1}, {hex(f2u(CSCALE))}")
    g.e(f"s_mov_b32 s{S_THR}, {hex(f2u(2.0**64))}")
    g.e(f"s_mov_b32 s{S_BAD}, 0")
    g.e(f"s_mov_b32 s{S_MASK}, 0xffff0000")
    g.e(f"s_mov_b32 s{S_POFF}, {hex(f2u(POFF))}")
    g.e(f"s_add_u32 s{S_OST}, s{S_HOFF2}, s{S_ROWB}")

def main():
    hdr = open("cdna_kernels/" + NAME + ".s.ref").read().split("; @launch")[0]
    out = hdr + f"; @launch grid=(256,1,1) block=(256,1,1) lds={LDS_BYTES}\n"
    out += f'''.amdgcn_target "amdgcn-amd-amdhsa--gfx950"
.text
.globl {NAME}_kernel
.p2align 8
.type {NAME}_kernel,@function
{NAME}_kernel:
'''
    if STAMP:
        if STAMP != 3:
            g.es(["s_memrealtime s[38:39]", "s_waitcnt lgkmcnt(0)", "s_mov_b32 s94, s38"])
        stamp(0)
        if STAMP != 3:
            for i in range(65, 88): g.e(f"s_mov_b32 s{i}, s64")
    g.e("s_load_dwordx8 s[40:47], s[0:1], 0")
    g.e("s_cmp_ge_u32 s2, 256")
    g.e("s_cbranch_scc1 L_done")
    if "pf0" in X:
        g.e("s_getpc_b64 s[58:59]")
        g.lab("L_pc0")
        g.e("v_lshlrev_b32 v16, 7, v0")
        g.e("v_cmp_lt_u32 vcc, 127, v0")
        g.e(f"v_mov_b32 v17, L_start_w3-L_pc0-16384")
        g.e("s_nop 0")
        g.e("v_cndmask_b32 v17, 0, v17, vcc")
        g.e("v_add_u32 v16, v16, v17")
        g.e("global_load_dword v17, v16, s[58:59]")
    g.e("v_lshrrev_b32 v11, 6, v0")
    g.e("v_and_b32 v12, 63, v0")
    g.e(f"v_readfirstlane_b32 s{S_WAVE}, v11")
    g.e("v_and_b32 v13, 15, v12")
    g.e("v_lshrrev_b32 v14, 4, v12")
    g.e("s_and_b32 s3, s2, 7")
    g.e("s_lshr_b32 s4, s2, 3")
    g.e("s_lshr_b32 s5, s4, 1")
    g.e("s_and_b32 s4, s4, 1")
    g.e("s_lshl_b32 s3, s3, 5")
    g.e("s_add_u32 s3, s3, s5")
    g.e(f"s_mul_i32 s{S_HOFF}, s3, {HEAD_BYTES}")
    g.e(f"s_add_u32 s{S_HOFF2}, s{S_HOFF}, {16*HEAD_BYTES}")
    g.e(f"s_mul_i32 s{S_CROW}, s4, {368*256}")
    g.e(f"s_mul_i32 s5, s{S_WAVE}, {96*256}")
    g.e(f"s_add_u32 s{S_ROWB}, s{S_CROW}, s5")
    g.e(f"s_add_u32 s{S_STG}, s5, {STAGE}")
    g.e(f"s_add_u32 s{S_QPO}, s{S_HOFF}, s{S_ROWB}")
    g.e(f"s_mov_b32 s{S_QPL}, s{S_STG}")
    g.e("v_lshlrev_b32 v15, 8, v14")
    for i in range(4):
        g.e(f"v_add_u32 v5, {4*i}, v14")
        g.e("v_xor_b32 v5, v5, v13")
        g.e(f"v_lshl_add_u32 v{DK+i}, v5, 4, v15")
    for i in range(2):
        g.e(f"v_lshl_add_u32 v5, v14, 1, {8*i}")
        g.e("v_xor_b32 v5, v5, v13")
        g.e(f"v_lshl_add_u32 v{DV+i}, v5, 4, v15")
    g.e("v_lshl_add_u32 v5, v11, 2, v14")
    g.e("v_xor_b32 v6, v5, v13")
    g.e(f"v_lshl_add_u32 v{CK_}, v6, 4, v15")
    g.e("v_and_b32 v5, 7, v5")
    g.e("v_lshlrev_b32 v5, 1, v5")
    g.e("v_xor_b32 v6, v5, v13")
    g.e(f"v_lshl_add_u32 v{CV_}, v6, 4, v15")
    g.e(f"s_lshl_b32 s{S_CW}, s{S_WAVE}, 10")
    g.e(f"s_add_u32 s{S_CG}, s{S_HOFF}, s{S_CW}")
    g.e("s_waitcnt lgkmcnt(0)")
    for i, srd in ((0, SQ), (1, SK)):
        g.e(f"s_mov_b32 s{srd}, s{40+2*i}")
        g.e(f"s_and_b32 s{srd+1}, s{41+2*i}, 0xffff")
        g.e(f"s_mov_b32 s{srd+2}, {TOTAL_BYTES}")
        g.e(f"s_mov_b32 s{srd+3}, 0x20000")
    stamp(7); emit_q_dma(); emit_coop(0, 0); emit_coop(0, 1)
    emit_addr_setup()
    for i, srd in ((2, SV), (3, SO)):
        g.e(f"s_mov_b32 s{srd}, s{40+2*i}")
        g.e(f"s_and_b32 s{srd+1}, s{41+2*i}, 0xffff")
        g.e(f"s_mov_b32 s{srd+2}, {TOTAL_BYTES}")
        g.e(f"s_mov_b32 s{srd+3}, 0x20000")
    emit_q_dma(); emit_coop(1, 0); emit_coop(1, 1)
    g.e(f"s_cmp_eq_u32 s{S_WAVE}, 3")
    g.e("s_cbranch_scc1 L_start_w3")
    emit_variant(6, False, "w0")
    emit_variant(5, True, "w3")
    emit_slow()
    g.lab("L_done")
    g.e("s_endpgm")
    if "pf" in X: g.L.append(".fill 2048, 4, 0xbf810000")
    out += "\n".join(g.L) + "\n"
    out += f'''.section .rodata,"a"
.p2align 6
.amdhsa_kernel {NAME}_kernel
  .amdhsa_next_free_vgpr 512
  .amdhsa_next_free_sgpr 96
  .amdhsa_accum_offset 256
  .amdhsa_group_segment_fixed_size 0
  .amdhsa_kernarg_size 48
  .amdhsa_user_sgpr_count 2
  .amdhsa_user_sgpr_kernarg_segment_ptr 1
  .amdhsa_system_sgpr_workgroup_id_x 1
.end_amdhsa_kernel
'''
    fn = sys.argv[1] if len(sys.argv) > 1 else "cdna_kernels/" + NAME + ".s"
    open(fn, "w").write(out)
main()
```

```python
import sys, os, struct
NAME = "standalone__gqa_softmax__near_ridge"
R = 4
TILE = 8192
VBASE = R * TILE
STAGE = 2 * R * TILE
LDS_BYTES = STAGE + 24 * 4096
HEAD_BYTES = 736 * 256
TOTAL_BYTES = 256 * HEAD_BYTES
E = os.environ.get
STAMP = int(E("STAMP", "0"))
NT_KV = E("NT_KV", " nt"); NT_Q = E("NT_Q", " nt"); NT_O0 = E("NT_O0", " sc1"); NT_O1 = E("NT_O1", " sc1")
X = E("X", "pf,pf0,tl1,rot").split(",")
def f2u(x): return struct.unpack("<I", struct.pack("<f", x))[0]
CSCALE = 1.4426950408889634 / (128 ** 0.5)

CUR_NQ = [6]
OVB = 112
def Oisv(u): return u >= CUR_NQ[0] - 2
def Obase(u): return OVB + (u - (CUR_NQ[0] - 2)) * 32 if Oisv(u) else u * 32
def Or(u, off, n=4):
    b = Obase(u) + off
    return (f"v[{b}:{b+n-1}]" if Oisv(u) else f"a[{b}:{b+n-1}]")
KA = 128; VA = 192
QB = 16; SB = 176; PB = 192; CB = 200; LB = 224
KAD = 236; VAD = 240
DK = 248; DV = 252; OOFF = 254
EW = 2
ER = 6
QA = 8
PT = 12
CK_ = 255
CV_ = 1
def Q(u, s): return QB + (u * 4 + s) * 4
def vr(b, n=4): return f"v[{b}:{b+n-1}]"
def ar(b, n=4): return f"a[{b}:{b+n-1}]"
def Kf(par, f, n=4, o=0): return ar(KA + par * 32 + f * 4 + o, n)
def Vf(par, j, n=4, o=0): return ar(VA + par * 32 + j * 4 + o, n)
SQ, SK, SV, SO = 8, 12, 16, 20
S_WAVE = 24; S_HOFF = 25; S_HOFF2 = 26; S_BAD = 27; S_CNT = 28; S_T = 29
S_C = 30
S_DOFF = 32; S_DCNT = 33; S_DSLOT = 34; S_D2 = 35; S_THR = 36; S_OOB = 37
S_ROWB = 50; S_STG = 51; S_QP = 52; S_QPO = 53; S_QPL = 54; S_OST = 55; S_T2 = 56
S_MASK = 57
S_POFF = 61
POFF = float(E('POFF', '-11'))
S_CROW = 63
S_INC = 62
CPF = 98
ORD = 96
ODAT = 96
S_CW = 6; S_CG = 7

class G:
    def __init__(self): self.L = []
    def e(self, s): self.L.append("    " + s)
    def es(self, l):
        for s in l: self.e(s)
    def lab(self, s): self.L.append(s + ":")
    def c(self, s): self.L.append("    ; " + s)
g = G()

NSPIN = 0
SKIP_FIRST = [False]
def stamp(i):
    if not STAMP: return
    g.e("s_memrealtime s[38:39]" if STAMP in (3, 4) else "s_memtime s[38:39]")
    g.e("s_waitcnt lgkmcnt(0)")
    g.e(f"s_mov_b32 s{64+i}, s38")
def stamp_out():
    if not STAMP: return
    g.e("s_waitcnt vmcnt(0)")
    stamp(13)
    if STAMP == 3:
        ph = int(E("PH", "0"))
        global NSPIN
        NSPIN += 1
        g.e(f"s_add_u32 s3, s{64+ph}, 10000")
        g.lab(f"L_spin{NSPIN}")
        g.es(["s_sleep 2", "s_memrealtime s[38:39]", "s_waitcnt lgkmcnt(0)", "s_sub_u32 s4, s3, s38", "s_cmp_gt_i32 s4, 0", f"s_cbranch_scc1 L_spin{NSPIN}"])
        return
    g.e("s_memrealtime s[38:39]")
    g.e("s_load_dwordx2 s[48:49], s[0:1], 40")
    g.e("s_waitcnt lgkmcnt(0)")
    g.e("s_mov_b32 s95, s38")
    g.e("s_lshl_b32 s3, s2, 2")
    g.e(f"s_add_u32 s3, s3, s{S_WAVE}")
    g.e("s_lshl_b32 s3, s3, 7")
    g.e("v_mov_b32 v2, s3")
    g.e("s_mov_b64 exec, 1")
    for i in list(range(24)) + [30, 31]:
        g.e(f"v_mov_b32 v3, s{64+i}")
        g.e(f"global_store_dword v2, v3, s[48:49] offset:{i*4}")

def mfma(d, a, b, c): return f"v_mfma_f32_16x16x32_bf16 {d}, {a}, {b}, {c}"
def qk_mfmas(u, par, sbuf):
    M = []
    for kt in range(2):
        for s in range(4):
            d = vr(SB + sbuf * 8 + kt * 4)
            c = vr(CB + u * 4) if s == 0 else d
            M.append(mfma(d, Kf(par, kt * 4 + s), vr(Q(u, s)), c))
    return M
def pv_mfmas(u, par, pbuf, first):
    return [mfma(Or(u, 4 * j), Vf(par, j), vr(PB + pbuf * 4), E("OBIAS", "0") if first else Or(u, 4 * j)) for j in range(8)]
def sm_units(u, buf, first, alt=False):
    s = SB + buf * 8; p = PB + buf * 4
    Ex = lambda i: f"v_exp_f32 v{s+i}, v{s+i}"
    def A(i):
        l = LB + u * 2 + (i & 1)
        if first and i < 2: return f"v_mov_b32 v{l}, v{s+i}"
        return f"v_add_f32 v{l}, v{l}, v{s+i}"
    C = lambda i: f"v_cvt_pk_bf16_f32 v{p+i}, v{s+2*i}, v{s+2*i+1}"
    if alt:
        return [[Ex(0)], [Ex(1)], [Ex(2)], [A(0), A(1)], [Ex(3)], [C(0), A(2)], [Ex(4)], [A(3), C(1)], [Ex(5)], [],
                [Ex(6)], [A(4), A(5)], [], [Ex(7)], [C(2), A(6)], [A(7), C(3)]]
    return [[], [Ex(0)], [], [Ex(1)], [Ex(2)], [A(0), A(1)], [Ex(3)], [C(0), A(2)], [Ex(4)], [A(3), C(1)],
            [Ex(5)], [Ex(6)], [A(4), A(5)], [Ex(7)], [C(2), A(6)], [A(7), C(3)]]
def k_reads(slot, par):
    return [f"ds_read_b128 {Kf(par, kt*4+s)}, v{KAD+s} offset:{slot*TILE+kt*4096}" for kt in range(2) for s in range(4)]
def v_reads(slot, par):
    return [f"ds_read_b64_tr_b16 {Vf(par, j, 2, 2*h)}, v{VAD+j} offset:{slot*TILE+h*4096}" for j in range(8) for h in range(2)]
def q_reads(u):
    return [f"ds_read_b128 {vr(Q(u,s))}, v{QA+s} offset:{u*4096}" for s in range(4)]

class Step:
    def __init__(self, n, qk, sm, pv, alt=False):
        self.M = (qk_mfmas(qk[1], qk[0], n & 1) if qk else []) + (pv_mfmas(pv[1], pv[0], n & 1, pv[2]) if pv else [])
        k = len(self.M)
        self.n = n
        self.salu = [[] for _ in range(k)]; self.mem = [[] for _ in range(k)]; self.valu = [[] for _ in range(k)]
        self.pre = []; self.post = []
        if sm:
            U = sm_units(sm[0], (n - 1) & 1, sm[1], alt and k == 16)
            if k == 16:
                for t in range(16): self.valu[t] = list(U[t])
            else:
                for t in range(8): self.valu[t] = U[2 * t] + U[2 * t + 1]
        if not qk: self.pre.append("s_nop 1")
        if not pv: self.post.append("s_nop 7")
    def prepend(self, ms):
        k = len(ms)
        self.M = list(ms) + self.M
        self.salu = [[] for _ in range(k)] + self.salu; self.mem = [[] for _ in range(k)] + self.mem; self.valu = [[] for _ in range(k)] + self.valu
    def add_mem(self, ops, pos):
        assert len(ops) == len(pos), (len(ops), len(pos))
        for o, p in zip(ops, pos): self.mem[p].append(o)
    def emit(self):
        if "nodma" in X: self.mem = [[x for x in m if not x.startswith("buffer_load")] for m in self.mem]
        if "nobar" in X: self.salu = [[x for x in m if not x.startswith("s_barrier")] for m in self.salu]
        if "e64" in X:
            self.valu = [[x.replace("v_exp_f32 ", "v_exp_f32_e64 ") for x in m] for m in self.valu]
        g.es(self.pre)
        for i, m in enumerate(self.M):
            g.e(m); g.es(self.salu[i]); g.es(self.mem[i]); g.es(self.valu[i])
        g.es(self.post)

def dma_tile_ops():
    ops = []
    for which in range(2):
        srd = SK if which == 0 else SV
        for hh in range(2):
            for i in range(4):
                pre = None
                if i == 0:
                    off = (VBASE if which else 0) + hh * 4096
                    pre = f"s_add_u32 m0, s{S_DSLOT}, {off}"
                so = S_DOFF if hh == 0 else S_D2
                va = DK + i if which == 0 else DV + (i & 1)
                ops.append((pre, f"buffer_load_dwordx4 v{va}, s[{srd}:{srd+3}], s{so} offen offset:{i*1024}{NT_KV} lds"))
    return ops
def dma_advance():
    return [
        f"s_add_u32 s{S_DCNT}, s{S_DCNT}, 1",
        f"s_add_u32 s{S_DOFF}, s{S_DOFF}, {TILE}",
        f"s_cmp_eq_u32 s{S_DCNT}, 23", f"s_cselect_b32 s{S_DOFF}, s{S_HOFF2}, s{S_DOFF}",
        f"s_cmp_eq_u32 s{S_DCNT}, 46", f"s_cselect_b32 s{S_DOFF}, s{S_OOB}, s{S_DOFF}",
        f"s_add_u32 s{S_D2}, s{S_DOFF}, 4096",
        f"s_add_u32 s{S_DSLOT}, s{S_DSLOT}, {TILE}",
        f"s_and_b32 s{S_DSLOT}, s{S_DSLOT}, {R*TILE-1}",
    ]
def emit_dma_tile_plain(advance=True):
    for pre, d in dma_tile_ops():
        if pre: g.e(pre); g.e("s_nop 0")
        g.e(d)
    if advance: g.es(dma_advance())
def place_dma(steps, slots):
    prev = None
    for (st, p), (pre, d) in zip(slots, dma_tile_ops()):
        if pre:
            if p > 0 and prev != (st, p - 1) and prev != (st, p) and not any("s_cmp" in x for x in st.salu[p - 2:p] for x in x):
                st.salu[p - 1].append(pre)
            else:
                st.mem[p] += [pre, "s_nop 0"]
        st.mem[p].append(d)
        prev = (st, p)
def q_dma_groups():
    G_ = [[f"buffer_load_dwordx4 v{DK+i}, s[{SQ}:{SQ+3}], s{S_QPO} offen offset:{i*1024}{NT_Q} lds"] for i in range(4)]
    G_[0] = [f"s_mov_b32 m0, s{S_QPL}", f"s_add_u32 s{S_QPL}, s{S_QPL}, 4096"] + G_[0]
    G_[3] = G_[3] + [f"s_add_u32 s{S_QPO}, s{S_QPO}, 4096"]
    return G_
def coop_groups(which, t):
    srd = SK if which == 0 else SV
    G_ = []
    for hh in range(2):
        off = t * TILE + hh * 4096
        G_.append([f"s_add_u32 m0, s{S_CW}, {off + (VBASE if which else 0)}", f"s_add_u32 s{S_T}, s{S_CG}, {off}",
                   f"buffer_load_dwordx4 v{CV_ if which else CK_}, s[{srd}:{srd+3}], s{S_T} offen{NT_KV} lds"])
    return G_
def emit_q_dma():
    for x in q_dma_groups(): g.es(x)
def emit_coop(which, t):
    for x in coop_groups(which, t): g.es(x)

def prescale(u, n):
    sb = SB + ((n - 1) & 1) * 8
    blk = [sb, sb + 4, PB + (n & 1) * 4, CB + 4 * u]
    q = Q(u, 0)
    H = lambda i: f"v_mfma_f32_4x4x4_16b_bf16 {vr(blk[i%4])}, v[{PT}:{PT+1}], v[{q+2*i}:{q+2*i+1}], 0"
    Lo = lambda i: f"v_mfma_f32_4x4x4_16b_bf16 {vr(blk[i%4])}, v[{PT+2}:{PT+3}], v[{q+2*i}:{q+2*i+1}], {vr(blk[i%4])}"
    C = lambda i, h: f"v_cvt_pk_bf16_f32 v{q+2*i+h}, v{blk[i%4]+2*h}, v{blk[i%4]+2*h+1}"
    seq = [("H", 0)]
    for i in range(0, 10):
        if i + 1 < 8: seq.append(("H", i + 1))
        if 0 <= i - 2 < 8: seq.append(("C0", i - 2))
        if i < 8: seq.append(("L", i))
        if 0 <= i - 2 < 8: seq.append(("C1", i - 2))
    L = []; pos = {}; cur = 0
    for kind, i in seq:
        need = 0
        if kind == "L": need = pos[("H", i)] + 1 + 2
        if kind[0] == "C": need = pos[("L", i)] + 1 + 5
        if cur < need:
            L.append(f"s_nop {need - cur - 1}"); cur = need
        L.append(H(i) if kind == "H" else Lo(i) if kind == "L" else C(i, int(kind[1])))
        pos[(kind, i)] = cur; cur += 1
    return L
def bc_reads(slot, ub):
    return [f"ds_read_b128 {Or(ub, 16+4*s_)}, v0 offset:{slot*TILE+s_*64}" for s_ in range(4)]
def prepass_mfma(u, ub):
    d = vr(CB + u * 4)
    return [mfma(d, Or(ub, 16 + 4 * s_), vr(Q(u, s_)), "0" if s_ == 0 else d) for s_ in range(4)]
def prepass_neg(u):
    c = CB + u * 4
    return [f"v_sub_f32 v{c+k}, s{S_POFF}, v{c+k}" for k in range(4)]
def l_reduce(u, bit):
    l = LB + 2 * u
    return [[f"v_add_f32 v{l}, v{l}, v{l+1}", f"v_mov_b32 v{l+1}, v{l}"],
            [f"v_permlane16_swap_b32 v{l}, v{l+1}"],
            [f"v_add_f32 v{l}, v{l}, v{l+1}", f"v_mov_b32 v{l+1}, v{l}"],
            [f"v_permlane32_swap_b32 v{l}, v{l+1}"],
            [f"v_add_f32 v{l}, v{l}, v{l+1}"],
            [f"v_cmp_ngt_f32 vcc, s{S_THR}, v{l}", f"v_rcp_f32 v{l}, v{l}"]]
def bad_flag(bit):
    return ["s_cmp_lg_u64 vcc, 0", f"s_cselect_b32 s{S_T2}, {1<<bit}, 0", f"s_or_b32 s{S_BAD}, s{S_BAD}, s{S_T2}"]
def epilogue_ops(u, n):
    l = LB + 2 * u
    L = []
    def wr(j, r): return f"ds_write_b64 v{EW+(j&3)}, v[{r}:{r+1}] offset:{u*4096+(j>>2)*128}"
    if Oisv(u):
        b = Obase(u)
        L += [f"v_pk_mul_f32 v[{b+k}:{b+k+1}], v[{b+k}:{b+k+1}], v[{l}:{l+1}] op_sel_hi:[1,0]" for k in range(0, 32, 2)]
        L += [f"v_cvt_pk_bf16_f32 v{b+k}, v{b+2*k}, v{b+2*k+1}" for k in range(16)]
        L += [wr(j, b + 2 * j) for j in range(8)]
        rb = [f"ds_read_b128 {Or(u, 16+4*i)}, v{ER+(i&1)} offset:{u*4096+i*1024}" for i in range(4)]
        return L, rb
    t = SB + ((n - 1) & 1) * 8
    P2 = [PB + (n & 1) * 4, CB + 4 * u]
    for jp in range(4):
        p = P2[jp & 1]
        L += [f"v_accvgpr_read_b32 v{t+k}, a{Obase(u)+8*jp+k}" for k in range(8)]
        L += [f"v_pk_mul_f32 v[{t+k}:{t+k+1}], v[{t+k}:{t+k+1}], v[{l}:{l+1}] op_sel_hi:[1,0]" for k in range(0, 8, 2)]
        L += [f"v_cvt_pk_bf16_f32 v{p+k}, v{t+2*k}, v{t+2*k+1}" for k in range(4)]
        if jp & 1:
            L += [wr(2 * jp - 2, P2[0]), wr(2 * jp - 1, P2[0] + 2), wr(2 * jp, P2[1]), wr(2 * jp + 1, P2[1] + 2)]
    rb = [f"ds_read_b128 {Or(u, 4*i)}, v{ER+(i&1)} offset:{u*4096+i*1024}" for i in range(4)]
    return L, rb
def o_stores(u, nt):
    if "nostore" in X: return ["s_nop 0"] * 5
    o = 16 if Oisv(u) else 0
    return [f"buffer_store_dwordx4 {Or(u, o+4*i)}, v{OOFF}, s[{SO}:{SO+3}], s{S_OST} offen offset:{i*1024}{nt}" for i in range(4)] + \
           [f"s_add_u32 s{S_OST}, s{S_OST}, 4096"]

def ngroups(t, extra="Q"): return 2 if (t % 4 == 2 and extra == "Q") else 1
def qpf_group():
    pre = [f"s_mov_b32 m0, s{S_QPL}"]
    ld = [f"buffer_load_dwordx4 v{DK+i}, s[{SQ}:{SQ+3}], s{S_QPO} offen offset:{i*1024}{NT_Q} lds" for i in range(4)]
    post = [f"s_add_u32 s{S_QPO}, s{S_QPO}, 4096", f"s_add_u32 s{S_QPL}, s{S_QPL}, 4096",
            f"s_min_u32 s{S_QPL}, s{S_QPL}, {STAGE + 23*4096}",
            f"s_cmp_eq_u32 s{S_QPL}, {STAGE + 23*4096}", f"s_cselect_b32 s{S_QPO}, s{S_OOB}, s{S_QPO}"]
    return pre, ld, post
def make_body(NQ, t, dma, first=False, last=False, newround=False, extra=None):
    par = t & 1
    steps = []
    for k in range(NQ):
        n = NQ * t + 2 + k
        uq = k + 2
        qk = (par, uq) if uq < NQ else (None if last else (par ^ 1, uq - NQ))
        us = k + 1
        if us < NQ: sm = (us, first)
        else: sm = None if last else (0, newround)
        steps.append(Step(n, qk, sm, (par, k, first)))
        M = steps[-1].M
        if len(M) == 16:
            if "ordB" in X: steps[-1].M = M[0:4] + M[8:12] + M[4:8] + M[12:16]
            if "ordC" in X: steps[-1].M = [M[0], M[1]] + [x for i in range(6) for x in (M[8 + i], M[2 + i])] + [M[14], M[15]]
            if "pvrev" in X and (n & 1): steps[-1].M = M[0:8] + M[8:16][::-1]
    ks = NQ - 2
    if not last:
        vr_ = v_reads((t + 1) % R, par ^ 1); kr_ = k_reads((t + 2) % R, par)
        if NQ == 6:
            for k in range(4): steps[k].add_mem(vr_[4 * k:4 * k + 4], [0, 0, 2, 2])
        else:
            steps[0].add_mem(vr_[0:6], [0, 0, 2, 2, 5, 9]); steps[1].add_mem(vr_[6:12], [0, 0, 2, 2, 5, 9]); steps[2].add_mem(vr_[12:16], [0, 0, 2, 2])
        steps[ks].add_mem(kr_[0:4], [0, 0, 2, 2]); steps[ks + 1].add_mem(kr_[4:8], [0, 0, 2, 2])
        nx = 4 * (ngroups(t, extra) + ngroups(t - 1, extra) + ngroups(t - 2, extra)) if extra in ("Q", "O") else 0
        w = f"s_waitcnt vmcnt({16*(R-2) + nx}) lgkmcnt(0)" if dma else "s_waitcnt lgkmcnt(0)"
        bp = int(E("BP", "0"))
        if bp == 0 or newround:
            steps[ks - 1].salu[-1].append(w)
            steps[ks].salu[0].append("s_barrier")
        else:
            steps[ks - 1].salu[-1 - bp].append(w)
            steps[ks - 1].salu[-bp].append("s_barrier")
        if dma:
            for q, a in enumerate(dma_advance()): steps[0].salu[1 + q].append(a)
            sl = [(steps[ks], p) for p in (3, 4, 6, 7, 9, 10, 12, 13, 15)] + [(steps[ks + 1], p) for p in (3, 4, 6, 8, 9, 10, 12)]
            place_dma(steps, sl)
        if extra == "Q":
            for gi in range(ngroups(t)):
                st = steps[1 + gi]
                pre, ld, post = qpf_group()
                st.salu[2] += pre
                st.add_mem(ld, [3, 4, 6, 8])
                for q, x in enumerate(post): st.salu[9 + q].append(x)
        if extra == "O":
            ng = 1
            for gi in range(ng):
                d = ODAT + 16 * gi
                rd = [f"ds_read_b128 {ar(d+4*i)}, v{ORD+(i&1)} offset:{gi*4096+i*1024}" for i in range(4)]
                steps[0].add_mem(rd, [10, 11, 12, 13] if gi == 0 else [14, 14, 15, 15])
                st = steps[1 + gi]
                so = [f"buffer_store_dwordx4 {ar(d+4*i)}, v{OOFF}, s[{SO}:{SO+3}], s{S_QPO} offen offset:{i*1024}{NT_O0}" for i in range(4)]
                if gi == 0:
                    st.salu[10].append("s_waitcnt lgkmcnt(6)")
                    st.add_mem(so, [10, 11, 13, 14])
                    st2, q0 = steps[2], 0
                    st.salu[15].append(f"s_add_u32 s{S_QPO}, s{S_QPO}, 4096")
                else:
                    st.add_mem(so, [4, 6, 7, 8])
                    st2, q0 = steps[2], 10
                    st.salu[9].append(f"s_add_u32 s{S_QPO}, s{S_QPO}, 4096")
                post = [f"s_sub_u32 s{S_QP}, s{S_QP}, 1", f"s_cmp_le_i32 s{S_QP}, 0", f"s_cselect_b32 s{S_QPO}, s{S_OOB}, s{S_QPO}"]
                for q, x in enumerate(post): st2.salu[q0 + q].append(x)
            steps[2].salu[13].append(f"s_cselect_b32 s{S_INC}, 0, {4096*ng}")
            steps[3].valu[5] = steps[3].valu[5] + [f"v_add_u32 v{ORD}, s{S_INC}, v{ORD}"]
            steps[3].valu[8] = steps[3].valu[8] + [f"v_add_u32 v{ORD+1}, s{S_INC}, v{ORD+1}"]
        if extra == "dummy":
            steps[1].add_mem([f"buffer_store_dwordx4 {ar(ODAT)}, v{OOFF}, s[{SO}:{SO+3}], s{S_OOB} offen" for _ in range(4 * ngroups(t))],
                             [3, 4, 6, 8, 10, 11, 13, 14][:4 * ngroups(t)])
    return steps

def add_lreduce(st, u, bit):
    Gs = l_reduce(u, bit)
    k = len(st.M)
    if k == 16:
        for gi, p in zip(Gs, (0, 2, 4, 6, 8, 10)): st.valu[p] = st.valu[p] + gi
        for x, p in zip(bad_flag(bit), (12, 13, 14)):
            st.salu[p].append(x)
    else:
        for i, gi in enumerate(Gs):
            st.valu[i] = st.valu[i] + (["s_nop 1"] if i in (1, 3) else []) + gi
        st.post += ["s_nop 1"] + bad_flag(bit)

def emit_variant(NQ, dma, tag):
    g.lab(f"L_start_{tag}")
    CUR_NQ[0] = NQ
    order = ["Q0"] * 4 + ["K0"] * 2 + ["K1"] * 2 + ["Q1"] * 4 + ["V0"] * 2 + ["V1"] * 2
    def groups(name):
        if name[0] == "Q":
            if int(name[1]) >= NQ: return []
            order.extend([name] * 4); return q_dma_groups()
        order.extend([name] * 2); return coop_groups(0 if name[0] == "K" else 1, int(name[1]))
    def issue(name):
        if name[0] == "Q":
            if int(name[1]) >= NQ: return
            emit_q_dma(); order.extend([name] * 4)
        elif name[0] == "T":
            emit_dma_tile_plain(); order.extend([name] * 16)
        else:
            emit_coop(0 if name[0] == "K" else 1, int(name[1])); order.extend([name] * 2)
    def wstr(name):
        a = len(order) - 1 - max(i for i, x in enumerate(order) if x == name)
        return f"s_waitcnt vmcnt({min(63, a)})"
    def wait(name): g.e(wstr(name))
    if dma:
        g.e(f"s_add_u32 s{S_DOFF}, s{S_HOFF}, {4*TILE}")
        g.e(f"s_add_u32 s{S_D2}, s{S_DOFF}, 4096")
        g.e(f"s_mov_b32 s{S_DCNT}, 4")
        g.e(f"s_mov_b32 s{S_DSLOT}, 0")
        g.e(f"s_mov_b32 s{S_OOB}, 0x10000000")
        g.e(f"s_add_u32 s{S_OST}, s{S_HOFF}, s{S_ROWB}")
        g.e(f"v_lshlrev_b32 v{CPF+6}, 3, v{OOFF}")
        for i, lab in enumerate(("L_trans_w0", "L_trans_w3", "L_trans_w0+8192", "L_trans_w3+8192", "L_trans_w3+16384", "L_trans_w0+16384")):
            g.e(f"v_add_u32 v{CPF+i}, {lab}-L_pc0, v{CPF+6}")
    stamp(1)
    topup = {1: ["Q4"], 2: ["Q5"], 3: ["K2", "K3"], 4: ["V2", "V3"]}
    if dma: topup = {1: ["Q4"], 2: ["K2", "K3"], 3: ["V2", "V3"], 4: ["T4"]}
    if "deep" in X:
        topup = {1: ["Q4", "Q5"], 2: ["K2", "K3"], 3: ["V2", "V3"]}
        if dma: topup = {1: ["Q4"], 2: ["K2", "K3"], 3: ["V2", "V3"], 4: ["T4"]}
    if "tl1" in X and dma: topup = {1: ["Q4"], 3: ["K2", "K3"], 4: ["V2", "V3"]}
    if "tl2" in X and dma: topup = {1: ["Q4"], 2: ["K2", "K3"], 3: ["V2", "V3"]}
    UB = NQ - 1
    wait("Q0")
    stamp(16)
    g.es(q_reads(0))
    if "q2late" not in X: issue("Q2")
    g.e("s_waitcnt lgkmcnt(0)")
    g.es(prescale(0, 0))
    if "q2late" in X: issue("Q2")
    wait("K1")
    g.e("s_barrier")
    stamp(2)
    g.es(bc_reads(0, UB))
    g.es(k_reads(0, 0))
    issue("Q3")
    g.e("s_waitcnt lgkmcnt(8)")
    pm = prepass_mfma(0, UB); kr = k_reads(1, 1)
    for i in range(4): g.e(pm[i]); g.es(kr[2 * i:2 * i + 2])
    g.e("s_nop 5")
    g.es(prepass_neg(0))
    g.e("s_waitcnt lgkmcnt(8)")
    g.e("s_nop 0")
    n = 0
    def prevpair(m): return (m & 1, m >> 1)
    def mkstep(n):
        sm = None; pv = None
        if n >= 1: sm = (prevpair(n - 1)[1], prevpair(n - 1)[0] == 0)
        if n >= 2: pv = (prevpair(n - 2)[0], prevpair(n - 2)[1], prevpair(n - 2)[0] == 0)
        return Step(n, prevpair(n), sm, pv)
    for u in range(NQ):
        if dma and u == NQ - 1:
            if "tl1" in X or "tl2" in X: issue("T4")
            issue("T5")
        st = mkstep(2 * u)
        k = len(st.M)
        if u == 1: st.salu[7].append("s_waitcnt lgkmcnt(0)")
        if u < NQ - 1:
            st.salu[k - 5].append(wstr(f"Q{u+1}"))
            st.add_mem(q_reads(u + 1), [k - 5, k - 5, k - 3, k - 3])
            if u == 0: st.post = []
        else:
            kr = k_reads(2, 0)
            st.salu[7].append(wstr("K3"))
            st.salu[8].append("s_barrier")
            st.add_mem(kr[:4], [8, 10, 11, 13])
        st.emit()
        if u == 1: g.e("s_barrier")
        st = mkstep(2 * u + 1)
        if u < NQ - 1:
            stamp(17 + u)
            g.e("s_waitcnt lgkmcnt(0)")
            g.es(prescale(u + 1, 2 * u))
            if u == 0:
                wait("V1")
                g.e("s_barrier")
                stamp(3)
            st.prepend(prepass_mfma(u + 1, UB))
            gs = []
            for x in topup.get(u + 1, []):
                if x[0] == "T": issue(x)
                else: gs += groups(x)
            for i, gi in enumerate(gs): st.mem[i if len(gs) <= 4 else (0, 1, 2, 3, 5, 7, 9, 11)[i]] += gi
            st.pre.append("s_nop 1")
            k = len(st.M)
            for x, p in zip(prepass_neg(u + 1), (k - 5, k - 4, k - 3, k - 2)): st.valu[p] = st.valu[p] + [x]
            if u == 0:
                vv = v_reads(0, 0) + v_reads(1, 1)
                st.add_mem(vv, [i * k // 32 for i in range(32)])
        else:
            st.add_mem(kr[4:], [0, 0, 2, 2])
            st.salu[15].append("s_waitcnt lgkmcnt(0)")
        st.emit()
    n = 2 * NQ
    st = Step(n, (0, 0), (NQ - 1, False), (0, NQ - 1, True))
    st.add_mem(k_reads(3, 1), [0, 0, 2, 2, 4, 6, 8, 10])
    st.salu[15].append(wstr("V3"))
    st.emit(); n += 1
    st = Step(n, (0, 1), (0, False), (1, NQ - 1, False))
    st.salu[0].append("s_barrier")
    st.add_mem(v_reads(2, 0), [0, 0, 1, 1, 2, 2, 3, 3, 4, 4, 5, 6, 7, 8, 9, 10])
    st.emit(); n += 1
    assert n == NQ * 2 + 2
    g.e("s_waitcnt lgkmcnt(0)")
    g.e("s_barrier")
    if dma:
        g.e(f"s_add_u32 s{S_QPO}, s{S_HOFF2}, s{S_CROW}")
        g.e(f"s_mov_b32 s{S_QPL}, {STAGE}")
        for _ in range(2):
            pre, ld, post = qpf_group()
            g.es(pre + ["s_nop 0"] + ld + post[:2])
        emit_dma_tile_plain(advance=False)
    g.e(f"s_mov_b32 s{S_CNT}, 0")
    stamp(4)
    def emit_loop(name, extra, chk0, chk1):
        rot = "rot" in X and not dma
        m_first = make_body(NQ, 2, dma, extra=extra)[0].M[0]
        if rot: g.e(m_first)
        g.L.append(".p2align " + E("AL", "6"))
        g.lab(f"L_{name}_{tag}")
        for ph in (2, 3, 0, 1):
            if ph == 0: g.lab(f"L_{name}0_{tag}")
            steps = make_body(NQ, ph, dma, extra=extra)
            if rot and ph == 2: steps[0].M[0] = "; (first MFMA issued before the branch)"
            if ph == 2 and chk0:
                steps[-1].salu[15].append(f"s_cmp_eq_u32 s{S_CNT}, 10")
            if ph == 1:
                steps[-1].salu[13].append(f"s_add_u32 s{S_CNT}, s{S_CNT}, 1")
                if chk1:
                    steps[-1].salu[15].append(f"s_cmp_lt_u32 s{S_CNT}, 4" if dma else f"s_cmp_lg_u32 s{S_CNT}, 5")
            for st in steps: st.emit()
            if ph == 2 and chk0: g.e(f"s_cbranch_scc1 L_final_{tag}")
        if rot: g.e(m_first); SKIP_FIRST[0] = True
        if chk1:
            g.e(f"s_cbranch_scc1 L_{name}_{tag}")
            if dma:
                g.e(f"s_cmp_eq_u32 s{S_CNT}, 5")
                g.e(f"s_cbranch_scc1 L_trans_{tag}")
                for i in range(6): g.e(f"global_load_dword v{CPF+6}, v{CPF+i}, s[58:59]")
                g.e(f"s_branch L_{name}_{tag}")
        else: g.e(f"s_branch L_{name}_{tag}")
    if dma: emit_loop("loop", "Q", False, True)
    else: emit_loop("loop", None, True, True)

    def emit_special(t, final):
        steps = make_body(NQ, t, dma, last=final, newround=True, extra=None)
        nt = NT_O1 if final else NT_O0
        if SKIP_FIRST[0]:
            steps[0].M[0] = "; (first MFMA issued before the branch)"; SKIP_FIRST[0] = False
        for k, st in enumerate(steps):
            bit = (6 if final else 0) + k
            if final or k == 0:
                add_lreduce(st, k, bit)
                if not final: st.add_mem(q_reads(k), [4, 4, 6, 6])
            else:
                if k == 1: st.pre.append("s_waitcnt lgkmcnt(0)")
                st.pre.append("s_nop 1")
                st.prepend(prepass_mfma(k - 1, 0))
                st.add_mem(q_reads(k), [1, 1, 3, 3])
                for gi, p in zip(l_reduce(k, bit), (0, 2, 5, 7, 9, 11)): st.valu[p] = st.valu[p] + gi
                for x, p in zip(bad_flag(bit), (13, 14, 15)): st.salu[p].append(x)
                for x, p in zip(prepass_neg(k - 1), (13, 14, 15, 16)): st.valu[p] = st.valu[p] + [x]
            fine = ("fine" in X) and not final and k == int(E("FK", "2"))
            if fine: stamp(8)
            st.emit()
            g.e("s_waitcnt lgkmcnt(0)")
            if fine: stamp(9)
            if k > 0 and (final or dma): g.es(o_stores(k - 1, nt))
            if fine: stamp(14)
            L, rb = epilogue_ops(k, st.n)
            g.es(L)
            if not final and k == 0: g.es(bc_reads((t + 1) % R, 0))
            if final or dma: g.es(rb)
            if fine: stamp(15)
            if not final: g.es(prescale(k, st.n))
            if fine: stamp(22)
        return nt
    g.lab(f"L_trans_{tag}")
    stamp(5)
    nt = emit_special(22, False)
    stamp(6)
    steps = make_body(NQ, 23, dma, first=True)
    st = steps[0]
    st.pre += ["s_waitcnt lgkmcnt(0)", "s_nop 0"] if dma else ["s_nop 1"]
    st.prepend(prepass_mfma(NQ - 1, 0))
    if dma:
        st.add_mem(o_stores(NQ - 1, nt)[:4], [0, 1, 2, 3])
        st.salu[19].append(f"s_add_u32 s{S_OST}, s{S_HOFF2}, s{S_ROWB}")
    for x, p in zip(prepass_neg(NQ - 1), (13, 14, 15, 16)): st.valu[p] = st.valu[p] + [x]
    if dma:
        st.salu[0].append(f"s_add_u32 s{S_QPO}, s{S_HOFF}, s{S_CROW}")
        st.salu[1].append(f"s_mov_b32 s{S_QP}, 18")
        st.valu[0].append(f"v_add_u32 v{ORD}, {STAGE}, v{DK}")
        st.valu[1].append(f"v_add_u32 v{ORD+1}, {STAGE}, v{DK+1}")
    for st in steps: st.emit()
    stamp(10)
    if dma:
        g.e(f"s_branch L_loopb0_{tag}")
        emit_loop("loopb", "O", True, False)
    else:
        g.e(f"s_branch L_loop0_{tag}")
    g.lab(f"L_final_{tag}")
    stamp(11)
    nt = NT_O1
    ks = NQ - 2
    steps = make_body(NQ, 43, False)[:ks]
    if dma:
        w = steps[-1].salu[-1]
        assert w == ["s_waitcnt lgkmcnt(0)"]
        steps[-1].salu[-1] = ["s_waitcnt vmcnt(32) lgkmcnt(0)"]
    for st in steps: st.emit()
    stamp(8)
    def pair(m):
        if m < 0: return (1, NQ + m)
        return (m & 1, m >> 1)
    vr45 = v_reads(45 % R, 1)
    for m in range(2 * NQ + 2):
        n = NQ * 44 + m
        qk = pair(m) if m < 2 * NQ else None
        sm = (pair(m - 1)[1], False) if m - 1 < 2 * NQ else None
        pv = pair(m - 2) + (False,)
        has_st = m >= 4 and m % 2 == 0
        st = Step(n, qk, sm, pv, alt=has_st)
        if m == 0:
            st.salu[0].append("s_barrier")
            st.add_mem(k_reads(45 % R, 1), [0, 0, 1, 2, 2, 3, 4, 5])
            st.salu[15].append("s_waitcnt lgkmcnt(0)")
        if m == 1: st.add_mem(vr45[:6], [10, 11, 12, 13, 14, 15])
        if m == 2: st.add_mem(vr45[6:], [0, 0, 1, 2, 2, 3, 4, 6, 8, 10])
        if m == 3: st.salu[7].append("s_waitcnt lgkmcnt(0)")
        if has_st:
            u = (m - 4) // 2
            so = o_stores(u, nt)
            if len(st.M) == 16:
                sp = [int(x) for x in E("SP", "9,9,12,12").split(",")]
                st.salu[sp[0] - 1].append("s_waitcnt lgkmcnt(0)")
                st.add_mem(so[:4], sp)
                st.post.append(so[4])
            else:
                st.salu[3].append("s_waitcnt lgkmcnt(0)")
                st.add_mem(so[:4], [3, 4, 5, 6])
                st.salu[7].append(so[4])
        if m >= 3 and m % 2 == 1:
            u = (m - 3) // 2
            add_lreduce(st, u, 6 + u)
        st.emit()
        if "ffine" in X and m in (3, 6, 7, 8, 9): stamp({3: 14, 6: 16, 7: 17, 8: 19, 9: 20}[m])
        if m >= 3 and m % 2 == 1:
            L, rb = epilogue_ops(u, n)
            g.es(L); g.es(rb)
            if "ffine" in X and m in (5, 7, 9): stamp({5: 15, 7: 18, 9: 21}[m])
    g.e("s_waitcnt lgkmcnt(0)")
    g.es(o_stores(NQ - 1, nt))
    stamp(12)
    g.e(f"s_cmp_lg_u32 s{S_BAD}, 0")
    g.e("s_cbranch_scc1 L_slow")
    stamp_out()
    g.e("s_endpgm")

def emit_slow():
    SB_, ST_, SH_, SR_, SX_ = 60, 61, 62, 63, 58
    VT = Q(1, 0)
    M_ = Q(2, 0)
    o = OVB; l = LB; c = CB; sreg = SB; p = PB
    def tile_dma(which, ldsoff):
        srd = SK if which == 0 else SV
        for hh in range(2):
            g.e(f"s_add_u32 m0, s{S_STG}, {ldsoff + hh*4096}")
            g.e(f"s_add_u32 s{SX_}, s{ST_}, {hh*4096}")
            for i in range(4):
                va = DK + i if which == 0 else DV + (i & 1)
                g.e(f"buffer_load_dwordx4 v{va}, s[{srd}:{srd+3}], s{SX_} offen offset:{i*1024} lds")
    def kreads():
        for kt in range(2):
            for s_ in range(4): g.e(f"ds_read_b128 {Kf(0, kt*4+s_)}, v{QA+s_} offset:{4096+kt*4096}")
    def qk(cz):
        for kt in range(2):
            for s_ in range(4):
                d = vr(sreg + kt * 4)
                g.e(mfma(d, Kf(0, kt * 4 + s_), vr(Q(0, s_)), (("0" if cz else vr(c)) if s_ == 0 else d)))
        g.e("s_nop 7")
    def xlane(r, t, op):
        for sw in ("v_permlane16_swap_b32", "v_permlane32_swap_b32"):
            g.es([f"v_mov_b32 v{t}, v{r}", "s_nop 1", f"{sw} v{r}, v{t}", "s_nop 1", f"{op} v{r}, v{r}, v{t}"])
    g.lab("L_slow")
    g.e(f"s_sub_u32 s{SX_}, s{S_STG}, {VBASE - 12288}")
    for j in range(8): g.e(f"v_add_u32 v{VT+j}, s{SX_}, v{VAD+j}")
    g.lab("L_slow_next")
    g.e("s_waitcnt vmcnt(0) lgkmcnt(0)")
    g.e(f"s_ff1_i32_b32 s{SB_}, s{S_BAD}")
    g.e(f"s_bitset0_b32 s{S_BAD}, s{SB_}")
    g.e(f"s_cmp_ge_u32 s{SB_}, 6")
    g.e(f"s_cselect_b32 s{SH_}, s{S_HOFF2}, s{S_HOFF}")
    g.e(f"s_cselect_b32 s{SX_}, 6, 0")
    g.e(f"s_sub_u32 s{SB_}, s{SB_}, s{SX_}")
    g.e(f"s_lshl_b32 s{SB_}, s{SB_}, 12")
    g.e(f"s_add_u32 s{SR_}, s{SH_}, s{S_ROWB}")
    g.e(f"s_add_u32 s{SR_}, s{SR_}, s{SB_}")
    g.e(f"s_mov_b32 m0, s{S_STG}")
    g.e("s_nop 0")
    for i in range(4):
        g.e(f"buffer_load_dwordx4 v{DK+i}, s[{SQ}:{SQ+3}], s{SR_} offen offset:{i*1024} lds")
    g.e("s_waitcnt vmcnt(0)")
    g.es(q_reads(0))
    g.e("s_waitcnt lgkmcnt(0)")
    g.es(prescale(0, 0))
    g.e(f"v_mov_b32 v{M_}, 0xff800000")
    g.e(f"s_mov_b32 s{ST_}, s{SH_}")
    g.e(f"s_add_u32 s{SB_}, s{SH_}, {HEAD_BYTES}")
    g.lab("L_slow_p1")
    tile_dma(0, 4096)
    g.e("s_waitcnt vmcnt(0)")
    kreads()
    g.e("s_waitcnt lgkmcnt(0)")
    qk(True)
    for i in range(0, 8, 2): g.e(f"v_max3_f32 v{M_}, v{M_}, v{sreg+i}, v{sreg+i+1}")
    g.e(f"s_add_u32 s{ST_}, s{ST_}, {TILE}")
    g.e(f"s_cmp_lt_u32 s{ST_}, s{SB_}")
    g.e("s_cbranch_scc1 L_slow_p1")
    xlane(M_, M_ + 1, "v_max_f32")
    for k in range(4): g.e(f"v_sub_f32 v{c+k}, 0, v{M_}")
    for k in range(32): g.e(f"v_mov_b32 v{o+k}, 0")
    g.e(f"v_mov_b32 v{l}, 0")
    g.e(f"s_mov_b32 s{ST_}, s{SH_}")
    g.lab("L_slow_p2")
    tile_dma(0, 4096)
    tile_dma(1, 12288)
    g.e("s_waitcnt vmcnt(0)")
    kreads()
    g.e("s_waitcnt lgkmcnt(0)")
    for j in range(8):
        for h in range(2): g.e(f"ds_read_b64_tr_b16 {Vf(0, j, 2, 2*h)}, v{VT+j} offset:{h*4096}")
    qk(False)
    for i in range(8): g.e(f"v_exp_f32 v{sreg+i}, v{sreg+i}")
    g.e("s_nop 0")
    for i in range(8): g.e(f"v_add_f32 v{l}, v{l}, v{sreg+i}")
    for i in range(4): g.e(f"v_cvt_pk_bf16_f32 v{p+i}, v{sreg+2*i}, v{sreg+2*i+1}")
    g.e("s_waitcnt lgkmcnt(0)")
    g.e("s_nop 1")
    for j in range(8): g.e(mfma(vr(o + 4 * j), Vf(0, j), vr(p), vr(o + 4 * j)))
    g.e(f"s_add_u32 s{ST_}, s{ST_}, {TILE}")
    g.e(f"s_cmp_lt_u32 s{ST_}, s{SB_}")
    g.e("s_cbranch_scc1 L_slow_p2")
    xlane(l, l + 1, "v_add_f32")
    g.e(f"v_rcp_f32 v{l}, v{l}")
    g.e("s_nop 7")
    for k in range(0, 32, 2): g.e(f"v_pk_mul_f32 v[{o+k}:{o+k+1}], v[{o+k}:{o+k+1}], v[{l}:{l+1}] op_sel_hi:[1,0]")
    for k in range(16): g.e(f"v_cvt_pk_bf16_f32 v{o+k}, v{o+2*k}, v{o+2*k+1}")
    for j in range(8): g.e(f"ds_write_b64 v{EW+(j&3)}, v[{o+2*j}:{o+2*j+1}] offset:{(j>>2)*128}")
    for i in range(4): g.e(f"ds_read_b128 {vr(o+16+4*i)}, v{ER+(i&1)} offset:{i*1024}")
    g.e("s_waitcnt lgkmcnt(0)")
    for i in range(4): g.e(f"buffer_store_dwordx4 {vr(o+16+4*i)}, v{OOFF}, s[{SO}:{SO+3}], s{SR_} offen offset:{i*1024}")
    g.e(f"s_cmp_lg_u32 s{S_BAD}, 0")
    g.e("s_cbranch_scc1 L_slow_next")
    g.e("s_endpgm")

def emit_addr_setup():
    for s in range(4):
        g.e(f"v_add_u32 v5, {4*s}, v14")
        g.e("v_xor_b32 v5, v5, v13")
        g.e("v_lshlrev_b32 v5, 4, v5")
        g.e(f"v_lshl_add_u32 v{KAD+s}, v13, 8, v5")
    g.e("v_lshrrev_b32 v6, 2, v12")
    g.e("v_and_b32 v7, 3, v12")
    g.e("v_lshlrev_b32 v8, 8, v6")
    g.e("v_lshl_add_u32 v8, v7, 3, v8")
    g.e(f"v_add_u32 v8, {VBASE}, v8")
    g.e("v_and_b32 v6, 7, v6")
    for j in range(8):
        g.e(f"v_xor_b32 v5, {j}, v6")
        g.e(f"v_lshl_add_u32 v{VAD+j}, v5, 5, v8")
    g.e(f"v_lshlrev_b32 v{OOFF}, 4, v12")
    g.e("v_lshrrev_b32 v5, 1, v14")
    g.e("v_and_b32 v6, 7, v13")
    g.e("v_xor_b32 v5, v5, v6")
    g.e("v_lshlrev_b32 v5, 4, v5")
    g.e("v_lshl_add_u32 v5, v13, 8, v5")
    g.e("v_and_b32 v6, 1, v14")
    g.e("v_lshl_add_u32 v5, v6, 3, v5")
    g.e(f"v_add_u32 v{EW}, s{S_STG}, v5")
    for j in range(1, 4): g.e(f"v_xor_b32 v{EW+j}, {j<<5}, v{EW}")
    g.e(f"v_add_u32 v{ER}, s{S_STG}, v{DK}")
    g.e(f"v_add_u32 v{ER+1}, s{S_STG}, v{DK+1}")
    for s in range(4): g.e(f"v_add_u32 v{QA+s}, s{S_STG}, v{KAD+s}")
    def bf16_rne(x):
        u = f2u(x); return (u + 0x7fff + ((u >> 16) & 1)) >> 16
    chi = bf16_rne(CSCALE); chi_f = struct.unpack("<f", struct.pack("<I", chi << 16))[0]
    clo = bf16_rne(CSCALE - chi_f)
    g.e("v_lshlrev_b32 v0, 4, v14")
    g.e("v_and_b32 v15, 3, v12")
    g.e("v_lshlrev_b32 v15, 4, v15")
    g.e(f"s_mov_b32 s{S_C}, {hex(chi)}")
    g.e(f"s_mov_b32 s{S_C+1}, 0")
    g.e(f"v_lshlrev_b64 v[{PT}:{PT+1}], v15, s[{S_C}:{S_C+1}]")
    g.e(f"s_mov_b32 s{S_C}, {hex(clo)}")
    g.e(f"v_lshlrev_b64 v[{PT+2}:{PT+3}], v15, s[{S_C}:{S_C+1}]")
    g.e(f"s_mov_b32 s{S_THR}, {hex(f2u(2.0**64))}")
    g.e(f"s_mov_b32 s{S_BAD}, 0")
    g.e(f"s_mov_b32 s{S_POFF}, {hex(f2u(POFF))}")
    g.e(f"s_add_u32 s{S_OST}, s{S_HOFF2}, s{S_ROWB}")

def main():
    hdr = open("cdna_kernels/" + NAME + ".s.ref").read().split("; @launch")[0]
    out = hdr + f"; @launch grid=(256,1,1) block=(256,1,1) lds={LDS_BYTES}\n"
    out += f'''.amdgcn_target "amdgcn-amd-amdhsa--gfx950"
.text
.globl {NAME}_kernel
.p2align 8
.type {NAME}_kernel,@function
{NAME}_kernel:
'''
    if STAMP:
        if STAMP != 3:
            g.es(["s_memrealtime s[38:39]", "s_waitcnt lgkmcnt(0)", "s_mov_b32 s94, s38"])
        stamp(0)
        if STAMP != 3:
            for i in range(65, 88): g.e(f"s_mov_b32 s{i}, s64")
    g.e("s_load_dwordx8 s[40:47], s[0:1], 0")
    g.e("s_cmp_ge_u32 s2, 256")
    g.e("s_cbranch_scc1 L_done")
    if "pf0" in X:
        g.e("s_getpc_b64 s[58:59]")
        g.lab("L_pc0")
        g.e("v_lshlrev_b32 v16, 7, v0")
        g.e("v_cmp_lt_u32 vcc, 127, v0")
        g.e(f"v_mov_b32 v17, L_start_w3-L_pc0-16384")
        g.e("s_nop 0")
        g.e("v_cndmask_b32 v17, 0, v17, vcc")
        g.e("v_add_u32 v16, v16, v17")
        g.e("global_load_dword v17, v16, s[58:59]")
    g.e("v_lshrrev_b32 v11, 6, v0")
    g.e("v_and_b32 v12, 63, v0")
    g.e(f"v_readfirstlane_b32 s{S_WAVE}, v11")
    g.e("v_and_b32 v13, 15, v12")
    g.e("v_lshrrev_b32 v14, 4, v12")
    g.e("s_and_b32 s3, s2, 7")
    g.e("s_lshr_b32 s4, s2, 3")
    g.e("s_lshr_b32 s5, s4, 1")
    g.e("s_and_b32 s4, s4, 1")
    g.e("s_lshl_b32 s3, s3, 5")
    g.e("s_add_u32 s3, s3, s5")
    g.e(f"s_mul_i32 s{S_HOFF}, s3, {HEAD_BYTES}")
    g.e(f"s_add_u32 s{S_HOFF2}, s{S_HOFF}, {16*HEAD_BYTES}")
    g.e(f"s_mul_i32 s{S_CROW}, s4, {368*256}")
    g.e(f"s_mul_i32 s5, s{S_WAVE}, {96*256}")
    g.e(f"s_add_u32 s{S_ROWB}, s{S_CROW}, s5")
    g.e(f"s_add_u32 s{S_STG}, s5, {STAGE}")
    g.e(f"s_add_u32 s{S_QPO}, s{S_HOFF}, s{S_ROWB}")
    g.e(f"s_mov_b32 s{S_QPL}, s{S_STG}")
    g.e("v_lshlrev_b32 v15, 8, v14")
    for i in range(4):
        g.e(f"v_add_u32 v5, {4*i}, v14")
        g.e("v_xor_b32 v5, v5, v13")
        g.e(f"v_lshl_add_u32 v{DK+i}, v5, 4, v15")
    for i in range(2):
        g.e(f"v_lshl_add_u32 v5, v14, 1, {8*i}")
        g.e("v_xor_b32 v5, v5, v13")
        g.e(f"v_lshl_add_u32 v{DV+i}, v5, 4, v15")
    g.e("v_lshl_add_u32 v5, v11, 2, v14")
    g.e("v_xor_b32 v6, v5, v13")
    g.e(f"v_lshl_add_u32 v{CK_}, v6, 4, v15")
    g.e("v_and_b32 v5, 7, v5")
    g.e("v_lshlrev_b32 v5, 1, v5")
    g.e("v_xor_b32 v6, v5, v13")
    g.e(f"v_lshl_add_u32 v{CV_}, v6, 4, v15")
    g.e(f"s_lshl_b32 s{S_CW}, s{S_WAVE}, 10")
    g.e(f"s_add_u32 s{S_CG}, s{S_HOFF}, s{S_CW}")
    g.e("s_waitcnt lgkmcnt(0)")
    for i, srd in ((0, SQ), (1, SK)):
        g.e(f"s_mov_b32 s{srd}, s{40+2*i}")
        g.e(f"s_and_b32 s{srd+1}, s{41+2*i}, 0xffff")
        g.e(f"s_mov_b32 s{srd+2}, {TOTAL_BYTES}")
        g.e(f"s_mov_b32 s{srd+3}, 0x20000")
    stamp(7); emit_q_dma(); emit_coop(0, 0); emit_coop(0, 1)
    emit_addr_setup()
    for i, srd in ((2, SV), (3, SO)):
        g.e(f"s_mov_b32 s{srd}, s{40+2*i}")
        g.e(f"s_and_b32 s{srd+1}, s{41+2*i}, 0xffff")
        g.e(f"s_mov_b32 s{srd+2}, {TOTAL_BYTES}")
        g.e(f"s_mov_b32 s{srd+3}, 0x20000")
    emit_q_dma(); emit_coop(1, 0); emit_coop(1, 1)
    g.e(f"s_cmp_eq_u32 s{S_WAVE}, 3")
    g.e("s_cbranch_scc1 L_start_w3")
    emit_variant(6, False, "w0")
    emit_variant(5, True, "w3")
    emit_slow()
    g.lab("L_done")
    g.e("s_endpgm")
    if "pf" in X: g.L.append(".fill 2048, 4, 0xbf810000")
    out += "\n".join(g.L) + "\n"
    out += f'''.section .rodata,"a"
.p2align 6
.amdhsa_kernel {NAME}_kernel
  .amdhsa_next_free_vgpr 512
  .amdhsa_next_free_sgpr 96
  .amdhsa_accum_offset 256
  .amdhsa_group_segment_fixed_size 0
  .amdhsa_kernarg_size 48
  .amdhsa_user_sgpr_count 2
  .amdhsa_user_sgpr_kernarg_segment_ptr 1
  .amdhsa_system_sgpr_workgroup_id_x 1
.end_amdhsa_kernel
'''
    fn = sys.argv[1] if len(sys.argv) > 1 else "cdna_kernels/" + NAME + ".s"
    open(fn, "w").write(out)
main()
```

```python
import sys, os, struct
NAME = "standalone__gqa_softmax__near_ridge"
R = 4
TILE = 8192
VBASE = R * TILE
STAGE = 2 * R * TILE
LDS_BYTES = STAGE + 24 * 4096
HEAD_BYTES = 736 * 256
TOTAL_BYTES = 256 * HEAD_BYTES
E = os.environ.get
STAMP = int(E("STAMP", "0"))
NT_KV = E("NT_KV", " nt"); NT_Q = E("NT_Q", " nt"); NT_O0 = E("NT_O0", " sc1"); NT_O1 = E("NT_O1", " sc1")
X = E("X", "pf,pf0,tl1,rot").split(",")
def f2u(x): return struct.unpack("<I", struct.pack("<f", x))[0]
CSCALE = 1.4426950408889634 / (128 ** 0.5)

CUR_NQ = [6]
OVB = 112
def Oisv(u): return u >= CUR_NQ[0] - 2
def Obase(u): return OVB + (u - (CUR_NQ[0] - 2)) * 32 if Oisv(u) else u * 32
def Or(u, off, n=4):
    b = Obase(u) + off
    return (f"v[{b}:{b+n-1}]" if Oisv(u) else f"a[{b}:{b+n-1}]")
KA = 128; VA = 192
QB = 16; SB = 176; PB = 192; CB = 200; LB = 224
KAD = 236; VAD = 240
DK = 248; DV = 252; OOFF = 254
EW = 2
ER = 6
QA = 8
PT = 12
CK_ = 255
CV_ = 1
def Q(u, s): return QB + (u * 4 + s) * 4
def vr(b, n=4): return f"v[{b}:{b+n-1}]"
def ar(b, n=4): return f"a[{b}:{b+n-1}]"
def Kf(par, f, n=4, o=0): return ar(KA + par * 32 + f * 4 + o, n)
def Vf(par, j, n=4, o=0): return ar(VA + par * 32 + j * 4 + o, n)
SQ, SK, SV, SO = 8, 12, 16, 20
S_WAVE = 24; S_HOFF = 25; S_HOFF2 = 26; S_BAD = 27; S_CNT = 28; S_T = 29
S_C = 30
S_DOFF = 32; S_DCNT = 33; S_DSLOT = 34; S_D2 = 35; S_THR = 36; S_OOB = 37
S_ROWB = 50; S_STG = 51; S_QP = 52; S_QPO = 53; S_QPL = 54; S_OST = 55; S_T2 = 56
S_MASK = 57
S_POFF = 61
POFF = float(E('POFF', '-11'))
S_CROW = 63
S_INC = 62
CPF = 98
ORD = 96
ODAT = 96
S_CW = 6; S_CG = 7

class G:
    def __init__(self): self.L = []
    def e(self, s): self.L.append("    " + s)
    def es(self, l):
        for s in l: self.e(s)
    def lab(self, s): self.L.append(s + ":")
    def c(self, s): self.L.append("    ; " + s)
g = G()

NSPIN = 0
SKIP_FIRST = [False]
def stamp(i):
    if not STAMP: return
    g.e("s_memrealtime s[38:39]" if STAMP in (3, 4) else "s_memtime s[38:39]")
    g.e("s_waitcnt lgkmcnt(0)")
    g.e(f"s_mov_b32 s{64+i}, s38")
def stamp_out():
    if not STAMP: return
    g.e("s_waitcnt vmcnt(0)")
    stamp(13)
    if STAMP == 3:
        ph = int(E("PH", "0"))
        global NSPIN
        NSPIN += 1
        g.e(f"s_add_u32 s3, s{64+ph}, 10000")
        g.lab(f"L_spin{NSPIN}")
        g.es(["s_sleep 2", "s_memrealtime s[38:39]", "s_waitcnt lgkmcnt(0)", "s_sub_u32 s4, s3, s38", "s_cmp_gt_i32 s4, 0", f"s_cbranch_scc1 L_spin{NSPIN}"])
        return
    g.e("s_memrealtime s[38:39]")
    g.e("s_load_dwordx2 s[48:49], s[0:1], 40")
    g.e("s_waitcnt lgkmcnt(0)")
    g.e("s_mov_b32 s95, s38")
    g.e("s_lshl_b32 s3, s2, 2")
    g.e(f"s_add_u32 s3, s3, s{S_WAVE}")
    g.e("s_lshl_b32 s3, s3, 7")
    g.e("v_mov_b32 v2, s3")
    g.e("s_mov_b64 exec, 1")
    for i in list(range(24)) + [30, 31]:
        g.e(f"v_mov_b32 v3, s{64+i}")
        g.e(f"global_store_dword v2, v3, s[48:49] offset:{i*4}")

def mfma(d, a, b, c): return f"v_mfma_f32_16x16x32_bf16 {d}, {a}, {b}, {c}"
def qk_mfmas(u, par, sbuf):
    M = []
    for kt in range(2):
        for s in range(4):
            d = vr(SB + sbuf * 8 + kt * 4)
            c = vr(CB + u * 4) if s == 0 else d
            if "qkswap" in X: M.append(mfma(d, vr(Q(u, s)), Kf(par, kt * 4 + s), c))
            else: M.append(mfma(d, Kf(par, kt * 4 + s), vr(Q(u, s)), c))
    return M
def pv_mfmas(u, par, pbuf, first):
    if "swap" in X: return [mfma(Or(u, 4 * j), vr(PB + pbuf * 4), Vf(par, j), "0" if first else Or(u, 4 * j)) for j in range(8)]
    return [mfma(Or(u, 4 * j), Vf(par, j), vr(PB + pbuf * 4), E("OBIAS", "0") if first else Or(u, 4 * j)) for j in range(8)]
def sm_units(u, buf, first, alt=False):
    s = SB + buf * 8; p = PB + buf * 4
    Ex = lambda i: f"v_exp_f32 v{s+i}, v{s+i}"
    def A(i):
        l = LB + u * 2 + (i & 1)
        if first and i < 2: return f"v_mov_b32 v{l}, v{s+i}"
        return f"v_add_f32 v{l}, v{l}, v{s+i}"
    C = lambda i: f"v_cvt_pk_bf16_f32 v{p+i}, v{s+2*i}, v{s+2*i+1}"
    if alt:
        return [[Ex(0)], [Ex(1)], [Ex(2)], [A(0), A(1)], [Ex(3)], [C(0), A(2)], [Ex(4)], [A(3), C(1)], [Ex(5)], [],
                [Ex(6)], [A(4), A(5)], [], [Ex(7)], [C(2), A(6)], [A(7), C(3)]]
    return [[], [Ex(0)], [], [Ex(1)], [Ex(2)], [A(0), A(1)], [Ex(3)], [C(0), A(2)], [Ex(4)], [A(3), C(1)],
            [Ex(5)], [Ex(6)], [A(4), A(5)], [Ex(7)], [C(2), A(6)], [A(7), C(3)]]
def k_reads(slot, par):
    return [f"ds_read_b128 {Kf(par, kt*4+s)}, v{KAD+s} offset:{slot*TILE+kt*4096}" for kt in range(2) for s in range(4)]
def v_reads(slot, par):
    return [f"ds_read_b64_tr_b16 {Vf(par, j, 2, 2*h)}, v{VAD+j} offset:{slot*TILE+h*4096}" for j in range(8) for h in range(2)]
def q_reads(u):
    return [f"ds_read_b128 {vr(Q(u,s))}, v{QA+s} offset:{u*4096}" for s in range(4)]

class Step:
    def __init__(self, n, qk, sm, pv, alt=False):
        self.M = (qk_mfmas(qk[1], qk[0], n & 1) if qk else []) + (pv_mfmas(pv[1], pv[0], n & 1, pv[2]) if pv else [])
        k = len(self.M)
        self.n = n
        self.salu = [[] for _ in range(k)]; self.mem = [[] for _ in range(k)]; self.valu = [[] for _ in range(k)]
        self.pre = []; self.post = []
        if sm:
            U = sm_units(sm[0], (n - 1) & 1, sm[1], alt and k == 16)
            if k == 16:
                for t in range(16): self.valu[t] = list(U[t])
            else:
                for t in range(8): self.valu[t] = U[2 * t] + U[2 * t + 1]
        if not qk: self.pre.append("s_nop 1")
        if not pv: self.post.append("s_nop 7")
    def prepend(self, ms):
        k = len(ms)
        self.M = list(ms) + self.M
        self.salu = [[] for _ in range(k)] + self.salu; self.mem = [[] for _ in range(k)] + self.mem; self.valu = [[] for _ in range(k)] + self.valu
    def add_mem(self, ops, pos):
        assert len(ops) == len(pos), (len(ops), len(pos))
        for o, p in zip(ops, pos): self.mem[p].append(o)
    def emit(self):
        if "nodma" in X: self.mem = [[x for x in m if not x.startswith("buffer_load")] for m in self.mem]
        if "nobar" in X: self.salu = [[x for x in m if not x.startswith("s_barrier")] for m in self.salu]
        if "e64" in X:
            self.valu = [[x.replace("v_exp_f32 ", "v_exp_f32_e64 ") for x in m] for m in self.valu]
        g.es(self.pre)
        for i, m in enumerate(self.M):
            g.e(m); g.es(self.salu[i]); g.es(self.mem[i]); g.es(self.valu[i])
        g.es(self.post)

def dma_tile_ops():
    ops = []
    for which in range(2):
        srd = SK if which == 0 else SV
        for hh in range(2):
            for i in range(4):
                pre = None
                if i == 0:
                    off = (VBASE if which else 0) + hh * 4096
                    pre = f"s_add_u32 m0, s{S_DSLOT}, {off}"
                so = S_DOFF if hh == 0 else S_D2
                va = DK + i if which == 0 else DV + (i & 1)
                ops.append((pre, f"buffer_load_dwordx4 v{va}, s[{srd}:{srd+3}], s{so} offen offset:{i*1024}{NT_KV} lds"))
    return ops
def dma_advance():
    return [
        f"s_add_u32 s{S_DCNT}, s{S_DCNT}, 1",
        f"s_add_u32 s{S_DOFF}, s{S_DOFF}, {TILE}",
        f"s_cmp_eq_u32 s{S_DCNT}, 23", f"s_cselect_b32 s{S_DOFF}, s{S_HOFF2}, s{S_DOFF}",
        f"s_cmp_eq_u32 s{S_DCNT}, 46", f"s_cselect_b32 s{S_DOFF}, s{S_OOB}, s{S_DOFF}",
        f"s_add_u32 s{S_D2}, s{S_DOFF}, 4096",
        f"s_add_u32 s{S_DSLOT}, s{S_DSLOT}, {TILE}",
        f"s_and_b32 s{S_DSLOT}, s{S_DSLOT}, {R*TILE-1}",
    ]
def emit_dma_tile_plain(advance=True):
    for pre, d in dma_tile_ops():
        if pre: g.e(pre); g.e("s_nop 0")
        g.e(d)
    if advance: g.es(dma_advance())
def place_dma(steps, slots):
    prev = None
    for (st, p), (pre, d) in zip(slots, dma_tile_ops()):
        if pre:
            if p > 0 and prev != (st, p - 1) and prev != (st, p) and not any("s_cmp" in x for x in st.salu[p - 2:p] for x in x):
                st.salu[p - 1].append(pre)
            else:
                st.mem[p] += [pre, "s_nop 0"]
        st.mem[p].append(d)
        prev = (st, p)
def q_dma_groups():
    G_ = [[f"buffer_load_dwordx4 v{DK+i}, s[{SQ}:{SQ+3}], s{S_QPO} offen offset:{i*1024}{NT_Q} lds"] for i in range(4)]
    G_[0] = [f"s_mov_b32 m0, s{S_QPL}", f"s_add_u32 s{S_QPL}, s{S_QPL}, 4096"] + G_[0]
    G_[3] = G_[3] + [f"s_add_u32 s{S_QPO}, s{S_QPO}, 4096"]
    return G_
def coop_groups(which, t):
    srd = SK if which == 0 else SV
    G_ = []
    for hh in range(2):
        off = t * TILE + hh * 4096
        G_.append([f"s_add_u32 m0, s{S_CW}, {off + (VBASE if which else 0)}", f"s_add_u32 s{S_T}, s{S_CG}, {off}",
                   f"buffer_load_dwordx4 v{CV_ if which else CK_}, s[{srd}:{srd+3}], s{S_T} offen{NT_KV} lds"])
    return G_
def emit_q_dma():
    for x in q_dma_groups(): g.es(x)
def emit_coop(which, t):
    for x in coop_groups(which, t): g.es(x)

def prescale(u, n):
    sb = SB + ((n - 1) & 1) * 8
    blk = [sb, sb + 4, PB + (n & 1) * 4, CB + 4 * u]
    q = Q(u, 0)
    H = lambda i: f"v_mfma_f32_4x4x4_16b_bf16 {vr(blk[i%4])}, v[{PT}:{PT+1}], v[{q+2*i}:{q+2*i+1}], 0"
    Lo = lambda i: f"v_mfma_f32_4x4x4_16b_bf16 {vr(blk[i%4])}, v[{PT+2}:{PT+3}], v[{q+2*i}:{q+2*i+1}], {vr(blk[i%4])}"
    C = lambda i, h: f"v_cvt_pk_bf16_f32 v{q+2*i+h}, v{blk[i%4]+2*h}, v{blk[i%4]+2*h+1}"
    seq = [("H", 0)]
    for i in range(0, 10):
        if i + 1 < 8: seq.append(("H", i + 1))
        if 0 <= i - 2 < 8: seq.append(("C0", i - 2))
        if i < 8: seq.append(("L", i))
        if 0 <= i - 2 < 8: seq.append(("C1", i - 2))
    L = []; pos = {}; cur = 0
    for kind, i in seq:
        need = 0
        if kind == "L": need = pos[("H", i)] + 1 + 2
        if kind[0] == "C": need = pos[("L", i)] + 1 + 5
        if cur < need:
            L.append(f"s_nop {need - cur - 1}"); cur = need
        L.append(H(i) if kind == "H" else Lo(i) if kind == "L" else C(i, int(kind[1])))
        pos[(kind, i)] = cur; cur += 1
    return L
def bc_reads(slot, ub):
    return [f"ds_read_b128 {Or(ub, 16+4*s_)}, v0 offset:{slot*TILE+s_*64}" for s_ in range(4)]
def prepass_mfma(u, ub):
    d = vr(CB + u * 4)
    return [mfma(d, Or(ub, 16 + 4 * s_), vr(Q(u, s_)), "0" if s_ == 0 else d) for s_ in range(4)]
def prepass_neg(u):
    c = CB + u * 4
    return [f"v_sub_f32 v{c+k}, s{S_POFF}, v{c+k}" for k in range(4)]
def l_reduce(u, bit):
    l = LB + 2 * u
    return [[f"v_add_f32 v{l}, v{l}, v{l+1}", f"v_mov_b32 v{l+1}, v{l}"],
            [f"v_permlane16_swap_b32 v{l}, v{l+1}"],
            [f"v_add_f32 v{l}, v{l}, v{l+1}", f"v_mov_b32 v{l+1}, v{l}"],
            [f"v_permlane32_swap_b32 v{l}, v{l+1}"],
            [f"v_add_f32 v{l}, v{l}, v{l+1}"],
            [f"v_cmp_ngt_f32 vcc, s{S_THR}, v{l}", f"v_rcp_f32 v{l}, v{l}"]]
def bad_flag(bit):
    return ["s_cmp_lg_u64 vcc, 0", f"s_cselect_b32 s{S_T2}, {1<<bit}, 0", f"s_or_b32 s{S_BAD}, s{S_BAD}, s{S_T2}"]
def epilogue_ops(u, n):
    l = LB + 2 * u
    L = []
    def wr(j, r): return f"ds_write_b64 v{EW+(j&3)}, v[{r}:{r+1}] offset:{u*4096+(j>>2)*128}"
    if Oisv(u):
        b = Obase(u)
        L += [f"v_pk_mul_f32 v[{b+k}:{b+k+1}], v[{b+k}:{b+k+1}], v[{l}:{l+1}] op_sel_hi:[1,0]" for k in range(0, 32, 2)]
        L += [f"v_cvt_pk_bf16_f32 v{b+k}, v{b+2*k}, v{b+2*k+1}" for k in range(16)]
        L += [wr(j, b + 2 * j) for j in range(8)]
        rb = [f"ds_read_b128 {Or(u, 16+4*i)}, v{ER+(i&1)} offset:{u*4096+i*1024}" for i in range(4)]
        return L, rb
    t = SB + ((n - 1) & 1) * 8
    P2 = [PB + (n & 1) * 4, CB + 4 * u]
    for jp in range(4):
        p = P2[jp & 1]
        L += [f"v_accvgpr_read_b32 v{t+k}, a{Obase(u)+8*jp+k}" for k in range(8)]
        L += [f"v_pk_mul_f32 v[{t+k}:{t+k+1}], v[{t+k}:{t+k+1}], v[{l}:{l+1}] op_sel_hi:[1,0]" for k in range(0, 8, 2)]
        L += [f"v_cvt_pk_bf16_f32 v{p+k}, v{t+2*k}, v{t+2*k+1}" for k in range(4)]
        if jp & 1:
            L += [wr(2 * jp - 2, P2[0]), wr(2 * jp - 1, P2[0] + 2), wr(2 * jp, P2[1]), wr(2 * jp + 1, P2[1] + 2)]
    rb = [f"ds_read_b128 {Or(u, 4*i)}, v{ER+(i&1)} offset:{u*4096+i*1024}" for i in range(4)]
    return L, rb
def merged_block(u, n, mid=None):
    L, rb = epilogue_ops(u, n)
    if mid: L = L[36:] + L[:36]
    q = Q(u, 0)
    if Oisv(u):
        sb = SB + ((n - 1) & 1) * 8
        blk = [sb, sb + 4, PB + (n & 1) * 4, CB + 4 * u]
    else:
        blk = [Q(u + 1, 0), Q(u + 1, 1)]
    nb = len(blk)
    H = lambda i: f"v_mfma_f32_4x4x4_16b_bf16 {vr(blk[i%nb])}, v[{PT}:{PT+1}], v[{q+2*i}:{q+2*i+1}], 0"
    Lo = lambda i: f"v_mfma_f32_4x4x4_16b_bf16 {vr(blk[i%nb])}, v[{PT+2}:{PT+3}], v[{q+2*i}:{q+2*i+1}], {vr(blk[i%nb])}"
    C = lambda i, h: f"v_cvt_pk_bf16_f32 v{q+2*i+h}, v{blk[i%nb]+2*h}, v{blk[i%nb]+2*h+1}"
    out = []
    if not Oisv(u):
        p = 0
        for gi in range(4):
            r = L[p:p + 8]; m = L[p + 8:p + 12]; c = L[p + 12:p + 16]; p += 16
            w = []
            if gi & 1: w = L[p:p + 4]; p += 4
            a, b = 2 * gi, 2 * gi + 1
            out += [H(a), r[0], H(b), r[1], Lo(a), r[2], Lo(b)] + r[3:] + m + c + w + (mid if (mid and gi == 1) else []) + [C(a, 0), C(a, 1), C(b, 0), C(b, 1)]
        assert p == len(L)
    else:
        m = L[:16]; c = L[16:32]; w = L[32:]
        out += m
        x = [H(0), H(1), Lo(0), H(2), Lo(1), H(3), Lo(2), Lo(3)]
        for i in range(8): out += [x[i], c[i]]
        out += c[8:12]
        cs = [C(i, h) for i in range(4) for h in range(2)]
        out += cs[0:2] + [H(4)] + cs[2:4] + [H(5)] + cs[4:5] + [Lo(4)] + cs[5:6] + [H(6)] + cs[6:7] + [Lo(5)] + cs[7:8] + [H(7), c[12], Lo(6), c[13], Lo(7), c[14], c[15]]
        out += w
        out += [C(i, h) for i in range(4, 8) for h in range(2)]
    return out, rb
def o_stores(u, nt):
    if "nostore" in X: return ["s_nop 0"] * 5
    o = 16 if Oisv(u) else 0
    return [f"buffer_store_dwordx4 {Or(u, o+4*i)}, v{OOFF}, s[{SO}:{SO+3}], s{S_OST} offen offset:{i*1024}{nt}" for i in range(4)] + \
           [f"s_add_u32 s{S_OST}, s{S_OST}, 4096"]

def ngroups(t, extra="Q"): return 2 if (t % 4 == 2 and extra == "Q") else 1
def qpf_group():
    pre = [f"s_mov_b32 m0, s{S_QPL}"]
    ld = [f"buffer_load_dwordx4 v{DK+i}, s[{SQ}:{SQ+3}], s{S_QPO} offen offset:{i*1024}{NT_Q} lds" for i in range(4)]
    post = [f"s_add_u32 s{S_QPO}, s{S_QPO}, 4096", f"s_add_u32 s{S_QPL}, s{S_QPL}, 4096",
            f"s_min_u32 s{S_QPL}, s{S_QPL}, {STAGE + 23*4096}",
            f"s_cmp_eq_u32 s{S_QPL}, {STAGE + 23*4096}", f"s_cselect_b32 s{S_QPO}, s{S_OOB}, s{S_QPO}"]
    return pre, ld, post
def make_body(NQ, t, dma, first=False, last=False, newround=False, extra=None):
    par = t & 1
    steps = []
    for k in range(NQ):
        n = NQ * t + 2 + k
        uq = k + 2
        qk = (par, uq) if uq < NQ else (None if last else (par ^ 1, uq - NQ))
        us = k + 1
        if us < NQ: sm = (us, first)
        else: sm = None if last else (0, newround)
        steps.append(Step(n, qk, sm, (par, k, first)))
        M = steps[-1].M
        if len(M) == 16:
            if "ordB" in X: steps[-1].M = M[0:4] + M[8:12] + M[4:8] + M[12:16]
            if "ordC" in X: steps[-1].M = [M[0], M[1]] + [x for i in range(6) for x in (M[8 + i], M[2 + i])] + [M[14], M[15]]
            if "pvrev" in X and (n & 1): steps[-1].M = M[0:8] + M[8:16][::-1]
    ks = NQ - 2
    if not last:
        vr_ = v_reads((t + 1) % R, par ^ 1); kr_ = k_reads((t + 2) % R, par)
        if "nov" in X: vr_ = ["s_nop 0"] * 16
        if "nok" in X: kr_ = ["s_nop 0"] * 8
        if "v128" in X: vr_ = [x for j in range(8) for x in (f"ds_read_b128 {Vf(par ^ 1, j)}, v{KAD+(j&3)} offset:{VBASE+((t+1)%R)*TILE+(j>>2)*4096}", "s_nop 0")]
        if NQ == 6:
            for k in range(4): steps[k].add_mem(vr_[4 * k:4 * k + 4], [0, 0, 2, 2])
        else:
            steps[0].add_mem(vr_[0:6], [0, 0, 2, 2, 5, 9]); steps[1].add_mem(vr_[6:12], [0, 0, 2, 2, 5, 9]); steps[2].add_mem(vr_[12:16], [0, 0, 2, 2])
        steps[ks].add_mem(kr_[0:4], [0, 0, 2, 2]); steps[ks + 1].add_mem(kr_[4:8], [0, 0, 2, 2])
        nx = 4 * (ngroups(t, extra) + ngroups(t - 1, extra) + ngroups(t - 2, extra)) if extra in ("Q", "O") else 0
        w = f"s_waitcnt vmcnt({16*(R-2) + nx}) lgkmcnt(0)" if dma else "s_waitcnt lgkmcnt(0)"
        bp = int(E("BP", "0"))
        if bp == 0 or newround:
            steps[ks - 1].salu[-1].append(w)
            steps[ks].salu[0].append("s_barrier")
        else:
            steps[ks - 1].salu[-1 - bp].append(w)
            steps[ks - 1].salu[-bp].append("s_barrier")
        if dma:
            for q, a in enumerate(dma_advance()): steps[0].salu[1 + q].append(a)
            sl = [(steps[ks], p) for p in (3, 4, 6, 7, 9, 10, 12, 13, 15)] + [(steps[ks + 1], p) for p in (3, 4, 6, 8, 9, 10, 12)]
            place_dma(steps, sl)
        if extra == "Q":
            for gi in range(ngroups(t)):
                st = steps[1 + gi]
                pre, ld, post = qpf_group()
                st.salu[2] += pre
                st.add_mem(ld, [3, 4, 6, 8])
                for q, x in enumerate(post): st.salu[9 + q].append(x)
        if extra == "O":
            ng = 1
            for gi in range(ng):
                d = ODAT + 16 * gi
                rd = [f"ds_read_b128 {ar(d+4*i)}, v{ORD+(i&1)} offset:{gi*4096+i*1024}" for i in range(4)]
                steps[0].add_mem(rd, [10, 11, 12, 13] if gi == 0 else [14, 14, 15, 15])
                st = steps[1 + gi]
                so = [f"buffer_store_dwordx4 {ar(d+4*i)}, v{OOFF}, s[{SO}:{SO+3}], s{S_QPO} offen offset:{i*1024}{NT_O0}" for i in range(4)]
                if gi == 0:
                    st.salu[10].append("s_waitcnt lgkmcnt(6)")
                    st.add_mem(so, [10, 11, 13, 14])
                    st2, q0 = steps[2], 0
                    st.salu[15].append(f"s_add_u32 s{S_QPO}, s{S_QPO}, 4096")
                else:
                    st.add_mem(so, [4, 6, 7, 8])
                    st2, q0 = steps[2], 10
                    st.salu[9].append(f"s_add_u32 s{S_QPO}, s{S_QPO}, 4096")
                post = [f"s_sub_u32 s{S_QP}, s{S_QP}, 1", f"s_cmp_le_i32 s{S_QP}, 0", f"s_cselect_b32 s{S_QPO}, s{S_OOB}, s{S_QPO}"]
                for q, x in enumerate(post): st2.salu[q0 + q].append(x)
            steps[2].salu[13].append(f"s_cselect_b32 s{S_INC}, 0, {4096*ng}")
            steps[3].valu[5] = steps[3].valu[5] + [f"v_add_u32 v{ORD}, s{S_INC}, v{ORD}"]
            steps[3].valu[8] = steps[3].valu[8] + [f"v_add_u32 v{ORD+1}, s{S_INC}, v{ORD+1}"]
        if extra == "dummy":
            steps[1].add_mem([f"buffer_store_dwordx4 {ar(ODAT)}, v{OOFF}, s[{SO}:{SO+3}], s{S_OOB} offen" for _ in range(4 * ngroups(t))],
                             [3, 4, 6, 8, 10, 11, 13, 14][:4 * ngroups(t)])
    return steps

def add_lreduce(st, u, bit):
    Gs = l_reduce(u, bit)
    k = len(st.M)
    if k == 16:
        for gi, p in zip(Gs, (0, 2, 4, 6, 8, 10)): st.valu[p] = st.valu[p] + gi
        for x, p in zip(bad_flag(bit), (12, 13, 14)):
            st.salu[p].append(x)
    else:
        for i, gi in enumerate(Gs):
            st.valu[i] = st.valu[i] + (["s_nop 1"] if i in (1, 3) else []) + gi
        st.post += ["s_nop 1"] + bad_flag(bit)

def emit_variant(NQ, dma, tag):
    g.lab(f"L_start_{tag}")
    CUR_NQ[0] = NQ
    order = ["Q0"] * 4 + ["K0"] * 2 + ["K1"] * 2 + ["Q1"] * 4 + ["V0"] * 2 + ["V1"] * 2
    def groups(name):
        if name[0] == "Q":
            if int(name[1]) >= NQ: return []
            order.extend([name] * 4); return q_dma_groups()
        order.extend([name] * 2); return coop_groups(0 if name[0] == "K" else 1, int(name[1]))
    def issue(name):
        if name[0] == "Q":
            if int(name[1]) >= NQ: return
            emit_q_dma(); order.extend([name] * 4)
        elif name[0] == "T":
            emit_dma_tile_plain(); order.extend([name] * 16)
        else:
            emit_coop(0 if name[0] == "K" else 1, int(name[1])); order.extend([name] * 2)
    def wstr(name):
        a = len(order) - 1 - max(i for i, x in enumerate(order) if x == name)
        return f"s_waitcnt vmcnt({min(63, a)})"
    def wait(name): g.e(wstr(name))
    if dma:
        g.e(f"s_add_u32 s{S_DOFF}, s{S_HOFF}, {4*TILE}")
        g.e(f"s_add_u32 s{S_D2}, s{S_DOFF}, 4096")
        g.e(f"s_mov_b32 s{S_DCNT}, 4")
        g.e(f"s_mov_b32 s{S_DSLOT}, 0")
        g.e(f"s_mov_b32 s{S_OOB}, 0x10000000")
        g.e(f"s_add_u32 s{S_OST}, s{S_HOFF}, s{S_ROWB}")
        g.e(f"v_lshlrev_b32 v{CPF+6}, 3, v{OOFF}")
        for i, lab in enumerate(("L_trans_w0", "L_trans_w3", "L_trans_w0+8192", "L_trans_w3+8192", "L_trans_w3+16384", "L_trans_w0+16384")):
            g.e(f"v_add_u32 v{CPF+i}, {lab}-L_pc0, v{CPF+6}")
    stamp(1)
    topup = {1: ["Q4"], 2: ["Q5"], 3: ["K2", "K3"], 4: ["V2", "V3"]}
    if dma: topup = {1: ["Q4"], 2: ["K2", "K3"], 3: ["V2", "V3"], 4: ["T4"]}
    if "deep" in X:
        topup = {1: ["Q4", "Q5"], 2: ["K2", "K3"], 3: ["V2", "V3"]}
        if dma: topup = {1: ["Q4"], 2: ["K2", "K3"], 3: ["V2", "V3"], 4: ["T4"]}
    if "tl1" in X and dma: topup = {1: ["Q4"], 3: ["K2", "K3"], 4: ["V2", "V3"]}
    if "tl2" in X and dma: topup = {1: ["Q4"], 2: ["K2", "K3"], 3: ["V2", "V3"]}
    UB = NQ - 1
    wait("Q0")
    stamp(16)
    g.es(q_reads(0))
    if "q2late" not in X and "cap12" not in X: issue("Q2")
    g.e("s_waitcnt lgkmcnt(0)")
    g.es(prescale(0, 0))
    if "q2late" in X: issue("Q2")
    wait("K1")
    g.e("s_barrier")
    stamp(2)
    g.es(bc_reads(0, UB))
    g.es(k_reads(0, 0))
    issue("Q2" if "cap12" in X else "Q3")
    g.e("s_waitcnt lgkmcnt(8)")
    pm = prepass_mfma(0, UB); kr = k_reads(1, 1)
    for i in range(4): g.e(pm[i]); g.es(kr[2 * i:2 * i + 2])
    g.e("s_nop 5")
    g.es(prepass_neg(0))
    g.e("s_waitcnt lgkmcnt(8)")
    g.e("s_nop 0")
    n = 0
    def prevpair(m): return (m & 1, m >> 1)
    def mkstep(n):
        sm = None; pv = None
        if n >= 1: sm = (prevpair(n - 1)[1], prevpair(n - 1)[0] == 0)
        if n >= 2: pv = (prevpair(n - 2)[0], prevpair(n - 2)[1], prevpair(n - 2)[0] == 0)
        return Step(n, prevpair(n), sm, pv)
    if "late" not in X:
        for u in range(NQ):
            if dma and u == NQ - 1:
                if "tl1" in X or "tl2" in X: issue("T4")
                issue("T5")
            st = mkstep(2 * u)
            k = len(st.M)
            if u == 1: st.salu[7].append("s_waitcnt lgkmcnt(0)")
            if u < NQ - 1:
                st.salu[k - 5].append(wstr(f"Q{u+1}"))
                st.add_mem(q_reads(u + 1), [k - 5, k - 5, k - 3, k - 3])
                if u == 0: st.post = []
            else:
                kr = k_reads(2, 0)
                st.salu[7].append(wstr("K3"))
                st.salu[8].append("s_barrier")
                st.add_mem(kr[:4], [8, 10, 11, 13])
            st.emit()
            if u == 1: g.e("s_barrier")
            st = mkstep(2 * u + 1)
            if u < NQ - 1:
                stamp(17 + u)
                if u == 0 and "cap12" in X: issue("Q3")
                g.e("s_waitcnt lgkmcnt(0)")
                g.es(prescale(u + 1, 2 * u))
                if u == 0:
                    wait("V1")
                    g.e("s_barrier")
                    stamp(3)
                st.prepend(prepass_mfma(u + 1, UB))
                gs = []
                for x in topup.get(u + 1, []):
                    if x[0] == "T": issue(x)
                    else: gs += groups(x)
                for i, gi in enumerate(gs): st.mem[i if len(gs) <= 4 else (0, 1, 2, 3, 5, 7, 9, 11)[i]] += gi
                st.pre.append("s_nop 1")
                k = len(st.M)
                for x, p in zip(prepass_neg(u + 1), (k - 5, k - 4, k - 3, k - 2)): st.valu[p] = st.valu[p] + [x]
                if u == 0:
                    vv = v_reads(0, 0) + v_reads(1, 1)
                    st.add_mem(vv, [i * k // 32 for i in range(32)])
            else:
                st.add_mem(kr[4:], [0, 0, 2, 2])
                st.salu[15].append("s_waitcnt lgkmcnt(0)")
            st.emit()
    else:
        for u in range(NQ):
            if dma and u == NQ - 1:
                issue("T4"); issue("T5")
            s0 = mkstep(2 * u); s1 = mkstep(2 * u + 1)
            gs = []
            for x in topup.get(u + 1, []): gs += groups(x)
            if u == 0:
                for i, gi in enumerate(gs): s0.mem[2 * i] += gi
                s0.post.append("s_waitcnt lgkmcnt(0)")
            else:
                for (st, p), gi in zip(((s0, 0), (s0, 2), (s1, 0), (s1, 2)), gs): st.mem[p] += gi
            if u == 1: s0.salu[7].append("s_waitcnt lgkmcnt(0)")
            k = len(s1.M)
            if u < NQ - 1:
                s1.salu[k - 4].append(wstr(f"Q{u+1}"))
                s1.add_mem(q_reads(u + 1), [k - 4, k - 4, k - 3, k - 3])
                s1.post = []
            else:
                kr = k_reads(2, 0)
                s0.salu[7].append(wstr("K3"))
                s0.salu[8].append("s_barrier")
                s0.add_mem(kr[:4], [8, 10, 11, 13])
                s1.add_mem(kr[4:], [0, 0, 2, 2])
                s1.salu[15].append("s_waitcnt lgkmcnt(0)")
            s0.emit()
            if u == 1: g.e("s_barrier")
            s1.emit()
            if u < NQ - 1:
                stamp(17 + u)
                g.e("s_waitcnt lgkmcnt(0)")
                g.es(prescale(u + 1, 2 * u + 1))
                g.e("s_nop 1")
                g.es(prepass_mfma(u + 1, UB))
                if u == 0:
                    wait("V1")
                    g.e("s_barrier")
                    stamp(3)
                    g.es(v_reads(0, 0) + v_reads(1, 1))
                else:
                    g.e("s_nop 7")
                g.es(prepass_neg(u + 1))
                g.e("s_nop 1")
    n = 2 * NQ
    st = Step(n, (0, 0), (NQ - 1, False), (0, NQ - 1, True))
    st.add_mem(k_reads(3, 1), [0, 0, 2, 2, 4, 6, 8, 10])
    st.salu[15].append(wstr("V3"))
    st.emit(); n += 1
    st = Step(n, (0, 1), (0, False), (1, NQ - 1, False))
    st.salu[0].append("s_barrier")
    st.add_mem(v_reads(2, 0), [0, 0, 1, 1, 2, 2, 3, 3, 4, 4, 5, 6, 7, 8, 9, 10])
    st.emit(); n += 1
    assert n == NQ * 2 + 2
    g.e("s_waitcnt lgkmcnt(0)")
    g.e("s_barrier")
    if dma:
        g.e(f"s_add_u32 s{S_QPO}, s{S_HOFF2}, s{S_CROW}")
        g.e(f"s_mov_b32 s{S_QPL}, {STAGE}")
        for _ in range(2):
            pre, ld, post = qpf_group()
            g.es(pre + ["s_nop 0"] + ld + post[:2])
        emit_dma_tile_plain(advance=False)
    g.e(f"s_mov_b32 s{S_CNT}, 0")
    stamp(4)
    def emit_loop(name, extra, chk0, chk1):
        rot = "rot" in X and not dma
        m_first = make_body(NQ, 2, dma, extra=extra)[0].M[0]
        if rot: g.e(m_first)
        g.L.append(".p2align " + E("AL", "6"))
        g.lab(f"L_{name}_{tag}")
        for ph in (2, 3, 0, 1):
            if ph == 0: g.lab(f"L_{name}0_{tag}")
            steps = make_body(NQ, ph, dma, extra=extra)
            if rot and ph == 2: steps[0].M[0] = "; (first MFMA issued before the branch)"
            if ph == 3 and chk0:
                steps[NQ - 3].salu[14].append(f"s_cmp_eq_u32 s{S_CNT}, 10")
                steps[NQ - 3].post.append(f"s_cbranch_scc1 L_final_{tag}")
            if ph == 1:
                steps[-1].salu[13].append(f"s_add_u32 s{S_CNT}, s{S_CNT}, 1")
                if chk1:
                    steps[-1].salu[15].append(f"s_cmp_lt_u32 s{S_CNT}, 4" if dma else f"s_cmp_lg_u32 s{S_CNT}, 5")
            for st in steps: st.emit()
        if rot: g.e(m_first); SKIP_FIRST[0] = True
        if chk1:
            g.e(f"s_cbranch_scc1 L_{name}_{tag}")
            if dma:
                g.e(f"s_cmp_eq_u32 s{S_CNT}, 5")
                g.e(f"s_cbranch_scc1 L_trans_{tag}")
                for i in range(6): g.e(f"global_load_dword v{CPF+6}, v{CPF+i}, s[58:59]")
                g.e(f"s_branch L_{name}_{tag}")
        else: g.e(f"s_branch L_{name}_{tag}")
    if dma: emit_loop("loop", "Q", False, True)
    else: emit_loop("loop", None, True, True)

    def emit_special(t, final):
        steps = make_body(NQ, t, dma, last=final, newround=True, extra=None)
        nt = NT_O1 if final else NT_O0
        if SKIP_FIRST[0]:
            steps[0].M[0] = "; (first MFMA issued before the branch)"; SKIP_FIRST[0] = False
        for k, st in enumerate(steps):
            bit = (6 if final else 0) + k
            if final or k == 0:
                add_lreduce(st, k, bit)
                if not final: st.add_mem(q_reads(k), [4, 4, 6, 6])
            else:
                if k == 1: st.pre.append("s_waitcnt lgkmcnt(%d)" % (8 if dma else 4))
                st.prepend(prepass_mfma(k - 1, 0))
                st.add_mem(q_reads(k), [1, 1, 3, 3])
                for gi, p in zip(l_reduce(k, bit), (0, 2, 5, 7, 9, 11)): st.valu[p] = st.valu[p] + gi
                for x, p in zip(bad_flag(bit), (13, 14, 15)): st.salu[p].append(x)
                for x, p in zip(prepass_neg(k - 1), (13, 14, 15, 16)): st.valu[p] = st.valu[p] + [x]
            fine = ("fine" in X) and not final and k == int(E("FK", "2"))
            if fine: stamp(8)
            st.emit()
            g.e("s_waitcnt lgkmcnt(0)")
            if fine: stamp(9)
            if k > 0 and (final or dma): g.es(o_stores(k - 1, nt))
            if fine: stamp(14)
            L, rb = merged_block(k, st.n, bc_reads((t + 1) % R, 0) if k == 0 else None)
            g.es(L)
            if final or dma: g.es(rb)
            if fine: stamp(15)
            if fine: stamp(22)
        return nt
    g.lab(f"L_trans_{tag}")
    stamp(5)
    nt = emit_special(22, False)
    stamp(6)
    steps = make_body(NQ, 23, dma, first=True)
    st = steps[0]
    st.prepend(prepass_mfma(NQ - 1, 0))
    if dma:
        st.salu[14].append("s_waitcnt lgkmcnt(6)")
        st.add_mem(o_stores(NQ - 1, nt)[:4], [14, 15, 16, 17])
        st.salu[19].append(f"s_add_u32 s{S_OST}, s{S_HOFF2}, s{S_ROWB}")
    for x, p in zip(prepass_neg(NQ - 1), (13, 14, 15, 16)): st.valu[p] = st.valu[p] + [x]
    if dma:
        st.salu[0].append(f"s_add_u32 s{S_QPO}, s{S_HOFF}, s{S_CROW}")
        st.salu[1].append(f"s_mov_b32 s{S_QP}, 18")
        st.valu[0].append(f"v_add_u32 v{ORD}, {STAGE}, v{DK}")
        st.valu[1].append(f"v_add_u32 v{ORD+1}, {STAGE}, v{DK+1}")
    for st in steps: st.emit()
    stamp(10)
    if dma:
        g.e(f"s_branch L_loopb0_{tag}")
        emit_loop("loopb", "O", True, False)
    else:
        g.e(f"s_branch L_loop0_{tag}")
    g.lab(f"L_final_{tag}")
    stamp(11)
    nt = NT_O1
    ks = NQ - 2
    if dma: g.e("s_waitcnt vmcnt(32)")
    stamp(8)
    def pair(m):
        if m < 0: return (1, NQ + m)
        return (m & 1, m >> 1)
    vr45 = v_reads(45 % R, 1)
    for m in range(2 * NQ + 2):
        n = NQ * 44 + m
        qk = pair(m) if m < 2 * NQ else None
        sm = (pair(m - 1)[1], False) if m - 1 < 2 * NQ else None
        pv = pair(m - 2) + (False,)
        has_st = m >= 4 and m % 2 == 0
        st = Step(n, qk, sm, pv, alt=has_st)
        if m == 0:
            st.salu[0].append("s_barrier")
            st.add_mem(k_reads(45 % R, 1), [0, 0, 1, 2, 2, 3, 4, 5])
            st.salu[15].append("s_waitcnt lgkmcnt(0)")
        if m == 1: st.add_mem(vr45[:6], [10, 11, 12, 13, 14, 15])
        if m == 2: st.add_mem(vr45[6:], [0, 0, 1, 2, 2, 3, 4, 6, 8, 10])
        if m == 3: st.salu[7].append("s_waitcnt lgkmcnt(0)")
        if has_st:
            u = (m - 4) // 2
            so = o_stores(u, nt)
            if len(st.M) == 16:
                sp = [int(x) for x in E("SP", "9,9,12,12").split(",")]
                st.salu[sp[0] - 1].append("s_waitcnt lgkmcnt(0)")
                st.add_mem(so[:4], sp)
                st.post.append(so[4])
            else:
                st.salu[3].append("s_waitcnt lgkmcnt(0)")
                st.add_mem(so[:4], [3, 4, 5, 6])
                st.salu[7].append(so[4])
        if m >= 3 and m % 2 == 1:
            u = (m - 3) // 2
            add_lreduce(st, u, 6 + u)
        st.emit()
        if "ffine" in X and m in (3, 6, 7, 8, 9): stamp({3: 14, 6: 16, 7: 17, 8: 19, 9: 20}[m])
        if m >= 3 and m % 2 == 1:
            L, rb = epilogue_ops(u, n)
            g.es(L); g.es(rb)
            if "ffine" in X and m in (5, 7, 9): stamp({5: 15, 7: 18, 9: 21}[m])
    g.e("s_waitcnt lgkmcnt(0)")
    g.es(o_stores(NQ - 1, nt))
    stamp(12)
    g.e(f"s_cmp_lg_u32 s{S_BAD}, 0")
    g.e("s_cbranch_scc1 L_slow")
    stamp_out()
    g.e("s_endpgm")

def emit_slow():
    SB_, ST_, SH_, SR_, SX_ = 60, 61, 62, 63, 58
    VT = Q(1, 0)
    M_ = Q(2, 0)
    o = OVB; l = LB; c = CB; sreg = SB; p = PB
    def tile_dma(which, ldsoff):
        srd = SK if which == 0 else SV
        for hh in range(2):
            g.e(f"s_add_u32 m0, s{S_STG}, {ldsoff + hh*4096}")
            g.e(f"s_add_u32 s{SX_}, s{ST_}, {hh*4096}")
            for i in range(4):
                va = DK + i if which == 0 else DV + (i & 1)
                g.e(f"buffer_load_dwordx4 v{va}, s[{srd}:{srd+3}], s{SX_} offen offset:{i*1024} lds")
    def kreads():
        for kt in range(2):
            for s_ in range(4): g.e(f"ds_read_b128 {Kf(0, kt*4+s_)}, v{QA+s_} offset:{4096+kt*4096}")
    def qk(cz):
        for kt in range(2):
            for s_ in range(4):
                d = vr(sreg + kt * 4)
                g.e(mfma(d, Kf(0, kt * 4 + s_), vr(Q(0, s_)), (("0" if cz else vr(c)) if s_ == 0 else d)))
        g.e("s_nop 7")
    def xlane(r, t, op):
        for sw in ("v_permlane16_swap_b32", "v_permlane32_swap_b32"):
            g.es([f"v_mov_b32 v{t}, v{r}", "s_nop 1", f"{sw} v{r}, v{t}", "s_nop 1", f"{op} v{r}, v{r}, v{t}"])
    g.lab("L_slow")
    g.e(f"s_sub_u32 s{SX_}, s{S_STG}, {VBASE - 12288}")
    for j in range(8): g.e(f"v_add_u32 v{VT+j}, s{SX_}, v{VAD+j}")
    g.lab("L_slow_next")
    g.e("s_waitcnt vmcnt(0) lgkmcnt(0)")
    g.e(f"s_ff1_i32_b32 s{SB_}, s{S_BAD}")
    g.e(f"s_bitset0_b32 s{S_BAD}, s{SB_}")
    g.e(f"s_cmp_ge_u32 s{SB_}, 6")
    g.e(f"s_cselect_b32 s{SH_}, s{S_HOFF2}, s{S_HOFF}")
    g.e(f"s_cselect_b32 s{SX_}, 6, 0")
    g.e(f"s_sub_u32 s{SB_}, s{SB_}, s{SX_}")
    g.e(f"s_lshl_b32 s{SB_}, s{SB_}, 12")
    g.e(f"s_add_u32 s{SR_}, s{SH_}, s{S_ROWB}")
    g.e(f"s_add_u32 s{SR_}, s{SR_}, s{SB_}")
    g.e(f"s_mov_b32 m0, s{S_STG}")
    g.e("s_nop 0")
    for i in range(4):
        g.e(f"buffer_load_dwordx4 v{DK+i}, s[{SQ}:{SQ+3}], s{SR_} offen offset:{i*1024} lds")
    g.e("s_waitcnt vmcnt(0)")
    g.es(q_reads(0))
    g.e("s_waitcnt lgkmcnt(0)")
    g.es(prescale(0, 0))
    g.e(f"v_mov_b32 v{M_}, 0xff800000")
    g.e(f"s_mov_b32 s{ST_}, s{SH_}")
    g.e(f"s_add_u32 s{SB_}, s{SH_}, {HEAD_BYTES}")
    g.lab("L_slow_p1")
    tile_dma(0, 4096)
    g.e("s_waitcnt vmcnt(0)")
    kreads()
    g.e("s_waitcnt lgkmcnt(0)")
    qk(True)
    for i in range(0, 8, 2): g.e(f"v_max3_f32 v{M_}, v{M_}, v{sreg+i}, v{sreg+i+1}")
    g.e(f"s_add_u32 s{ST_}, s{ST_}, {TILE}")
    g.e(f"s_cmp_lt_u32 s{ST_}, s{SB_}")
    g.e("s_cbranch_scc1 L_slow_p1")
    xlane(M_, M_ + 1, "v_max_f32")
    for k in range(4): g.e(f"v_sub_f32 v{c+k}, 0, v{M_}")
    for k in range(32): g.e(f"v_mov_b32 v{o+k}, 0")
    g.e(f"v_mov_b32 v{l}, 0")
    g.e(f"s_mov_b32 s{ST_}, s{SH_}")
    g.lab("L_slow_p2")
    tile_dma(0, 4096)
    tile_dma(1, 12288)
    g.e("s_waitcnt vmcnt(0)")
    kreads()
    g.e("s_waitcnt lgkmcnt(0)")
    for j in range(8):
        for h in range(2): g.e(f"ds_read_b64_tr_b16 {Vf(0, j, 2, 2*h)}, v{VT+j} offset:{h*4096}")
    qk(False)
    for i in range(8): g.e(f"v_exp_f32 v{sreg+i}, v{sreg+i}")
    g.e("s_nop 0")
    for i in range(8): g.e(f"v_add_f32 v{l}, v{l}, v{sreg+i}")
    for i in range(4): g.e(f"v_cvt_pk_bf16_f32 v{p+i}, v{sreg+2*i}, v{sreg+2*i+1}")
    g.e("s_waitcnt lgkmcnt(0)")
    g.e("s_nop 1")
    for j in range(8): g.e(mfma(vr(o + 4 * j), Vf(0, j), vr(p), vr(o + 4 * j)))
    g.e(f"s_add_u32 s{ST_}, s{ST_}, {TILE}")
    g.e(f"s_cmp_lt_u32 s{ST_}, s{SB_}")
    g.e("s_cbranch_scc1 L_slow_p2")
    xlane(l, l + 1, "v_add_f32")
    g.e(f"v_rcp_f32 v{l}, v{l}")
    g.e("s_nop 7")
    for k in range(0, 32, 2): g.e(f"v_pk_mul_f32 v[{o+k}:{o+k+1}], v[{o+k}:{o+k+1}], v[{l}:{l+1}] op_sel_hi:[1,0]")
    for k in range(16): g.e(f"v_cvt_pk_bf16_f32 v{o+k}, v{o+2*k}, v{o+2*k+1}")
    for j in range(8): g.e(f"ds_write_b64 v{EW+(j&3)}, v[{o+2*j}:{o+2*j+1}] offset:{(j>>2)*128}")
    for i in range(4): g.e(f"ds_read_b128 {vr(o+16+4*i)}, v{ER+(i&1)} offset:{i*1024}")
    g.e("s_waitcnt lgkmcnt(0)")
    for i in range(4): g.e(f"buffer_store_dwordx4 {vr(o+16+4*i)}, v{OOFF}, s[{SO}:{SO+3}], s{SR_} offen offset:{i*1024}")
    g.e(f"s_cmp_lg_u32 s{S_BAD}, 0")
    g.e("s_cbranch_scc1 L_slow_next")
    g.e("s_endpgm")

def emit_addr_setup():
    for s in range(4):
        g.e(f"v_add_u32 v5, {4*s}, v14")
        g.e("v_xor_b32 v5, v5, v13")
        g.e("v_lshlrev_b32 v5, 4, v5")
        g.e(f"v_lshl_add_u32 v{KAD+s}, v13, 8, v5")
    g.e("v_lshrrev_b32 v6, 2, v12")
    g.e("v_and_b32 v7, 3, v12")
    g.e("v_lshlrev_b32 v8, 8, v6")
    g.e("v_lshl_add_u32 v8, v7, 3, v8")
    g.e(f"v_add_u32 v8, {VBASE}, v8")
    g.e("v_and_b32 v6, 7, v6")
    for j in range(8):
        g.e(f"v_xor_b32 v5, {j}, v6")
        g.e(f"v_lshl_add_u32 v{VAD+j}, v5, 5, v8")
    g.e(f"v_lshlrev_b32 v{OOFF}, 4, v12")
    g.e("v_lshrrev_b32 v5, 1, v14")
    g.e("v_and_b32 v6, 7, v13")
    g.e("v_xor_b32 v5, v5, v6")
    g.e("v_lshlrev_b32 v5, 4, v5")
    g.e("v_lshl_add_u32 v5, v13, 8, v5")
    g.e("v_and_b32 v6, 1, v14")
    g.e("v_lshl_add_u32 v5, v6, 3, v5")
    g.e(f"v_add_u32 v{EW}, s{S_STG}, v5")
    for j in range(1, 4): g.e(f"v_xor_b32 v{EW+j}, {j<<5}, v{EW}")
    g.e(f"v_add_u32 v{ER}, s{S_STG}, v{DK}")
    g.e(f"v_add_u32 v{ER+1}, s{S_STG}, v{DK+1}")
    for s in range(4): g.e(f"v_add_u32 v{QA+s}, s{S_STG}, v{KAD+s}")
    def bf16_rne(x):
        u = f2u(x); return (u + 0x7fff + ((u >> 16) & 1)) >> 16
    chi = bf16_rne(CSCALE); chi_f = struct.unpack("<f", struct.pack("<I", chi << 16))[0]
    clo = bf16_rne(CSCALE - chi_f)
    g.e("v_lshlrev_b32 v0, 4, v14")
    g.e("v_and_b32 v15, 3, v12")
    g.e("v_lshlrev_b32 v15, 4, v15")
    g.e(f"s_mov_b32 s{S_C}, {hex(chi)}")
    g.e(f"s_mov_b32 s{S_C+1}, 0")
    g.e(f"v_lshlrev_b64 v[{PT}:{PT+1}], v15, s[{S_C}:{S_C+1}]")
    g.e(f"s_mov_b32 s{S_C}, {hex(clo)}")
    g.e(f"v_lshlrev_b64 v[{PT+2}:{PT+3}], v15, s[{S_C}:{S_C+1}]")
    g.e(f"s_mov_b32 s{S_THR}, {hex(f2u(2.0**64))}")
    g.e(f"s_mov_b32 s{S_BAD}, 0")
    g.e(f"s_mov_b32 s{S_POFF}, {hex(f2u(POFF))}")
    g.e(f"s_add_u32 s{S_OST}, s{S_HOFF2}, s{S_ROWB}")

def main():
    hdr = open("cdna_kernels/" + NAME + ".s.ref").read().split("; @launch")[0]
    out = hdr + f"; @launch grid=(256,1,1) block=(256,1,1) lds={LDS_BYTES}\n"
    out += f'''.amdgcn_target "amdgcn-amd-amdhsa--gfx950"
.text
.globl {NAME}_kernel
.p2align 8
.type {NAME}_kernel,@function
{NAME}_kernel:
'''
    if STAMP:
        if STAMP != 3:
            g.es(["s_memrealtime s[38:39]", "s_waitcnt lgkmcnt(0)", "s_mov_b32 s94, s38"])
        stamp(0)
        if STAMP != 3:
            for i in range(65, 88): g.e(f"s_mov_b32 s{i}, s64")
    g.e("s_load_dwordx8 s[40:47], s[0:1], 0")
    g.e("s_cmp_ge_u32 s2, 256")
    g.e("s_cbranch_scc1 L_done")
    if "pf0" in X:
        g.e("s_getpc_b64 s[58:59]")
        g.lab("L_pc0")
        g.e("v_lshlrev_b32 v16, 7, v0")
        g.e("v_cmp_lt_u32 vcc, 127, v0")
        g.e(f"v_mov_b32 v17, L_start_w3-L_pc0-16384")
        g.e("s_nop 0")
        g.e("v_cndmask_b32 v17, 0, v17, vcc")
        g.e("v_add_u32 v16, v16, v17")
        g.e("global_load_dword v17, v16, s[58:59]")
    g.e("v_lshrrev_b32 v11, 6, v0")
    g.e("v_and_b32 v12, 63, v0")
    g.e(f"v_readfirstlane_b32 s{S_WAVE}, v11")
    g.e("v_and_b32 v13, 15, v12")
    g.e("v_lshrrev_b32 v14, 4, v12")
    g.e("s_and_b32 s3, s2, 7")
    g.e("s_lshr_b32 s4, s2, 3")
    g.e("s_lshr_b32 s5, s4, 1")
    g.e("s_and_b32 s4, s4, 1")
    g.e("s_lshl_b32 s3, s3, 5")
    g.e("s_add_u32 s3, s3, s5")
    g.e(f"s_mul_i32 s{S_HOFF}, s3, {HEAD_BYTES}")
    g.e(f"s_add_u32 s{S_HOFF2}, s{S_HOFF}, {16*HEAD_BYTES}")
    g.e(f"s_mul_i32 s{S_CROW}, s4, {368*256}")
    g.e(f"s_mul_i32 s5, s{S_WAVE}, {96*256}")
    g.e(f"s_add_u32 s{S_ROWB}, s{S_CROW}, s5")
    g.e(f"s_add_u32 s{S_STG}, s5, {STAGE}")
    g.e(f"s_add_u32 s{S_QPO}, s{S_HOFF}, s{S_ROWB}")
    g.e(f"s_mov_b32 s{S_QPL}, s{S_STG}")
    g.e("v_lshlrev_b32 v15, 8, v14")
    for i in range(4):
        g.e(f"v_add_u32 v5, {4*i}, v14")
        g.e("v_xor_b32 v5, v5, v13")
        g.e(f"v_lshl_add_u32 v{DK+i}, v5, 4, v15")
    for i in range(2):
        g.e(f"v_lshl_add_u32 v5, v14, 1, {8*i}")
        g.e("v_xor_b32 v5, v5, v13")
        g.e(f"v_lshl_add_u32 v{DV+i}, v5, 4, v15")
    g.e("v_lshl_add_u32 v5, v11, 2, v14")
    g.e("v_xor_b32 v6, v5, v13")
    g.e(f"v_lshl_add_u32 v{CK_}, v6, 4, v15")
    g.e("v_and_b32 v5, 7, v5")
    g.e("v_lshlrev_b32 v5, 1, v5")
    g.e("v_xor_b32 v6, v5, v13")
    g.e(f"v_lshl_add_u32 v{CV_}, v6, 4, v15")
    g.e(f"s_lshl_b32 s{S_CW}, s{S_WAVE}, 10")
    g.e(f"s_add_u32 s{S_CG}, s{S_HOFF}, s{S_CW}")
    g.e("s_waitcnt lgkmcnt(0)")
    for i, srd in ((0, SQ), (1, SK)):
        g.e(f"s_mov_b32 s{srd}, s{40+2*i}")
        g.e(f"s_and_b32 s{srd+1}, s{41+2*i}, 0xffff")
        g.e(f"s_mov_b32 s{srd+2}, {TOTAL_BYTES}")
        g.e(f"s_mov_b32 s{srd+3}, 0x20000")
    stamp(7); emit_q_dma(); emit_coop(0, 0); emit_coop(0, 1)
    emit_addr_setup()
    for i, srd in ((2, SV), (3, SO)):
        g.e(f"s_mov_b32 s{srd}, s{40+2*i}")
        g.e(f"s_and_b32 s{srd+1}, s{41+2*i}, 0xffff")
        g.e(f"s_mov_b32 s{srd+2}, {TOTAL_BYTES}")
        g.e(f"s_mov_b32 s{srd+3}, 0x20000")
    emit_q_dma(); emit_coop(1, 0); emit_coop(1, 1)
    g.e(f"s_cmp_eq_u32 s{S_WAVE}, 3")
    g.e("s_cbranch_scc1 L_start_w3")
    emit_variant(6, False, "w0")
    emit_variant(5, True, "w3")
    emit_slow()
    g.lab("L_done")
    g.e("s_endpgm")
    if "pf" in X: g.L.append(".fill 2048, 4, 0xbf810000")
    out += "\n".join(g.L) + "\n"
    out += f'''.section .rodata,"a"
.p2align 6
.amdhsa_kernel {NAME}_kernel
  .amdhsa_next_free_vgpr 512
  .amdhsa_next_free_sgpr 96
  .amdhsa_accum_offset 256
  .amdhsa_group_segment_fixed_size 0
  .amdhsa_kernarg_size 48
  .amdhsa_user_sgpr_count 2
  .amdhsa_user_sgpr_kernarg_segment_ptr 1
  .amdhsa_system_sgpr_workgroup_id_x 1
.end_amdhsa_kernel
'''
    fn = sys.argv[1] if len(sys.argv) > 1 else "cdna_kernels/" + NAME + ".s"
    open(fn, "w").write(out)
main()
```

```python
import sys, os, struct
NAME = "standalone__gqa_softmax__near_ridge"
R = 4
TILE = 8192
VBASE = R * TILE
STAGE = 2 * R * TILE
LDS_BYTES = STAGE + 24 * 4096
HEAD_BYTES = 736 * 256
TOTAL_BYTES = 256 * HEAD_BYTES
E = os.environ.get
STAMP = int(E("STAMP", "0"))
NT_KV = E("NT_KV", " nt"); NT_Q = E("NT_Q", " nt"); NT_O0 = E("NT_O0", " sc1"); NT_O1 = E("NT_O1", " sc1")
X = E("X", "pf,pf0,tl1,rot").split(",")
def f2u(x): return struct.unpack("<I", struct.pack("<f", x))[0]
CSCALE = 1.4426950408889634 / (128 ** 0.5)

CUR_NQ = [6]
OVB = 112
def Oisv(u): return u >= CUR_NQ[0] - 2
def Obase(u): return OVB + (u - (CUR_NQ[0] - 2)) * 32 if Oisv(u) else u * 32
def Or(u, off, n=4):
    b = Obase(u) + off
    return (f"v[{b}:{b+n-1}]" if Oisv(u) else f"a[{b}:{b+n-1}]")
KA = 128; VA = 192
QB = 16; SB = 176; PB = 192; CB = 200; LB = 224
KAD = 236; VAD = 240
DK = 248; DV = 252; OOFF = 254
EW = 2
ER = 6
QA = 8
PT = 12
CK_ = 255
CV_ = 1
def Q(u, s): return QB + (u * 4 + s) * 4
def vr(b, n=4): return f"v[{b}:{b+n-1}]"
def ar(b, n=4): return f"a[{b}:{b+n-1}]"
def Kf(par, f, n=4, o=0): return ar(KA + par * 32 + f * 4 + o, n)
def Vf(par, j, n=4, o=0): return ar(VA + par * 32 + j * 4 + o, n)
SQ, SK, SV, SO = 8, 12, 16, 20
S_WAVE = 24; S_HOFF = 25; S_HOFF2 = 26; S_BAD = 27; S_CNT = 28; S_T = 29
S_C = 30
S_DOFF = 32; S_DCNT = 33; S_DSLOT = 34; S_D2 = 35; S_THR = 36; S_OOB = 37
S_ROWB = 50; S_STG = 51; S_QP = 52; S_QPO = 53; S_QPL = 54; S_OST = 55; S_T2 = 56
S_TLO = 57
S_POFF = 61
POFF = float(E('POFF', '-43'))
S_CROW = 63
S_INC = 62
CPF = 98
ORD = 96
ODAT = 96
S_CW = 6; S_CG = 7

class G:
    def __init__(self): self.L = []
    def e(self, s): self.L.append("    " + s)
    def es(self, l):
        for s in l: self.e(s)
    def lab(self, s): self.L.append(s + ":")
    def c(self, s): self.L.append("    ; " + s)
g = G()

NSPIN = 0
SKIP_FIRST = [False]
def stamp(i):
    if not STAMP: return
    g.e("s_memrealtime s[38:39]" if STAMP in (3, 4) else "s_memtime s[38:39]")
    g.e("s_waitcnt lgkmcnt(0)")
    g.e(f"s_mov_b32 s{64+i}, s38")
def stamp_out():
    if not STAMP: return
    g.e("s_waitcnt vmcnt(0)")
    stamp(13)
    if STAMP == 3:
        ph = int(E("PH", "0"))
        global NSPIN
        NSPIN += 1
        g.e(f"s_add_u32 s3, s{64+ph}, 10000")
        g.lab(f"L_spin{NSPIN}")
        g.es(["s_sleep 2", "s_memrealtime s[38:39]", "s_waitcnt lgkmcnt(0)", "s_sub_u32 s4, s3, s38", "s_cmp_gt_i32 s4, 0", f"s_cbranch_scc1 L_spin{NSPIN}"])
        return
    g.e("s_memrealtime s[38:39]")
    g.e("s_load_dwordx2 s[48:49], s[0:1], 40")
    g.e("s_waitcnt lgkmcnt(0)")
    g.e("s_mov_b32 s95, s38")
    g.e("s_lshl_b32 s3, s2, 2")
    g.e(f"s_add_u32 s3, s3, s{S_WAVE}")
    g.e("s_lshl_b32 s3, s3, 7")
    g.e("v_mov_b32 v2, s3")
    g.e("s_mov_b64 exec, 1")
    for i in list(range(24)) + [30, 31]:
        g.e(f"v_mov_b32 v3, s{64+i}")
        g.e(f"global_store_dword v2, v3, s[48:49] offset:{i*4}")

def mfma(d, a, b, c): return f"v_mfma_f32_16x16x32_bf16 {d}, {a}, {b}, {c}"
def qk_mfmas(u, par, sbuf):
    M = []
    for kt in range(2):
        for s in range(4):
            d = vr(SB + sbuf * 8 + kt * 4)
            c = vr(CB + u * 4) if s == 0 else d
            if "qkswap" in X: M.append(mfma(d, vr(Q(u, s)), Kf(par, kt * 4 + s), c))
            else: M.append(mfma(d, Kf(par, kt * 4 + s), vr(Q(u, s)), c))
    return M
def pv_mfmas(u, par, pbuf, first):
    if "swap" in X: return [mfma(Or(u, 4 * j), vr(PB + pbuf * 4), Vf(par, j), "0" if first else Or(u, 4 * j)) for j in range(8)]
    return [mfma(Or(u, 4 * j), Vf(par, j), vr(PB + pbuf * 4), E("OBIAS", "0") if first else Or(u, 4 * j)) for j in range(8)]
def sm_units(u, buf, first, alt=False):
    s = SB + buf * 8; p = PB + buf * 4
    Ex = lambda i: f"v_exp_f32 v{s+i}, v{s+i}"
    def A(i):
        l = LB + u * 2 + (i & 1)
        if first and i < 2: return f"v_mov_b32 v{l}, v{s+i}"
        return f"v_add_f32 v{l}, v{l}, v{s+i}"
    C = lambda i: f"v_cvt_pk_bf16_f32 v{p+i}, v{s+2*i}, v{s+2*i+1}"
    if alt:
        return [[Ex(0)], [Ex(1)], [Ex(2)], [A(0), A(1)], [Ex(3)], [C(0), A(2)], [Ex(4)], [A(3), C(1)], [Ex(5)], [],
                [Ex(6)], [A(4), A(5)], [], [Ex(7)], [C(2), A(6)], [A(7), C(3)]]
    return [[], [Ex(0)], [], [Ex(1)], [Ex(2)], [A(0), A(1)], [Ex(3)], [C(0), A(2)], [Ex(4)], [A(3), C(1)],
            [Ex(5)], [Ex(6)], [A(4), A(5)], [Ex(7)], [C(2), A(6)], [A(7), C(3)]]
def k_reads(slot, par):
    return [f"ds_read_b128 {Kf(par, kt*4+s)}, v{KAD+s} offset:{slot*TILE+kt*4096}" for kt in range(2) for s in range(4)]
def v_reads(slot, par):
    return [f"ds_read_b64_tr_b16 {Vf(par, j, 2, 2*h)}, v{VAD+j} offset:{slot*TILE+h*4096}" for j in range(8) for h in range(2)]
def q_reads(u):
    return [f"ds_read_b128 {vr(Q(u,s))}, v{QA+s} offset:{u*4096}" for s in range(4)]

class Step:
    def __init__(self, n, qk, sm, pv, alt=False):
        self.M = (qk_mfmas(qk[1], qk[0], n & 1) if qk else []) + (pv_mfmas(pv[1], pv[0], n & 1, pv[2]) if pv else [])
        k = len(self.M)
        self.n = n
        self.salu = [[] for _ in range(k)]; self.mem = [[] for _ in range(k)]; self.valu = [[] for _ in range(k)]
        self.pre = []; self.post = []
        if sm:
            U = sm_units(sm[0], (n - 1) & 1, sm[1], alt and k == 16)
            if k == 16:
                for t in range(16): self.valu[t] = list(U[t])
            else:
                for t in range(8): self.valu[t] = U[2 * t] + U[2 * t + 1]
        if not qk: self.pre.append("s_nop 1")
        if not pv: self.post.append("s_nop 7")
    def prepend(self, ms):
        k = len(ms)
        self.M = list(ms) + self.M
        self.salu = [[] for _ in range(k)] + self.salu; self.mem = [[] for _ in range(k)] + self.mem; self.valu = [[] for _ in range(k)] + self.valu
    def add_mem(self, ops, pos):
        assert len(ops) == len(pos), (len(ops), len(pos))
        for o, p in zip(ops, pos): self.mem[p].append(o)
    def emit(self):
        if "nodma" in X: self.mem = [[x for x in m if not x.startswith("buffer_load")] for m in self.mem]
        if "nobar" in X: self.salu = [[x for x in m if not x.startswith("s_barrier")] for m in self.salu]
        if "e64" in X:
            self.valu = [[x.replace("v_exp_f32 ", "v_exp_f32_e64 ") for x in m] for m in self.valu]
        g.es(self.pre)
        for i, m in enumerate(self.M):
            g.e(m); g.es(self.salu[i]); g.es(self.mem[i]); g.es(self.valu[i])
        g.es(self.post)

def dma_tile_ops():
    ops = []
    for which in range(2):
        srd = SK if which == 0 else SV
        for hh in range(2):
            for i in range(4):
                pre = None
                if i == 0:
                    off = (VBASE if which else 0) + hh * 4096
                    pre = f"s_add_u32 m0, s{S_DSLOT}, {off}"
                so = S_DOFF if hh == 0 else S_D2
                va = DK + i if which == 0 else DV + (i & 1)
                ops.append((pre, f"buffer_load_dwordx4 v{va}, s[{srd}:{srd+3}], s{so} offen offset:{i*1024}{NT_KV} lds"))
    return ops
def dma_advance():
    return [
        f"s_add_u32 s{S_DCNT}, s{S_DCNT}, 1",
        f"s_add_u32 s{S_DOFF}, s{S_DOFF}, {TILE}",
        f"s_cmp_eq_u32 s{S_DCNT}, 23", f"s_cselect_b32 s{S_DOFF}, s{S_HOFF2}, s{S_DOFF}",
        f"s_cmp_eq_u32 s{S_DCNT}, 46", f"s_cselect_b32 s{S_DOFF}, s{S_OOB}, s{S_DOFF}",
        f"s_add_u32 s{S_D2}, s{S_DOFF}, 4096",
        f"s_add_u32 s{S_DSLOT}, s{S_DSLOT}, {TILE}",
        f"s_and_b32 s{S_DSLOT}, s{S_DSLOT}, {R*TILE-1}",
    ]
def emit_dma_tile_plain(advance=True):
    for pre, d in dma_tile_ops():
        if pre: g.e(pre); g.e("s_nop 0")
        g.e(d)
    if advance: g.es(dma_advance())
def place_dma(steps, slots):
    prev = None
    for (st, p), (pre, d) in zip(slots, dma_tile_ops()):
        if pre:
            if p > 0 and prev != (st, p - 1) and prev != (st, p) and not any("s_cmp" in x for x in st.salu[p - 2:p] for x in x):
                st.salu[p - 1].append(pre)
            else:
                st.mem[p] += [pre, "s_nop 0"]
        st.mem[p].append(d)
        prev = (st, p)
def q_dma_groups():
    G_ = [[f"buffer_load_dwordx4 v{DK+i}, s[{SQ}:{SQ+3}], s{S_QPO} offen offset:{i*1024}{NT_Q} lds"] for i in range(4)]
    G_[0] = [f"s_mov_b32 m0, s{S_QPL}", f"s_add_u32 s{S_QPL}, s{S_QPL}, 4096"] + G_[0]
    G_[3] = G_[3] + [f"s_add_u32 s{S_QPO}, s{S_QPO}, 4096"]
    return G_
def coop_groups(which, t):
    srd = SK if which == 0 else SV
    G_ = []
    for hh in range(2):
        off = t * TILE + hh * 4096
        G_.append([f"s_add_u32 m0, s{S_CW}, {off + (VBASE if which else 0)}", f"s_add_u32 s{S_T}, s{S_CG}, {off}",
                   f"buffer_load_dwordx4 v{CV_ if which else CK_}, s[{srd}:{srd+3}], s{S_T} offen{NT_KV} lds"])
    return G_
def emit_q_dma():
    for x in q_dma_groups(): g.es(x)
def emit_coop(which, t):
    for x in coop_groups(which, t): g.es(x)

def prescale(u, n):
    sb = SB + ((n - 1) & 1) * 8
    blk = [sb, sb + 4, PB + (n & 1) * 4, CB + 4 * u]
    q = Q(u, 0)
    H = lambda i: f"v_mfma_f32_4x4x4_16b_bf16 {vr(blk[i%4])}, v[{PT}:{PT+1}], v[{q+2*i}:{q+2*i+1}], 0"
    Lo = lambda i: f"v_mfma_f32_4x4x4_16b_bf16 {vr(blk[i%4])}, v[{PT+2}:{PT+3}], v[{q+2*i}:{q+2*i+1}], {vr(blk[i%4])}"
    C = lambda i, h: f"v_cvt_pk_bf16_f32 v{q+2*i+h}, v{blk[i%4]+2*h}, v{blk[i%4]+2*h+1}"
    seq = [("H", 0)]
    for i in range(0, 10):
        if i + 1 < 8: seq.append(("H", i + 1))
        if 0 <= i - 2 < 8: seq.append(("C0", i - 2))
        if i < 8: seq.append(("L", i))
        if 0 <= i - 2 < 8: seq.append(("C1", i - 2))
    L = []; pos = {}; cur = 0
    for kind, i in seq:
        need = 0
        if kind == "L": need = pos[("H", i)] + 1 + 2
        if kind[0] == "C": need = pos[("L", i)] + 1 + 5
        if cur < need:
            L.append(f"s_nop {need - cur - 1}"); cur = need
        L.append(H(i) if kind == "H" else Lo(i) if kind == "L" else C(i, int(kind[1])))
        pos[(kind, i)] = cur; cur += 1
    return L
def bc_reads(slot, ub):
    return [f"ds_read_b128 {Or(ub, 16+4*s_)}, v0 offset:{slot*TILE+s_*64}" for s_ in range(4)]
def prepass_mfma(u, ub):
    d = vr(CB + u * 4)
    return [mfma(d, Or(ub, 16 + 4 * s_), vr(Q(u, s_)), "0" if s_ == 0 else d) for s_ in range(4)]
def prepass_neg(u):
    c = CB + u * 4
    return [f"v_sub_f32 v{c+k}, s{S_POFF}, v{c+k}" for k in range(4)]
def l_reduce(u, bit):
    l = LB + 2 * u
    return [[f"v_add_f32 v{l}, v{l}, v{l+1}", f"v_mov_b32 v{l+1}, v{l}"],
            [f"v_permlane16_swap_b32 v{l}, v{l+1}"],
            [f"v_add_f32 v{l}, v{l}, v{l+1}", f"v_mov_b32 v{l+1}, v{l}"],
            [f"v_permlane32_swap_b32 v{l}, v{l+1}"],
            [f"v_add_f32 v{l}, v{l}, v{l+1}", f"v_subrev_u32 v{l+1}, s{S_TLO}, v{l}"],
            [f"v_cmp_le_u32 vcc, s{S_THR}, v{l+1}", f"v_rcp_f32 v{l}, v{l}"]]
def bad_flag(bit):
    return ["s_cmp_lg_u64 vcc, 0", f"s_cselect_b32 s{S_T2}, {1<<bit}, 0", f"s_or_b32 s{S_BAD}, s{S_BAD}, s{S_T2}"]
def epilogue_ops(u, n):
    l = LB + 2 * u
    L = []
    def wr(j, r): return f"ds_write_b64 v{EW+(j&3)}, v[{r}:{r+1}] offset:{u*4096+(j>>2)*128}"
    if Oisv(u):
        b = Obase(u)
        L += [f"v_pk_mul_f32 v[{b+k}:{b+k+1}], v[{b+k}:{b+k+1}], v[{l}:{l+1}] op_sel_hi:[1,0]" for k in range(0, 32, 2)]
        L += [f"v_cvt_pk_bf16_f32 v{b+k}, v{b+2*k}, v{b+2*k+1}" for k in range(16)]
        L += [wr(j, b + 2 * j) for j in range(8)]
        rb = [f"ds_read_b128 {Or(u, 16+4*i)}, v{ER+(i&1)} offset:{u*4096+i*1024}" for i in range(4)]
        return L, rb
    t = SB + ((n - 1) & 1) * 8
    P2 = [PB + (n & 1) * 4, CB + 4 * u]
    for jp in range(4):
        p = P2[jp & 1]
        L += [f"v_accvgpr_read_b32 v{t+k}, a{Obase(u)+8*jp+k}" for k in range(8)]
        L += [f"v_pk_mul_f32 v[{t+k}:{t+k+1}], v[{t+k}:{t+k+1}], v[{l}:{l+1}] op_sel_hi:[1,0]" for k in range(0, 8, 2)]
        L += [f"v_cvt_pk_bf16_f32 v{p+k}, v{t+2*k}, v{t+2*k+1}" for k in range(4)]
        if jp & 1:
            L += [wr(2 * jp - 2, P2[0]), wr(2 * jp - 1, P2[0] + 2), wr(2 * jp, P2[1]), wr(2 * jp + 1, P2[1] + 2)]
    rb = [f"ds_read_b128 {Or(u, 4*i)}, v{ER+(i&1)} offset:{u*4096+i*1024}" for i in range(4)]
    return L, rb
def merged_block(u, n, mid=None):
    L, rb = epilogue_ops(u, n)
    if mid: L = L[36:] + L[:36]
    q = Q(u, 0)
    if Oisv(u):
        sb = SB + ((n - 1) & 1) * 8
        blk = [sb, sb + 4, PB + (n & 1) * 4, CB + 4 * u]
    else:
        blk = [Q(u + 1, 0), Q(u + 1, 1)]
    nb = len(blk)
    H = lambda i: f"v_mfma_f32_4x4x4_16b_bf16 {vr(blk[i%nb])}, v[{PT}:{PT+1}], v[{q+2*i}:{q+2*i+1}], 0"
    Lo = lambda i: f"v_mfma_f32_4x4x4_16b_bf16 {vr(blk[i%nb])}, v[{PT+2}:{PT+3}], v[{q+2*i}:{q+2*i+1}], {vr(blk[i%nb])}"
    C = lambda i, h: f"v_cvt_pk_bf16_f32 v{q+2*i+h}, v{blk[i%nb]+2*h}, v{blk[i%nb]+2*h+1}"
    out = []
    if not Oisv(u):
        p = 0
        for gi in range(4):
            r = L[p:p + 8]; m = L[p + 8:p + 12]; c = L[p + 12:p + 16]; p += 16
            w = []
            if gi & 1: w = L[p:p + 4]; p += 4
            a, b = 2 * gi, 2 * gi + 1
            out += [H(a), r[0], H(b), r[1], Lo(a), r[2], Lo(b)] + r[3:] + m + c + w + (mid if (mid and gi == 1) else []) + [C(a, 0), C(a, 1), C(b, 0), C(b, 1)]
        assert p == len(L)
    else:
        m = L[:16]; c = L[16:32]; w = L[32:]
        out += m
        x = [H(0), H(1), Lo(0), H(2), Lo(1), H(3), Lo(2), Lo(3)]
        for i in range(8): out += [x[i], c[i]]
        out += c[8:12]
        cs = [C(i, h) for i in range(4) for h in range(2)]
        out += cs[0:2] + [H(4)] + cs[2:4] + [H(5)] + cs[4:5] + [Lo(4)] + cs[5:6] + [H(6)] + cs[6:7] + [Lo(5)] + cs[7:8] + [H(7), c[12], Lo(6), c[13], Lo(7), c[14], c[15]]
        out += w
        out += [C(i, h) for i in range(4, 8) for h in range(2)]
    return out, rb
def o_stores(u, nt):
    if "nostore" in X: return ["s_nop 0"] * 5
    o = 16 if Oisv(u) else 0
    return [f"buffer_store_dwordx4 {Or(u, o+4*i)}, v{OOFF}, s[{SO}:{SO+3}], s{S_OST} offen offset:{i*1024}{nt}" for i in range(4)] + \
           [f"s_add_u32 s{S_OST}, s{S_OST}, 4096"]

def ngroups(t, extra="Q"): return 2 if (t % 4 == 2 and extra == "Q") else 1
def qpf_group():
    pre = [f"s_mov_b32 m0, s{S_QPL}"]
    ld = [f"buffer_load_dwordx4 v{DK+i}, s[{SQ}:{SQ+3}], s{S_QPO} offen offset:{i*1024}{NT_Q} lds" for i in range(4)]
    post = [f"s_add_u32 s{S_QPO}, s{S_QPO}, 4096", f"s_add_u32 s{S_QPL}, s{S_QPL}, 4096",
            f"s_min_u32 s{S_QPL}, s{S_QPL}, {STAGE + 23*4096}",
            f"s_cmp_eq_u32 s{S_QPL}, {STAGE + 23*4096}", f"s_cselect_b32 s{S_QPO}, s{S_OOB}, s{S_QPO}"]
    return pre, ld, post
def make_body(NQ, t, dma, first=False, last=False, newround=False, extra=None):
    par = t & 1
    steps = []
    for k in range(NQ):
        n = NQ * t + 2 + k
        uq = k + 2
        qk = (par, uq) if uq < NQ else (None if last else (par ^ 1, uq - NQ))
        us = k + 1
        if us < NQ: sm = (us, first)
        else: sm = None if last else (0, newround)
        steps.append(Step(n, qk, sm, (par, k, first)))
        M = steps[-1].M
        if len(M) == 16:
            if "ordB" in X: steps[-1].M = M[0:4] + M[8:12] + M[4:8] + M[12:16]
            if "ordC" in X: steps[-1].M = [M[0], M[1]] + [x for i in range(6) for x in (M[8 + i], M[2 + i])] + [M[14], M[15]]
            if "pvrev" in X and (n & 1): steps[-1].M = M[0:8] + M[8:16][::-1]
    ks = NQ - 2
    if not last:
        vr_ = v_reads((t + 1) % R, par ^ 1); kr_ = k_reads((t + 2) % R, par)
        if "nov" in X: vr_ = ["s_nop 0"] * 16
        if "nok" in X: kr_ = ["s_nop 0"] * 8
        if "v128" in X: vr_ = [x for j in range(8) for x in (f"ds_read_b128 {Vf(par ^ 1, j)}, v{KAD+(j&3)} offset:{VBASE+((t+1)%R)*TILE+(j>>2)*4096}", "s_nop 0")]
        if NQ == 6:
            for k in range(4): steps[k].add_mem(vr_[4 * k:4 * k + 4], [0, 0, 2, 2])
        else:
            steps[0].add_mem(vr_[0:6], [0, 0, 2, 2, 5, 9]); steps[1].add_mem(vr_[6:12], [0, 0, 2, 2, 5, 9]); steps[2].add_mem(vr_[12:16], [0, 0, 2, 2])
        steps[ks].add_mem(kr_[0:4], [0, 0, 2, 2]); steps[ks + 1].add_mem(kr_[4:8], [0, 0, 2, 2])
        nx = 4 * (ngroups(t, extra) + ngroups(t - 1, extra) + ngroups(t - 2, extra)) if extra in ("Q", "O") else 0
        w = f"s_waitcnt vmcnt({16*(R-2) + nx}) lgkmcnt(0)" if dma else "s_waitcnt lgkmcnt(0)"
        bp = int(E("BP", "0"))
        if bp == 0 or newround:
            steps[ks - 1].salu[-1].append(w)
            steps[ks].salu[0].append("s_barrier")
        else:
            steps[ks - 1].salu[-1 - bp].append(w)
            steps[ks - 1].salu[-bp].append("s_barrier")
        if dma:
            for q, a in enumerate(dma_advance()): steps[0].salu[1 + q].append(a)
            sl = [(steps[ks], p) for p in (3, 4, 6, 7, 9, 10, 12, 13, 15)] + [(steps[ks + 1], p) for p in (3, 4, 6, 8, 9, 10, 12)]
            place_dma(steps, sl)
        if extra == "Q":
            for gi in range(ngroups(t)):
                st = steps[1 + gi]
                pre, ld, post = qpf_group()
                st.salu[2] += pre
                st.add_mem(ld, [3, 4, 6, 8])
                for q, x in enumerate(post): st.salu[9 + q].append(x)
        if extra == "O":
            ng = 1
            for gi in range(ng):
                d = ODAT + 16 * gi
                rd = [f"ds_read_b128 {ar(d+4*i)}, v{ORD+(i&1)} offset:{gi*4096+i*1024}" for i in range(4)]
                steps[0].add_mem(rd, [10, 11, 12, 13] if gi == 0 else [14, 14, 15, 15])
                st = steps[1 + gi]
                so = [f"buffer_store_dwordx4 {ar(d+4*i)}, v{OOFF}, s[{SO}:{SO+3}], s{S_QPO} offen offset:{i*1024}{NT_O0}" for i in range(4)]
                if gi == 0:
                    st.salu[10].append("s_waitcnt lgkmcnt(6)")
                    st.add_mem(so, [10, 11, 13, 14])
                    st2, q0 = steps[2], 0
                    st.salu[15].append(f"s_add_u32 s{S_QPO}, s{S_QPO}, 4096")
                else:
                    st.add_mem(so, [4, 6, 7, 8])
                    st2, q0 = steps[2], 10
                    st.salu[9].append(f"s_add_u32 s{S_QPO}, s{S_QPO}, 4096")
                post = [f"s_sub_u32 s{S_QP}, s{S_QP}, 1", f"s_cmp_le_i32 s{S_QP}, 0", f"s_cselect_b32 s{S_QPO}, s{S_OOB}, s{S_QPO}"]
                for q, x in enumerate(post): st2.salu[q0 + q].append(x)
            steps[2].salu[13].append(f"s_cselect_b32 s{S_INC}, 0, {4096*ng}")
            steps[3].valu[5] = steps[3].valu[5] + [f"v_add_u32 v{ORD}, s{S_INC}, v{ORD}"]
            steps[3].valu[8] = steps[3].valu[8] + [f"v_add_u32 v{ORD+1}, s{S_INC}, v{ORD+1}"]
        if extra == "dummy":
            steps[1].add_mem([f"buffer_store_dwordx4 {ar(ODAT)}, v{OOFF}, s[{SO}:{SO+3}], s{S_OOB} offen" for _ in range(4 * ngroups(t))],
                             [3, 4, 6, 8, 10, 11, 13, 14][:4 * ngroups(t)])
    return steps

def add_lreduce(st, u, bit):
    Gs = l_reduce(u, bit)
    k = len(st.M)
    if k == 16:
        for gi, p in zip(Gs, (0, 2, 4, 6, 8, 10)): st.valu[p] = st.valu[p] + gi
        for x, p in zip(bad_flag(bit), (12, 13, 14)):
            st.salu[p].append(x)
    else:
        for i, gi in enumerate(Gs):
            st.valu[i] = st.valu[i] + (["s_nop 1"] if i in (1, 3) else []) + gi
        st.post += ["s_nop 1"] + bad_flag(bit)

def emit_variant(NQ, dma, tag):
    g.lab(f"L_start_{tag}")
    CUR_NQ[0] = NQ
    order = ["Q0"] * 4 + ["K0"] * 2 + ["K1"] * 2 + ["Q1"] * 4 + ["V0"] * 2 + ["V1"] * 2
    def groups(name):
        if name[0] == "Q":
            if int(name[1]) >= NQ: return []
            order.extend([name] * 4); return q_dma_groups()
        order.extend([name] * 2); return coop_groups(0 if name[0] == "K" else 1, int(name[1]))
    def issue(name):
        if name[0] == "Q":
            if int(name[1]) >= NQ: return
            emit_q_dma(); order.extend([name] * 4)
        elif name[0] == "T":
            emit_dma_tile_plain(); order.extend([name] * 16)
        else:
            emit_coop(0 if name[0] == "K" else 1, int(name[1])); order.extend([name] * 2)
    def wstr(name):
        a = len(order) - 1 - max(i for i, x in enumerate(order) if x == name)
        return f"s_waitcnt vmcnt({min(63, a)})"
    def wait(name): g.e(wstr(name))
    if dma:
        g.e(f"s_add_u32 s{S_DOFF}, s{S_HOFF}, {4*TILE}")
        g.e(f"s_add_u32 s{S_D2}, s{S_DOFF}, 4096")
        g.e(f"s_mov_b32 s{S_DCNT}, 4")
        g.e(f"s_mov_b32 s{S_DSLOT}, 0")
        g.e(f"s_mov_b32 s{S_OOB}, 0x10000000")
        g.e(f"s_add_u32 s{S_OST}, s{S_HOFF}, s{S_ROWB}")
        g.e(f"v_lshlrev_b32 v{CPF+6}, 3, v{OOFF}")
        for i, lab in enumerate(("L_trans_w0", "L_trans_w3", "L_trans_w0+8192", "L_trans_w3+8192", "L_trans_w3+16384", "L_trans_w0+16384")):
            g.e(f"v_add_u32 v{CPF+i}, {lab}-L_pc0, v{CPF+6}")
    stamp(1)
    topup = {1: ["Q4"], 2: ["Q5"], 3: ["K2", "K3"], 4: ["V2", "V3"]}
    if dma: topup = {1: ["Q4"], 2: ["K2", "K3"], 3: ["V2", "V3"], 4: ["T4"]}
    if "deep" in X:
        topup = {1: ["Q4", "Q5"], 2: ["K2", "K3"], 3: ["V2", "V3"]}
        if dma: topup = {1: ["Q4"], 2: ["K2", "K3"], 3: ["V2", "V3"], 4: ["T4"]}
    if "tl1" in X and dma: topup = {1: ["Q4"], 3: ["K2", "K3"], 4: ["V2", "V3"]}
    if "tl2" in X and dma: topup = {1: ["Q4"], 2: ["K2", "K3"], 3: ["V2", "V3"]}
    UB = NQ - 1
    wait("Q0")
    stamp(16)
    g.es(q_reads(0))
    if "q2late" not in X and "cap12" not in X: issue("Q2")
    g.e("s_waitcnt lgkmcnt(0)")
    g.es(prescale(0, 0))
    if "q2late" in X: issue("Q2")
    wait("K1")
    g.e("s_barrier")
    stamp(2)
    g.es(bc_reads(0, UB))
    g.es(k_reads(0, 0))
    issue("Q2" if "cap12" in X else "Q3")
    g.e("s_waitcnt lgkmcnt(8)")
    pm = prepass_mfma(0, UB); kr = k_reads(1, 1)
    for i in range(4): g.e(pm[i]); g.es(kr[2 * i:2 * i + 2])
    g.e("s_nop 5")
    g.es(prepass_neg(0))
    g.e("s_waitcnt lgkmcnt(8)")
    g.e("s_nop 0")
    n = 0
    def prevpair(m): return (m & 1, m >> 1)
    def mkstep(n):
        sm = None; pv = None
        if n >= 1: sm = (prevpair(n - 1)[1], prevpair(n - 1)[0] == 0)
        if n >= 2: pv = (prevpair(n - 2)[0], prevpair(n - 2)[1], prevpair(n - 2)[0] == 0)
        return Step(n, prevpair(n), sm, pv)
    if "late" not in X:
        for u in range(NQ):
            if dma and u == NQ - 1:
                if "tl1" in X or "tl2" in X: issue("T4")
                issue("T5")
            st = mkstep(2 * u)
            k = len(st.M)
            if u == 1: st.salu[7].append("s_waitcnt lgkmcnt(0)")
            if u < NQ - 1:
                st.salu[k - 5].append(wstr(f"Q{u+1}"))
                st.add_mem(q_reads(u + 1), [k - 5, k - 5, k - 3, k - 3])
                if u == 0: st.post = []
            else:
                kr = k_reads(2, 0)
                st.salu[7].append(wstr("K3"))
                st.salu[8].append("s_barrier")
                st.add_mem(kr[:4], [8, 10, 11, 13])
            st.emit()
            if u == 1: g.e("s_barrier")
            st = mkstep(2 * u + 1)
            if u < NQ - 1:
                stamp(17 + u)
                if u == 0 and "cap12" in X: issue("Q3")
                g.e("s_waitcnt lgkmcnt(0)")
                g.es(prescale(u + 1, 2 * u))
                if u == 0:
                    wait("V1")
                    g.e("s_barrier")
                    stamp(3)
                st.prepend(prepass_mfma(u + 1, UB))
                gs = []
                for x in topup.get(u + 1, []):
                    if x[0] == "T": issue(x)
                    else: gs += groups(x)
                for i, gi in enumerate(gs): st.mem[i if len(gs) <= 4 else (0, 1, 2, 3, 5, 7, 9, 11)[i]] += gi
                st.pre.append("s_nop 1")
                k = len(st.M)
                for x, p in zip(prepass_neg(u + 1), (k - 5, k - 4, k - 3, k - 2)): st.valu[p] = st.valu[p] + [x]
                if u == 0:
                    vv = v_reads(0, 0) + v_reads(1, 1)
                    st.add_mem(vv, [i * k // 32 for i in range(32)])
            else:
                st.add_mem(kr[4:], [0, 0, 2, 2])
                st.salu[15].append("s_waitcnt lgkmcnt(0)")
            st.emit()
    else:
        for u in range(NQ):
            if dma and u == NQ - 1:
                issue("T4"); issue("T5")
            s0 = mkstep(2 * u); s1 = mkstep(2 * u + 1)
            gs = []
            for x in topup.get(u + 1, []): gs += groups(x)
            if u == 0:
                for i, gi in enumerate(gs): s0.mem[2 * i] += gi
                s0.post.append("s_waitcnt lgkmcnt(0)")
            else:
                for (st, p), gi in zip(((s0, 0), (s0, 2), (s1, 0), (s1, 2)), gs): st.mem[p] += gi
            if u == 1: s0.salu[7].append("s_waitcnt lgkmcnt(0)")
            k = len(s1.M)
            if u < NQ - 1:
                s1.salu[k - 4].append(wstr(f"Q{u+1}"))
                s1.add_mem(q_reads(u + 1), [k - 4, k - 4, k - 3, k - 3])
                s1.post = []
            else:
                kr = k_reads(2, 0)
                s0.salu[7].append(wstr("K3"))
                s0.salu[8].append("s_barrier")
                s0.add_mem(kr[:4], [8, 10, 11, 13])
                s1.add_mem(kr[4:], [0, 0, 2, 2])
                s1.salu[15].append("s_waitcnt lgkmcnt(0)")
            s0.emit()
            if u == 1: g.e("s_barrier")
            s1.emit()
            if u < NQ - 1:
                stamp(17 + u)
                g.e("s_waitcnt lgkmcnt(0)")
                g.es(prescale(u + 1, 2 * u + 1))
                g.e("s_nop 1")
                g.es(prepass_mfma(u + 1, UB))
                if u == 0:
                    wait("V1")
                    g.e("s_barrier")
                    stamp(3)
                    g.es(v_reads(0, 0) + v_reads(1, 1))
                else:
                    g.e("s_nop 7")
                g.es(prepass_neg(u + 1))
                g.e("s_nop 1")
    n = 2 * NQ
    st = Step(n, (0, 0), (NQ - 1, False), (0, NQ - 1, True))
    st.add_mem(k_reads(3, 1), [0, 0, 2, 2, 4, 6, 8, 10])
    st.salu[15].append(wstr("V3"))
    st.emit(); n += 1
    st = Step(n, (0, 1), (0, False), (1, NQ - 1, False))
    st.salu[0].append("s_barrier")
    st.add_mem(v_reads(2, 0), [0, 0, 1, 1, 2, 2, 3, 3, 4, 4, 5, 6, 7, 8, 9, 10])
    st.emit(); n += 1
    assert n == NQ * 2 + 2
    g.e("s_waitcnt lgkmcnt(0)")
    g.e("s_barrier")
    if dma:
        g.e(f"s_add_u32 s{S_QPO}, s{S_HOFF2}, s{S_CROW}")
        g.e(f"s_mov_b32 s{S_QPL}, {STAGE}")
        for _ in range(2):
            pre, ld, post = qpf_group()
            g.es(pre + ["s_nop 0"] + ld + post[:2])
        emit_dma_tile_plain(advance=False)
    g.e(f"s_mov_b32 s{S_CNT}, 0")
    stamp(4)
    def emit_loop(name, extra, chk0, chk1):
        rot = "rot" in X and not dma
        m_first = make_body(NQ, 2, dma, extra=extra)[0].M[0]
        if rot: g.e(m_first)
        g.L.append(".p2align " + E("AL", "6"))
        g.lab(f"L_{name}_{tag}")
        for ph in (2, 3, 0, 1):
            if ph == 0: g.lab(f"L_{name}0_{tag}")
            steps = make_body(NQ, ph, dma, extra=extra)
            if rot and ph == 2: steps[0].M[0] = "; (first MFMA issued before the branch)"
            if ph == 3 and chk0:
                steps[NQ - 3].salu[14].append(f"s_cmp_eq_u32 s{S_CNT}, 10")
                steps[NQ - 3].post.append(f"s_cbranch_scc1 L_final_{tag}")
            if ph == 1:
                steps[-1].salu[13].append(f"s_add_u32 s{S_CNT}, s{S_CNT}, 1")
                if chk1:
                    steps[-1].salu[15].append(f"s_cmp_lt_u32 s{S_CNT}, 4" if dma else f"s_cmp_lg_u32 s{S_CNT}, 5")
            for st in steps: st.emit()
        if rot: g.e(m_first); SKIP_FIRST[0] = True
        if chk1:
            g.e(f"s_cbranch_scc1 L_{name}_{tag}")
            if dma:
                g.e(f"s_cmp_eq_u32 s{S_CNT}, 5")
                g.e(f"s_cbranch_scc1 L_trans_{tag}")
                for i in range(6): g.e(f"global_load_dword v{CPF+6}, v{CPF+i}, s[58:59]")
                g.e(f"s_branch L_{name}_{tag}")
        else: g.e(f"s_branch L_{name}_{tag}")
    if dma: emit_loop("loop", "Q", False, True)
    else: emit_loop("loop", None, True, True)

    def emit_special(t, final):
        steps = make_body(NQ, t, dma, last=final, newround=True, extra=None)
        nt = NT_O1 if final else NT_O0
        if SKIP_FIRST[0]:
            steps[0].M[0] = "; (first MFMA issued before the branch)"; SKIP_FIRST[0] = False
        for k, st in enumerate(steps):
            bit = (6 if final else 0) + k
            if final or k == 0:
                add_lreduce(st, k, bit)
                if not final: st.add_mem(q_reads(k), [4, 4, 6, 6])
            else:
                if k == 1: st.pre.append("s_waitcnt lgkmcnt(%d)" % (8 if dma else 4))
                st.prepend(prepass_mfma(k - 1, 0))
                st.add_mem(q_reads(k), [1, 1, 3, 3])
                for gi, p in zip(l_reduce(k, bit), (0, 2, 5, 7, 9, 11)): st.valu[p] = st.valu[p] + gi
                for x, p in zip(bad_flag(bit), (13, 14, 15)): st.salu[p].append(x)
                for x, p in zip(prepass_neg(k - 1), (13, 14, 15, 16)): st.valu[p] = st.valu[p] + [x]
            fine = ("fine" in X) and not final and k == int(E("FK", "2"))
            if fine: stamp(8)
            st.emit()
            g.e("s_waitcnt lgkmcnt(0)")
            if fine: stamp(9)
            if k > 0 and (final or dma): g.es(o_stores(k - 1, nt))
            if fine: stamp(14)
            L, rb = merged_block(k, st.n, bc_reads((t + 1) % R, 0) if k == 0 else None)
            g.es(L)
            if final or dma: g.es(rb)
            if fine: stamp(15)
            if fine: stamp(22)
        return nt
    g.lab(f"L_trans_{tag}")
    stamp(5)
    nt = emit_special(22, False)
    stamp(6)
    steps = make_body(NQ, 23, dma, first=True)
    st = steps[0]
    st.prepend(prepass_mfma(NQ - 1, 0))
    if dma:
        st.salu[14].append("s_waitcnt lgkmcnt(6)")
        st.add_mem(o_stores(NQ - 1, nt)[:4], [14, 15, 16, 17])
        st.salu[19].append(f"s_add_u32 s{S_OST}, s{S_HOFF2}, s{S_ROWB}")
    for x, p in zip(prepass_neg(NQ - 1), (13, 14, 15, 16)): st.valu[p] = st.valu[p] + [x]
    if dma:
        st.salu[0].append(f"s_add_u32 s{S_QPO}, s{S_HOFF}, s{S_CROW}")
        st.salu[1].append(f"s_mov_b32 s{S_QP}, 18")
        st.valu[0].append(f"v_add_u32 v{ORD}, {STAGE}, v{DK}")
        st.valu[1].append(f"v_add_u32 v{ORD+1}, {STAGE}, v{DK+1}")
    for st in steps: st.emit()
    stamp(10)
    if dma:
        g.e(f"s_branch L_loopb0_{tag}")
        emit_loop("loopb", "O", True, False)
    else:
        g.e(f"s_branch L_loop0_{tag}")
    g.lab(f"L_final_{tag}")
    stamp(11)
    nt = NT_O1
    ks = NQ - 2
    if dma: g.e("s_waitcnt vmcnt(32)")
    stamp(8)
    def pair(m):
        if m < 0: return (1, NQ + m)
        return (m & 1, m >> 1)
    vr45 = v_reads(45 % R, 1)
    for m in range(2 * NQ + 2):
        n = NQ * 44 + m
        qk = pair(m) if m < 2 * NQ else None
        sm = (pair(m - 1)[1], False) if m - 1 < 2 * NQ else None
        pv = pair(m - 2) + (False,)
        has_st = m >= 4 and m % 2 == 0
        st = Step(n, qk, sm, pv, alt=has_st)
        if m == 0:
            st.salu[0].append("s_barrier")
            st.add_mem(k_reads(45 % R, 1), [0, 0, 1, 2, 2, 3, 4, 5])
            st.salu[15].append("s_waitcnt lgkmcnt(0)")
        if m == 1: st.add_mem(vr45[:6], [10, 11, 12, 13, 14, 15])
        if m == 2: st.add_mem(vr45[6:], [0, 0, 1, 2, 2, 3, 4, 6, 8, 10])
        if m == 3: st.salu[7].append("s_waitcnt lgkmcnt(0)")
        if has_st:
            u = (m - 4) // 2
            so = o_stores(u, E("NT_LAST2", nt) if u == NQ - 2 else nt)
            if len(st.M) == 16:
                sp = [int(x) for x in E("SP", "9,9,12,12").split(",")]
                st.salu[sp[0] - 1].append("s_waitcnt lgkmcnt(0)")
                st.add_mem(so[:4], sp)
                st.post.append(so[4])
            else:
                st.salu[3].append("s_waitcnt lgkmcnt(0)")
                st.add_mem(so[:4], [3, 4, 5, 6])
                st.salu[7].append(so[4])
        if m >= 3 and m % 2 == 1:
            u = (m - 3) // 2
            add_lreduce(st, u, 6 + u)
        st.emit()
        if "ffine" in X and m in (3, 6, 7, 8, 9): stamp({3: 14, 6: 16, 7: 17, 8: 19, 9: 20}[m])
        if m >= 3 and m % 2 == 1:
            L, rb = epilogue_ops(u, n)
            g.es(L); g.es(rb)
            if "ffine" in X and m in (5, 7, 9): stamp({5: 15, 7: 18, 9: 21}[m])
    g.e("s_waitcnt lgkmcnt(0)")
    g.es(o_stores(NQ - 1, E("NT_LAST", nt) if not dma else nt))
    stamp(12)
    g.e(f"s_cmp_lg_u32 s{S_BAD}, 0")
    g.e("s_cbranch_scc1 L_slow")
    stamp_out()
    g.e("s_endpgm")

def emit_slow():
    SB_, ST_, SH_, SR_, SX_ = 60, 61, 62, 63, 58
    VT = Q(1, 0)
    M_ = Q(2, 0)
    o = OVB; l = LB; c = CB; sreg = SB; p = PB
    def tile_dma(which, ldsoff):
        srd = SK if which == 0 else SV
        for hh in range(2):
            g.e(f"s_add_u32 m0, s{S_STG}, {ldsoff + hh*4096}")
            g.e(f"s_add_u32 s{SX_}, s{ST_}, {hh*4096}")
            for i in range(4):
                va = DK + i if which == 0 else DV + (i & 1)
                g.e(f"buffer_load_dwordx4 v{va}, s[{srd}:{srd+3}], s{SX_} offen offset:{i*1024} lds")
    def kreads():
        for kt in range(2):
            for s_ in range(4): g.e(f"ds_read_b128 {Kf(0, kt*4+s_)}, v{QA+s_} offset:{4096+kt*4096}")
    def qk(cz):
        for kt in range(2):
            for s_ in range(4):
                d = vr(sreg + kt * 4)
                g.e(mfma(d, Kf(0, kt * 4 + s_), vr(Q(0, s_)), (("0" if cz else vr(c)) if s_ == 0 else d)))
        g.e("s_nop 7")
    def xlane(r, t, op):
        for sw in ("v_permlane16_swap_b32", "v_permlane32_swap_b32"):
            g.es([f"v_mov_b32 v{t}, v{r}", "s_nop 1", f"{sw} v{r}, v{t}", "s_nop 1", f"{op} v{r}, v{r}, v{t}"])
    g.lab("L_slow")
    g.e(f"s_sub_u32 s{SX_}, s{S_STG}, {VBASE - 12288}")
    for j in range(8): g.e(f"v_add_u32 v{VT+j}, s{SX_}, v{VAD+j}")
    g.lab("L_slow_next")
    g.e("s_waitcnt vmcnt(0) lgkmcnt(0)")
    g.e(f"s_ff1_i32_b32 s{SB_}, s{S_BAD}")
    g.e(f"s_bitset0_b32 s{S_BAD}, s{SB_}")
    g.e(f"s_cmp_ge_u32 s{SB_}, 6")
    g.e(f"s_cselect_b32 s{SH_}, s{S_HOFF2}, s{S_HOFF}")
    g.e(f"s_cselect_b32 s{SX_}, 6, 0")
    g.e(f"s_sub_u32 s{SB_}, s{SB_}, s{SX_}")
    g.e(f"s_lshl_b32 s{SB_}, s{SB_}, 12")
    g.e(f"s_add_u32 s{SR_}, s{SH_}, s{S_ROWB}")
    g.e(f"s_add_u32 s{SR_}, s{SR_}, s{SB_}")
    g.e(f"s_mov_b32 m0, s{S_STG}")
    g.e("s_nop 0")
    for i in range(4):
        g.e(f"buffer_load_dwordx4 v{DK+i}, s[{SQ}:{SQ+3}], s{SR_} offen offset:{i*1024} lds")
    g.e("s_waitcnt vmcnt(0)")
    g.es(q_reads(0))
    g.e("s_waitcnt lgkmcnt(0)")
    g.es(prescale(0, 0))
    g.e(f"v_mov_b32 v{M_}, 0xff800000")
    g.e(f"s_mov_b32 s{ST_}, s{SH_}")
    g.e(f"s_add_u32 s{SB_}, s{SH_}, {HEAD_BYTES}")
    g.lab("L_slow_p1")
    tile_dma(0, 4096)
    g.e("s_waitcnt vmcnt(0)")
    kreads()
    g.e("s_waitcnt lgkmcnt(0)")
    qk(True)
    for i in range(0, 8, 2): g.e(f"v_max3_f32 v{M_}, v{M_}, v{sreg+i}, v{sreg+i+1}")
    g.e(f"s_add_u32 s{ST_}, s{ST_}, {TILE}")
    g.e(f"s_cmp_lt_u32 s{ST_}, s{SB_}")
    g.e("s_cbranch_scc1 L_slow_p1")
    xlane(M_, M_ + 1, "v_max_f32")
    for k in range(32): g.e(f"v_mov_b32 v{o+k}, 0")
    g.e(f"v_mov_b32 v{l}, 0")
    g.e(f"s_mov_b32 s{ST_}, s{SH_}")
    g.lab("L_slow_p2")
    tile_dma(0, 4096)
    tile_dma(1, 12288)
    g.e("s_waitcnt vmcnt(0)")
    kreads()
    g.e("s_waitcnt lgkmcnt(0)")
    for j in range(8):
        for h in range(2): g.e(f"ds_read_b64_tr_b16 {Vf(0, j, 2, 2*h)}, v{VT+j} offset:{h*4096}")
    qk(True)
    for i in range(8): g.e(f"v_sub_f32 v{sreg+i}, v{sreg+i}, v{M_}")
    for i in range(8): g.e(f"v_exp_f32 v{sreg+i}, v{sreg+i}")
    g.e("s_nop 0")
    for i in range(8): g.e(f"v_add_f32 v{l}, v{l}, v{sreg+i}")
    for i in range(4): g.e(f"v_cvt_pk_bf16_f32 v{p+i}, v{sreg+2*i}, v{sreg+2*i+1}")
    g.e("s_waitcnt lgkmcnt(0)")
    g.e("s_nop 1")
    for j in range(8): g.e(mfma(vr(o + 4 * j), Vf(0, j), vr(p), vr(o + 4 * j)))
    g.e(f"s_add_u32 s{ST_}, s{ST_}, {TILE}")
    g.e(f"s_cmp_lt_u32 s{ST_}, s{SB_}")
    g.e("s_cbranch_scc1 L_slow_p2")
    xlane(l, l + 1, "v_add_f32")
    g.e(f"v_rcp_f32 v{l}, v{l}")
    g.e("s_nop 7")
    for k in range(0, 32, 2): g.e(f"v_pk_mul_f32 v[{o+k}:{o+k+1}], v[{o+k}:{o+k+1}], v[{l}:{l+1}] op_sel_hi:[1,0]")
    for k in range(16): g.e(f"v_cvt_pk_bf16_f32 v{o+k}, v{o+2*k}, v{o+2*k+1}")
    for j in range(8): g.e(f"ds_write_b64 v{EW+(j&3)}, v[{o+2*j}:{o+2*j+1}] offset:{(j>>2)*128}")
    for i in range(4): g.e(f"ds_read_b128 {vr(o+16+4*i)}, v{ER+(i&1)} offset:{i*1024}")
    g.e("s_waitcnt lgkmcnt(0)")
    for i in range(4): g.e(f"buffer_store_dwordx4 {vr(o+16+4*i)}, v{OOFF}, s[{SO}:{SO+3}], s{SR_} offen offset:{i*1024}")
    g.e(f"s_cmp_lg_u32 s{S_BAD}, 0")
    g.e("s_cbranch_scc1 L_slow_next")
    g.e("s_endpgm")

def emit_addr_setup():
    for s in range(4):
        g.e(f"v_add_u32 v5, {4*s}, v14")
        g.e("v_xor_b32 v5, v5, v13")
        g.e("v_lshlrev_b32 v5, 4, v5")
        g.e(f"v_lshl_add_u32 v{KAD+s}, v13, 8, v5")
    g.e("v_lshrrev_b32 v6, 2, v12")
    g.e("v_and_b32 v7, 3, v12")
    g.e("v_lshlrev_b32 v8, 8, v6")
    g.e("v_lshl_add_u32 v8, v7, 3, v8")
    g.e(f"v_add_u32 v8, {VBASE}, v8")
    g.e("v_and_b32 v6, 7, v6")
    for j in range(8):
        g.e(f"v_xor_b32 v5, {j}, v6")
        g.e(f"v_lshl_add_u32 v{VAD+j}, v5, 5, v8")
    g.e(f"v_lshlrev_b32 v{OOFF}, 4, v12")
    g.e("v_lshrrev_b32 v5, 1, v14")
    g.e("v_and_b32 v6, 7, v13")
    g.e("v_xor_b32 v5, v5, v6")
    g.e("v_lshlrev_b32 v5, 4, v5")
    g.e("v_lshl_add_u32 v5, v13, 8, v5")
    g.e("v_and_b32 v6, 1, v14")
    g.e("v_lshl_add_u32 v5, v6, 3, v5")
    g.e(f"v_add_u32 v{EW}, s{S_STG}, v5")
    for j in range(1, 4): g.e(f"v_xor_b32 v{EW+j}, {j<<5}, v{EW}")
    g.e(f"v_add_u32 v{ER}, s{S_STG}, v{DK}")
    g.e(f"v_add_u32 v{ER+1}, s{S_STG}, v{DK+1}")
    for s in range(4): g.e(f"v_add_u32 v{QA+s}, s{S_STG}, v{KAD+s}")
    def bf16_rne(x):
        u = f2u(x); return (u + 0x7fff + ((u >> 16) & 1)) >> 16
    chi = bf16_rne(CSCALE); chi_f = struct.unpack("<f", struct.pack("<I", chi << 16))[0]
    clo = bf16_rne(CSCALE - chi_f)
    g.e("v_lshlrev_b32 v0, 4, v14")
    g.e("v_and_b32 v15, 3, v12")
    g.e("v_lshlrev_b32 v15, 4, v15")
    g.e(f"s_mov_b32 s{S_C}, {hex(chi)}")
    g.e(f"s_mov_b32 s{S_C+1}, 0")
    g.e(f"v_lshlrev_b64 v[{PT}:{PT+1}], v15, s[{S_C}:{S_C+1}]")
    g.e(f"s_mov_b32 s{S_C}, {hex(clo)}")
    g.e(f"v_lshlrev_b64 v[{PT+2}:{PT+3}], v15, s[{S_C}:{S_C+1}]")
    g.e(f"s_mov_b32 s{S_TLO}, {hex(f2u(2.0**(POFF - 16)))}")
    g.e(f"s_mov_b32 s{S_THR}, {hex(f2u(2.0**64) - f2u(2.0**(POFF - 16)))}")
    g.e(f"s_mov_b32 s{S_BAD}, 0")
    g.e(f"s_mov_b32 s{S_POFF}, {hex(f2u(POFF))}")
    g.e(f"s_add_u32 s{S_OST}, s{S_HOFF2}, s{S_ROWB}")

DOC = """;
"""
def main():
    hdr = open("cdna_kernels/" + NAME + ".s.ref").read().split("; @launch")[0]
    out = hdr + f"; @launch grid=(256,1,1) block=(256,1,1) lds={LDS_BYTES}\n"
    out += DOC
    out += f'''.amdgcn_target "amdgcn-amd-amdhsa--gfx950"
.text
.globl {NAME}_kernel
.p2align 8
.type {NAME}_kernel,@function
{NAME}_kernel:
'''
    if STAMP:
        if STAMP != 3:
            g.es(["s_memrealtime s[38:39]", "s_waitcnt lgkmcnt(0)", "s_mov_b32 s94, s38"])
        stamp(0)
        if STAMP != 3:
            for i in range(65, 88): g.e(f"s_mov_b32 s{i}, s64")
    g.e("s_load_dwordx8 s[40:47], s[0:1], 0")
    g.e("s_cmp_ge_u32 s2, 256")
    g.e("s_cbranch_scc1 L_done")
    if "pf0" in X:
        g.e("s_getpc_b64 s[58:59]")
        g.lab("L_pc0")
        g.e("v_lshlrev_b32 v16, 7, v0")
        g.e("v_cmp_lt_u32 vcc, 127, v0")
        g.e(f"v_mov_b32 v17, L_start_w3-L_pc0-16384")
        g.e("s_nop 0")
        g.e("v_cndmask_b32 v17, 0, v17, vcc")
        g.e("v_add_u32 v16, v16, v17")
        g.e("global_load_dword v17, v16, s[58:59]")
    g.e("v_lshrrev_b32 v11, 6, v0")
    g.e("v_and_b32 v12, 63, v0")
    g.e(f"v_readfirstlane_b32 s{S_WAVE}, v11")
    g.e("v_and_b32 v13, 15, v12")
    g.e("v_lshrrev_b32 v14, 4, v12")
    g.e("s_and_b32 s3, s2, 7")
    g.e("s_lshr_b32 s4, s2, 3")
    g.e("s_lshr_b32 s5, s4, 1")
    g.e("s_and_b32 s4, s4, 1")
    g.e("s_lshl_b32 s3, s3, 5")
    g.e("s_add_u32 s3, s3, s5")
    g.e(f"s_mul_i32 s{S_HOFF}, s3, {HEAD_BYTES}")
    g.e(f"s_add_u32 s{S_HOFF2}, s{S_HOFF}, {16*HEAD_BYTES}")
    g.e(f"s_mul_i32 s{S_CROW}, s4, {368*256}")
    g.e(f"s_mul_i32 s5, s{S_WAVE}, {96*256}")
    g.e(f"s_add_u32 s{S_ROWB}, s{S_CROW}, s5")
    g.e(f"s_add_u32 s{S_STG}, s5, {STAGE}")
    g.e(f"s_add_u32 s{S_QPO}, s{S_HOFF}, s{S_ROWB}")
    g.e(f"s_mov_b32 s{S_QPL}, s{S_STG}")
    g.e("v_lshlrev_b32 v15, 8, v14")
    for i in range(4):
        g.e(f"v_add_u32 v5, {4*i}, v14")
        g.e("v_xor_b32 v5, v5, v13")
        g.e(f"v_lshl_add_u32 v{DK+i}, v5, 4, v15")
    for i in range(2):
        g.e(f"v_lshl_add_u32 v5, v14, 1, {8*i}")
        g.e("v_xor_b32 v5, v5, v13")
        g.e(f"v_lshl_add_u32 v{DV+i}, v5, 4, v15")
    g.e("v_lshl_add_u32 v5, v11, 2, v14")
    g.e("v_xor_b32 v6, v5, v13")
    g.e(f"v_lshl_add_u32 v{CK_}, v6, 4, v15")
    g.e("v_and_b32 v5, 7, v5")
    g.e("v_lshlrev_b32 v5, 1, v5")
    g.e("v_xor_b32 v6, v5, v13")
    g.e(f"v_lshl_add_u32 v{CV_}, v6, 4, v15")
    g.e(f"s_lshl_b32 s{S_CW}, s{S_WAVE}, 10")
    g.e(f"s_add_u32 s{S_CG}, s{S_HOFF}, s{S_CW}")
    g.e("s_waitcnt lgkmcnt(0)")
    for i, srd in ((0, SQ), (1, SK)):
        g.e(f"s_mov_b32 s{srd}, s{40+2*i}")
        g.e(f"s_and_b32 s{srd+1}, s{41+2*i}, 0xffff")
        g.e(f"s_mov_b32 s{srd+2}, {TOTAL_BYTES}")
        g.e(f"s_mov_b32 s{srd+3}, 0x20000")
    stamp(7); emit_q_dma(); emit_coop(0, 0); emit_coop(0, 1)
    emit_addr_setup()
    for i, srd in ((2, SV), (3, SO)):
        g.e(f"s_mov_b32 s{srd}, s{40+2*i}")
        g.e(f"s_and_b32 s{srd+1}, s{41+2*i}, 0xffff")
        g.e(f"s_mov_b32 s{srd+2}, {TOTAL_BYTES}")
        g.e(f"s_mov_b32 s{srd+3}, 0x20000")
    emit_q_dma(); emit_coop(1, 0); emit_coop(1, 1)
    g.e(f"s_cmp_eq_u32 s{S_WAVE}, 3")
    g.e("s_cbranch_scc1 L_start_w3")
    emit_variant(6, False, "w0")
    emit_variant(5, True, "w3")
    emit_slow()
    g.lab("L_done")
    g.e("s_endpgm")
    if "pf" in X: g.L.append(".fill 2048, 4, 0xbf810000")
    out += "\n".join(g.L) + "\n"
    out += f'''.section .rodata,"a"
.p2align 6
.amdhsa_kernel {NAME}_kernel
  .amdhsa_next_free_vgpr 512
  .amdhsa_next_free_sgpr 96
  .amdhsa_accum_offset 256
  .amdhsa_group_segment_fixed_size 0
  .amdhsa_kernarg_size 48
  .amdhsa_user_sgpr_count 2
  .amdhsa_user_sgpr_kernarg_segment_ptr 1
  .amdhsa_system_sgpr_workgroup_id_x 1
.end_amdhsa_kernel
'''
    fn = sys.argv[1] if len(sys.argv) > 1 else "cdna_kernels/" + NAME + ".s"
    open(fn, "w").write(out)
main()
```

```python
import sys, os, struct
NAME = "standalone__gqa_softmax__near_ridge"
R = 4
TILE = 8192
VBASE = R * TILE
STAGE = 2 * R * TILE
LDS_BYTES = STAGE + 24 * 4096
HEAD_BYTES = 736 * 256
TOTAL_BYTES = 256 * HEAD_BYTES
E = os.environ.get
STAMP = int(E("STAMP", "0"))
NT_KV = E("NT_KV", " nt"); NT_Q = E("NT_Q", " nt"); NT_O = E("NT_O", " sc1")
X = E("X", "").split(",")
def f2u(x): return struct.unpack("<I", struct.pack("<f", x))[0]
CSCALE = 1.4426950408889634 / (128 ** 0.5)
POFF = float(E('POFF', '-43'))

CUR_NQ = [6]
OVB = 112
def Oisv(u): return u >= CUR_NQ[0] - 2
def Obase(u): return OVB + (u - (CUR_NQ[0] - 2)) * 32 if Oisv(u) else u * 32
def Or(u, off, n=4):
    b = Obase(u) + off
    return (f"v[{b}:{b+n-1}]" if Oisv(u) else f"a[{b}:{b+n-1}]")
KA = 128; VA = 192
QB = 16; SB = 176
def PF(i): return 192 + 4 * (i & 1)
def PH(i): return 200 + 4 * (i & 3)
CB = 216
KAD = 240; VAD = 244
def Lr(u): return (252, 253, 254, 255, 0, 1)[u]
EW = 2; ER = 6; QA = 8; PT = 12
DK = 96; DV = 100; OOFF = 102; CK_ = 103; CV_ = 104; BCA = 105; ORD = 106
ODAT = 96
def Q(u, s): return QB + (u * 4 + s) * 4
def vr(b, n=4): return f"v[{b}:{b+n-1}]"
def ar(b, n=4): return f"a[{b}:{b+n-1}]"
def Kf(par, f, n=4, o=0): return ar(KA + par * 32 + f * 4 + o, n)
def Vf(par, j, n=4, o=0): return ar(VA + par * 32 + j * 4 + o, n)
SQ, SK, SV, SO = 8, 12, 16, 20
S_WAVE = 24; S_HOFF = 25; S_HOFF2 = 26; S_BAD = 27; S_CNT = 28; S_T = 29
S_C = 30
S_DOFF = 32; S_DCNT = 33; S_DSLOT = 34; S_D2 = 35; S_THR = 36; S_OOB = 37
S_ROWB = 50; S_STG = 51; S_QP = 52; S_QPO = 53; S_QPL = 54; S_OST = 55; S_T2 = 56
S_TLO = 57; S_POFF = 61; S_CROW = 63
S_CW = 6; S_CG = 7

class G:
    def __init__(self): self.L = []
    def e(self, s): self.L.append("    " + s)
    def es(self, l):
        for s in l: self.e(s)
    def lab(self, s): self.L.append(s + ":")
g = G()

NSPIN = 0
def stamp(i):
    if not STAMP: return
    g.e("s_memrealtime s[38:39]" if STAMP in (3, 4) else "s_memtime s[38:39]")
    g.e("s_waitcnt lgkmcnt(0)")
    g.e(f"s_mov_b32 s{64+i}, s38")
def stamp_out():
    if not STAMP: return
    g.e("s_waitcnt vmcnt(0)")
    stamp(13)
    g.e("s_memrealtime s[38:39]")
    g.e("s_load_dwordx2 s[48:49], s[0:1], 40")
    g.e("s_waitcnt lgkmcnt(0)")
    g.e("s_mov_b32 s95, s38")
    g.e("s_lshl_b32 s3, s2, 2")
    g.e(f"s_add_u32 s3, s3, s{S_WAVE}")
    g.e("s_lshl_b32 s3, s3, 7")
    g.e("v_mov_b32 v2, s3")
    g.e("s_mov_b64 exec, 1")
    for i in list(range(24)) + [30, 31]:
        g.e(f"v_mov_b32 v3, s{64+i}")
        g.e(f"global_store_dword v2, v3, s[48:49] offset:{i*4}")

def mfma(d, a, b, c): return f"v_mfma_f32_16x16x32_bf16 {d}, {a}, {b}, {c}"
def qk_mfmas(u, par, sbuf):
    M = []
    for kt in range(2):
        so = [3, 2, 1, 0] if kt == 1 else [0, 1, 2, 3]
        for s in so:
            d = vr(SB + sbuf * 8 + kt * 4)
            M.append(mfma(d, Kf(par, kt * 4 + s), vr(Q(u, s)), vr(CB + u * 4) if s == so[0] else d))
    return M
def pv1(u, par, p, first, js=range(8)):
    return [mfma(Or(u, 4 * j), Vf(par, j), vr(p), "0" if first else Or(u, 4 * j)) for j in js]
def pv2(u, par, pnew, pold, first, js):
    M = []
    for j in js:
        ops = [(par ^ 1, pold), (par, pnew)]
        if j & 1: ops.reverse()
        for i, (s_, p) in enumerate(ops):
            M.append(mfma(Or(u, 4 * j), Vf(s_, j), vr(p), "0" if (first and i == 0) else Or(u, 4 * j)))
    return M
def sm_units(u, sbuf, p, first):
    s = SB + sbuf * 8; l = Lr(u)
    Ex = lambda i: f"v_exp_f32 v{s+i}, v{s+i}"
    A = lambda i: f"v_mov_b32 v{l}, v{s}" if (first and i == 0) else f"v_add_f32 v{l}, v{l}, v{s+i}"
    C = lambda i: f"v_cvt_pk_bf16_f32 v{p+i}, v{s+2*i}, v{s+2*i+1}"
    return [[Ex(0)], [Ex(1)], [Ex(2)], [A(0), A(1)], [Ex(3)], [C(0), A(2)], [Ex(4)], [A(3), C(1)],
            [Ex(5)], [Ex(6)], [A(4), A(5)], [Ex(7)], [C(2), A(6)], [A(7), C(3)]]
def k_reads(slot, par):
    return [f"ds_read_b128 {Kf(par, kt*4+s)}, v{KAD+s} offset:{slot*TILE+kt*4096}" for kt in range(2) for s in range(4)]
def v_reads(slot, par):
    return [f"ds_read_b64_tr_b16 {Vf(par, j, 2, 2*h)}, v{VAD+j} offset:{slot*TILE+h*4096}" for j in range(8) for h in range(2)]
def q_reads(u):
    return [f"ds_read_b128 {vr(Q(u,s))}, v{QA+s} offset:{u*4096}" for s in range(4)]

class Step:
    def __init__(self, n, qk, sm, pv, free=(0, 2)):
        self.M = (qk_mfmas(qk[1], qk[0], n & 1) if qk else []) + list(pv)
        k = len(self.M)
        self.n = n
        self.salu = [[] for _ in range(k)]; self.mem = [[] for _ in range(k)]; self.valu = [[] for _ in range(k)]
        self.pre = []; self.post = []
        if sm:
            U = sm_units(sm[0], (n - 1) & 1, sm[1], sm[2])
            if k >= 16:
                gaps = [x for x in range(16) if x not in free]
                for p, x in zip(gaps, U): self.valu[p] = list(x)
            else:
                for i, x in enumerate(U): self.valu[(i + 2) * k // 16] += x
        if not qk: self.pre.append("s_nop 1")
        if not pv: self.post.append("s_nop 7")
    def prepend(self, ms):
        k = len(ms)
        self.M = list(ms) + self.M
        self.salu = [[] for _ in range(k)] + self.salu; self.mem = [[] for _ in range(k)] + self.mem; self.valu = [[] for _ in range(k)] + self.valu
    def append(self, ms):
        self.M += list(ms)
        for _ in ms: self.salu.append([]); self.mem.append([]); self.valu.append([])
    def add_mem(self, ops, pos):
        assert len(ops) == len(pos), (len(ops), len(pos))
        for o, p in zip(ops, pos): self.mem[p].append(o)
    def repack(self, lr=None, bit=None, neg=None, neg_from=0):
        cost = lambda x: 2 if x.startswith(("v_exp", "v_rcp")) else 1
        sm = [x for v in self.valu for x in v]
        k = len(self.M)
        self.valu = [[] for _ in range(k)]
        lr = [list(x) for x in (lr or [])]; neg = list(neg or [])
        memc = [sum(3 if x.startswith("buffer") else 1 for x in m) for m in self.mem]
        total = sum(map(cost, sm)) + sum(cost(x) for G_ in lr for x in G_) + len(neg) + sum(memc)
        used = 0; last_lr = -2; vc_gap = None
        for i in range(k):
            used += memc[i]
            target = max(2 * (i + 1), total * (i + 1) / k) if total > 2 * k else None
            room = lambda: (target - used) if target is not None else (2 - memc[i] - sum(map(cost, self.valu[i])))
            def put(xs):
                nonlocal used
                self.valu[i] += xs; used += sum(map(cost, xs))
            must_lr = lr and i - last_lr >= 2 and (k - 5 - i) // 2 < len(lr)
            if lr and i - last_lr >= 2 and (must_lr or room() >= min(2, sum(map(cost, lr[0])))):
                G_ = lr.pop(0); put(G_); last_lr = i
                if not lr: vc_gap = i
            while True:
                if sm and room() >= cost(sm[0]): put([sm.pop(0)])
                elif neg and i >= neg_from and room() >= 1: put([neg.pop(0)])
                else: break
            if i == k - 2: put(neg); neg = []
        self.valu[k - 1] += sm
        assert not lr
        if bit is not None:
            for q in range(vc_gap + 2, k - 2):
                if not (self.salu[q] or self.salu[q + 1] or self.salu[q + 2]) and not any(x.startswith("s_") for x in self.mem[q]):
                    for j, x in enumerate(bad_flag(bit)): self.salu[q + j].append(x)
                    break
            else:
                self.post += ["s_nop 0"] + bad_flag(bit)
    def emit(self):
        g.es(self.pre)
        for i, m in enumerate(self.M):
            g.e(m); g.es(self.salu[i]); g.es(self.mem[i]); g.es(self.valu[i])
        g.es(self.post)

def dma_tile_ops():
    ops = []
    for which in range(2):
        srd = SK if which == 0 else SV
        for hh in range(2):
            for i in range(4):
                pre = f"s_add_u32 m0, s{S_DSLOT}, {(VBASE if which else 0) + hh * 4096}" if i == 0 else None
                so = S_DOFF if hh == 0 else S_D2
                va = DK + i if which == 0 else DV + (i & 1)
                ops.append((pre, f"buffer_load_dwordx4 v{va}, s[{srd}:{srd+3}], s{so} offen offset:{i*1024}{NT_KV} lds"))
    return ops
def dma_advance():
    return [f"s_add_u32 s{S_DCNT}, s{S_DCNT}, 1", f"s_add_u32 s{S_DOFF}, s{S_DOFF}, {TILE}",
            f"s_cmp_eq_u32 s{S_DCNT}, 23", f"s_cselect_b32 s{S_DOFF}, s{S_HOFF2}, s{S_DOFF}",
            f"s_cmp_eq_u32 s{S_DCNT}, 46", f"s_cselect_b32 s{S_DOFF}, s{S_OOB}, s{S_DOFF}",
            f"s_add_u32 s{S_D2}, s{S_DOFF}, 4096", f"s_add_u32 s{S_DSLOT}, s{S_DSLOT}, {TILE}",
            f"s_and_b32 s{S_DSLOT}, s{S_DSLOT}, {R*TILE-1}"]
def emit_dma_tile_plain():
    for pre, d in dma_tile_ops():
        if pre: g.e(pre); g.e("s_nop 0")
        g.e(d)
    g.es(dma_advance())
def place_dma(slots):
    prev = None
    for (st, p), (pre, d) in zip(slots, dma_tile_ops()):
        if pre:
            if p > 0 and prev != (st, p - 1) and prev != (st, p): st.salu[p - 1].append(pre)
            else: st.mem[p] += [pre, "s_nop 0"]
        st.mem[p].append(d)
        prev = (st, p)
def q_dma_groups():
    G_ = [[f"buffer_load_dwordx4 v{DK+i}, s[{SQ}:{SQ+3}], s{S_QPO} offen offset:{i*1024}{NT_Q} lds"] for i in range(4)]
    G_[0] = [f"s_mov_b32 m0, s{S_QPL}", f"s_add_u32 s{S_QPL}, s{S_QPL}, 4096"] + G_[0]
    G_[3] = G_[3] + [f"s_add_u32 s{S_QPO}, s{S_QPO}, 4096"]
    return G_
def coop_groups(which, t):
    srd = SK if which == 0 else SV
    G_ = []
    for hh in range(2):
        off = t * TILE + hh * 4096
        G_.append([f"s_add_u32 m0, s{S_CW}, {off + (VBASE if which else 0)}", f"s_add_u32 s{S_T}, s{S_CG}, {off}",
                   f"buffer_load_dwordx4 v{CV_ if which else CK_}, s[{srd}:{srd+3}], s{S_T} offen{NT_KV} lds"])
    return G_
def emit_q_dma():
    for x in q_dma_groups(): g.es(x)
def emit_coop(which, t):
    for x in coop_groups(which, t): g.es(x)
def qpf_group():
    pre = [f"s_cmp_lt_u32 s{S_QPL}, {STAGE}", f"s_cselect_b32 s{S_QP}, s{S_OOB}, s{S_QPO}", f"s_cselect_b32 m0, {STAGE + 23*4096}, s{S_QPL}"]
    ld = [f"buffer_load_dwordx4 v{DK+i}, s[{SQ}:{SQ+3}], s{S_QP} offen offset:{i*1024}{NT_Q} lds" for i in range(4)]
    post = [f"s_add_u32 s{S_QPO}, s{S_QPO}, 4096", f"s_add_u32 s{S_QPL}, s{S_QPL}, 4096"]
    return pre, ld, post

def ps_ops(u, blk):
    q = Q(u, 0); nb = len(blk)
    H = lambda i: f"v_mfma_f32_4x4x4_16b_bf16 {vr(blk[i%nb])}, v[{PT}:{PT+1}], v[{q+2*i}:{q+2*i+1}], 0"
    Lo = lambda i: f"v_mfma_f32_4x4x4_16b_bf16 {vr(blk[i%nb])}, v[{PT+2}:{PT+3}], v[{q+2*i}:{q+2*i+1}], {vr(blk[i%nb])}"
    C = lambda i, h: f"v_cvt_pk_bf16_f32 v{q+2*i+h}, v{blk[i%nb]+2*h}, v{blk[i%nb]+2*h+1}"
    return H, Lo, C
def prescale(u, blk):
    H, Lo, C = ps_ops(u, blk)
    seq = [("H", 0)]
    for i in range(0, 10):
        if i + 1 < 8: seq.append(("H", i + 1))
        if 0 <= i - 2 < 8: seq.append(("C0", i - 2))
        if i < 8: seq.append(("L", i))
        if 0 <= i - 2 < 8: seq.append(("C1", i - 2))
    L = []; pos = {}; cur = 0
    for kind, i in seq:
        need = 0
        if kind == "L": need = pos[("H", i)] + 1 + 2
        if kind[0] == "C": need = pos[("L", i)] + 1 + 5
        if cur < need:
            L.append(f"s_nop {need - cur - 1}"); cur = need
        L.append(H(i) if kind == "H" else Lo(i) if kind == "L" else C(i, int(kind[1])))
        pos[(kind, i)] = cur; cur += 1
    return L
def bc_reads(slot, ub, areg):
    return [f"ds_read_b128 {Or(ub, 16+4*s_)}, v{areg} offset:{slot*TILE+s_*64}" for s_ in range(4)]
def prepass_mfma(u, ub):
    d = vr(CB + u * 4)
    return [mfma(d, Or(ub, 16 + 4 * s_), vr(Q(u, s_)), "0" if s_ == 0 else d) for s_ in range(4)]
def prepass_neg(u):
    c = CB + u * 4
    return [f"v_sub_f32 v{c+k}, s{S_POFF}, v{c+k}" for k in range(4)]
def l_reduce(u):
    l = Lr(u); t = CB + 4 * u
    return [[f"v_mov_b32 v{t}, v{l}"],
            [f"v_permlane16_swap_b32 v{l}, v{t}"],
            [f"v_add_f32 v{l}, v{l}, v{t}", f"v_mov_b32 v{t}, v{l}"],
            [f"v_permlane32_swap_b32 v{l}, v{t}"],
            [f"v_add_f32 v{l}, v{l}, v{t}", f"v_subrev_u32 v{t}, s{S_TLO}, v{l}"],
            [f"v_cmp_le_u32 vcc, s{S_THR}, v{t}", f"v_rcp_f32 v{l}, v{l}"]]
def bad_flag(bit):
    return ["s_cmp_lg_u64 vcc, 0", f"s_cselect_b32 s{S_T2}, {1<<bit}, 0", f"s_or_b32 s{S_BAD}, s{S_BAD}, s{S_T2}"]
def add_lreduce(st, u, bit, pos=None):
    Gs = l_reduce(u); k = len(st.M)
    if k >= 16:
        pos = pos or (0, 2, 4, 6, 8, 10)
        for gi, p in zip(Gs, pos): st.valu[p] = st.valu[p] + gi
    else:
        for i, gi in enumerate(Gs): st.valu[i] = st.valu[i] + (["s_nop 1"] if i in (1, 3) else []) + gi
        st.post += ["s_nop 1"]
    st.post += bad_flag(bit)
def pkmul(r, u):
    l = Lr(u); b = l & 1; lp = l - b
    return f"v_pk_mul_f32 v[{r}:{r+1}], v[{r}:{r+1}], v[{lp}:{lp+1}] op_sel:[0,{b}] op_sel_hi:[1,{b}]"
def epilogue_parts(u, t, packs):
    def wr(j, r): return f"ds_write_b64 v{EW+(j&3)}, v[{r}:{r+1}] offset:{u*4096+(j>>2)*128}"
    Gs = []
    if Oisv(u):
        b = Obase(u)
        Gs = [[], [pkmul(b + k, u) for k in range(0, 32, 2)],
              [f"v_cvt_pk_bf16_f32 v{b+k}, v{b+2*k}, v{b+2*k+1}" for k in range(16)], [wr(j, b + 2 * j) for j in range(8)]]
        rb = [f"ds_read_b128 {Or(u, 16+4*i)}, v{ER+(i&1)} offset:{u*4096+i*1024}" for i in range(4)]
        return Gs, rb
    for jp in range(4):
        p = packs[jp % len(packs)]
        Gs.append([[f"v_accvgpr_read_b32 v{t+k}, a{Obase(u)+8*jp+k}" for k in range(8)],
                   [pkmul(t + k, u) for k in range(0, 8, 2)],
                   [f"v_cvt_pk_bf16_f32 v{p+k}, v{t+2*k}, v{t+2*k+1}" for k in range(4)],
                   [wr(2 * jp, p), wr(2 * jp + 1, p + 2)]])
    rb = [f"ds_read_b128 {Or(u, 4*i)}, v{ER+(i&1)} offset:{u*4096+i*1024}" for i in range(4)]
    return Gs, rb
def merged_block(u, sdead, pdead, mid=None):
    out = []
    if not Oisv(u):
        Gs, rb = epilogue_parts(u, sdead, [pdead[0], CB + 4 * u])
        H, Lo, C = ps_ops(u, [pdead[1], pdead[2]])
        if mid: Gs = Gs[2:] + Gs[:2]
        pend = []
        for gi in range(4):
            r, m, c, w = Gs[gi]
            a, b = 2 * gi, 2 * gi + 1
            mm = mid if (mid and gi == 2) else []
            out += [H(a)] + pend[:1] + [r[0], H(b)] + pend[1:2] + [r[1], Lo(a)] + mm[:2] + [r[2], Lo(b)] + mm[2:] + r[3:] + m + c
            if gi == 3: out += w
            out += [C(a, 0), C(a, 1), C(b, 0), C(b, 1)]
            pend = w
    else:
        (_, m, c, w), rb = epilogue_parts(u, None, None)
        H, Lo, C = ps_ops(u, [sdead, sdead + 4, pdead[0], CB + 4 * u])
        out += m
        x = [H(0), H(1), Lo(0), H(2), Lo(1), H(3), Lo(2), Lo(3)]
        for i in range(8): out += [x[i]] + ([w[i // 2 - 1]] if i in (2, 4, 6) else []) + [c[2 * i], c[2 * i + 1]]
        cs = [C(i, h) for i in range(4) for h in range(2)]
        out += cs[0:2] + [H(4), w[3]] + cs[2:4] + [H(5), w[4]] + cs[4:5] + [Lo(4), w[5]] + cs[5:6] + [H(6), w[6]] + cs[6:7] + [Lo(5), w[7]] + cs[7:8] + [H(7), Lo(6), C(4, 0), Lo(7), C(4, 1)]
        out += [C(5, 0), C(5, 1), "s_nop 0", C(6, 0), C(6, 1), C(7, 0), C(7, 1)]
    return out, rb
def o_stores(u, areg, sreg=S_OST):
    o = 16 if Oisv(u) else 0
    return [f"buffer_store_dwordx4 {Or(u, o+4*i)}, v{areg}, s[{SO}:{SO+3}], s{sreg} offen offset:{i*1024}{NT_O}" for i in range(4)]

def order_of(t, NQ):
    o = list(range(NQ))
    if t & 1:
        for i in range(0, NQ - 1, 2): o[i], o[i + 1] = o[i + 1], o[i]
    return o
def p_of(t, pos, NQ):
    if pos & 1: return PH((NQ // 2) * t + (pos >> 1))
    return PF(3 * t + (pos >> 1))
def ngroups(t, extra): return 2 if (t % 4 == 2 and extra == "Q") else 1
def make_body(NQ, t, dma, extra=None, mode=None):
    par = t & 1
    o0 = order_of(t, NQ); o1 = order_of(t + 1, NQ)
    S = []
    for k in range(NQ):
        n = NQ * t + 2 + k
        qk = (par, o0[k + 2]) if k + 2 < NQ else (par ^ 1, o1[k + 2 - NQ])
        if k + 1 < NQ: sm = (o0[k + 1], p_of(t, k + 1, NQ), mode == "new0")
        else: sm = (o1[0], p_of(t + 1, 0, NQ), mode == "end")
        pos = k & ~1; u = o0[pos]
        if pos + 1 < NQ:
            js = range(4 * (k & 1), 4 * (k & 1) + 4)
            if mode == "new0": pv = pv1(u, par, p_of(t, pos, NQ), True, js)
            else: pv = pv2(u, par, p_of(t, pos, NQ), p_of(t - 1, pos + 1, NQ), mode == "new1", js)
        else:
            pv = pv1(u, par, p_of(t, pos, NQ), mode == "new0")
        S.append(Step(n, qk, sm, pv, free=(12, 14) if (NQ == 6 and k == 4) else (0, 2)))
    vc = v_reads(t % R, par); vn = v_reads((t + 1) % R, par ^ 1); kn = k_reads((t + 1) % R, par ^ 1)
    short = mode == "new0"
    if NQ == 6:
        S[0].add_mem(vc[8:12], [0, 0, 2, 2]); S[1].add_mem(vc[12:16], [0, 0, 2, 2] if not short else [0, 0, 1, 1])
        S[2].add_mem(kn[:4], [0, 0, 2, 2]); S[3].add_mem(kn[4:], [0, 0, 2, 2])
        S[4].add_mem(vn[0:4], [12, 12, 14, 14] if not short else [0, 0, 2, 2]); S[5].add_mem(vn[4:8], [0, 0, 2, 2])
        S[0].salu[7].append("s_waitcnt lgkmcnt(4)")
        S[1].salu[7].append("s_waitcnt lgkmcnt(4)")
        if short: S[1].salu[9].append("s_waitcnt lgkmcnt(0)")
        else:
            S[1].salu[12].append("s_waitcnt lgkmcnt(2)")
            S[1].salu[13].append("s_waitcnt lgkmcnt(0)")
        S[2].salu[0].append("s_barrier")
        S[3].salu[-1].append("s_waitcnt lgkmcnt(0)")
    else:
        S[0].add_mem(vc[12:16], [0, 0, 2, 2])
        S[1].add_mem(kn[:4], [0, 0, 2, 2]); S[2].add_mem(kn[4:], [0, 0, 2, 2])
        S[3].add_mem(vn[0:6], [0, 0, 2, 2, 5, 9]); S[4].add_mem(vn[6:12], [0, 0, 2, 2, 5, 9])
        S[0].salu[7].append("s_waitcnt lgkmcnt(4)")
        nx = 4 * sum(ngroups(t - d, extra) for d in (1, 2, 3)) if extra else 0
        S[0].salu[-1].append(f"s_waitcnt vmcnt({32 + nx}) lgkmcnt(0)")
        S[1].salu[0].append("s_barrier")
        S[2].salu[-1].append("s_waitcnt lgkmcnt(0)")
        if short: sl = [(S[1], p) for p in (3, 4, 5, 6, 8, 9, 10, 11)] + [(S[2], p) for p in (3, 4, 5, 6, 8, 9, 10, 11)]
        else: sl = [(S[1], p) for p in (3, 4, 6, 7, 9, 10, 12, 13, 15)] + [(S[2], p) for p in (3, 4, 6, 8, 9, 10, 12)]
        place_dma(sl)
        for q, a in enumerate(dma_advance()): S[3].salu[1 + q].append(a)
        if extra == "Q":
            for gi in range(ngroups(t, extra)):
                pre, ld, post = qpf_group()
                if gi == 0:
                    st = S[4]
                    for q, x in enumerate(pre): st.salu[q].append(x)
                    st.add_mem(ld, [3, 4, 6, 7])
                    for q, x in enumerate(post): st.salu[3 + q].append(x)
                else:
                    for q, x in enumerate(pre): st.salu[8 + q].append(x)
                    st.add_mem(ld, [11, 12, 13, 14])
                    for q, x in enumerate(post): st.salu[11 + q].append(x)
        if extra == "O":
            rd = [f"ds_read_b128 {ar(ODAT+4*i)}, v{ORD+(i&1)} offset:{(t % 4)*4096 + i*1024}" for i in range(4)]
            S[1].add_mem(rd, [5, 8, 11, 14])
            so = [f"buffer_store_dwordx4 {ar(ODAT+4*i)}, v{OOFF}, s[{SO}:{SO+3}], s{S_QPO} offen offset:{i*1024}{NT_O}" for i in range(4)]
            S[3].add_mem(so[:2], [7, 12]); S[4].add_mem(so[2:], [3, 7])
            for q, x in enumerate([f"s_add_u32 s{S_QPO}, s{S_QPO}, 4096", f"s_sub_u32 s{S_QP}, s{S_QP}, 1",
                                   f"s_cmp_le_i32 s{S_QP}, 0", f"s_cselect_b32 s{S_QPO}, s{S_OOB}, s{S_QPO}"]): S[4].salu[8 + q].append(x)
            if t % 4 == 3:
                S[3].valu[4].append(f"v_add_u32 v{ORD}, 16384, v{ORD}")
                S[3].valu[10].append(f"v_add_u32 v{ORD+1}, 16384, v{ORD+1}")
    return S

def resolve_waits(f0):
    for i in range(f0, len(g.L)):
        w = g.L[i].split()
        if w and w[0] in ("WAITL", "WAITV"):
            t = w[1]
            j = max(k for k in range(f0, i) if g.L[k].endswith("@" + t))
            pre = ("ds_",) if w[0] == "WAITL" else ("buffer_", "global_")
            n = sum(1 for k in range(j + 1, i) if g.L[k].strip().startswith(pre))
            g.L[i] = f"    s_waitcnt lgkmcnt({min(n, 15)})" if w[0] == "WAITL" else f"    s_waitcnt vmcnt({min(n, 63)})"
def tag(ops, t): return [f"{o} ; @{t}" for o in ops]

def emit_variant(NQ, dma, name):
    g.lab(f"L_start_{name}")
    CUR_NQ[0] = NQ
    order = ["Q0"] * 4 + ["K0"] * 2 + ["K1"] * 2 + ["Q1"] * 4 + ["V0"] * 2 + ["V1"] * 2
    def groups(nm):
        if nm[0] == "Q":
            order.extend([nm] * 4); return q_dma_groups()
        order.extend([nm] * 2); return coop_groups(0 if nm[0] == "K" else 1, int(nm[1]))
    def issue(nm):
        if nm[0] == "T":
            emit_dma_tile_plain(); order.extend([nm] * 16)
        else:
            for x in groups(nm): g.es(x)
    def wstr(nm):
        a = len(order) - 1 - max(i for i, x in enumerate(order) if x == nm)
        return f"s_waitcnt vmcnt({min(63, a)})"
    if dma:
        g.e(f"s_add_u32 s{S_DOFF}, s{S_HOFF}, {4*TILE}")
        g.e(f"s_add_u32 s{S_D2}, s{S_DOFF}, 4096")
        g.e(f"s_mov_b32 s{S_DCNT}, 4")
        g.e(f"s_mov_b32 s{S_DSLOT}, 0")
        g.e(f"s_mov_b32 s{S_OOB}, 0x10000000")
    stamp(1)
    topup = {1: ["Q4"], 3: ["K2", "K3"], 4: ["V2", "V3"]} if dma else {1: ["Q4"], 2: ["Q5"], 3: ["K2", "K3"], 4: ["V2", "V3"]}
    UB = NQ - 1
    def ps_blk(u, n):
        sb = SB + ((n - 1) & 1) * 8
        return [sb, sb + 4, PF(n), CB + 4 * u]
    g.e(wstr("Q0"))
    stamp(16)
    g.es(q_reads(0))
    issue("Q2")
    g.e("s_waitcnt lgkmcnt(0)")
    g.es(prescale(0, ps_blk(0, 0)))
    g.e(wstr("K1"))
    g.e("s_barrier")
    stamp(2)
    g.es(bc_reads(0, UB, BCA))
    g.es(k_reads(0, 0))
    issue("Q3")
    g.e("s_waitcnt lgkmcnt(8)")
    pm = prepass_mfma(0, UB); kr = k_reads(1, 1)
    for i in range(4): g.e(pm[i]); g.es(kr[2 * i:2 * i + 2])
    g.e("s_nop 5")
    g.es(prepass_neg(0))
    g.e("s_waitcnt lgkmcnt(8)")
    g.e("s_nop 0")
    def deferred(m): return (m & 1) and (m >> 1) % 2 == 0 and (m >> 1) + 1 < NQ
    def pdst(m): return p_of(1, (m >> 1) + 1, NQ) if deferred(m) else PF(m)
    def mkstep(n, qk=None):
        sm = ((n - 1) >> 1, pdst(n - 1), (n - 1) & 1 == 0) if n >= 1 else None
        pv = pv1((n - 2) >> 1, n & 1, PF(n), n & 1 == 0) if (n >= 2 and not deferred(n - 2)) else []
        return Step(n, qk or (n & 1, n >> 1), sm, pv)
    for u in range(NQ):
        if dma and u == NQ - 1: issue("T4")
        st = mkstep(2 * u)
        k = len(st.M)
        if u == 1: st.salu[7].append("s_waitcnt lgkmcnt(0)")
        if u < NQ - 1:
            st.salu[k - 5].append(wstr(f"Q{u+1}"))
            st.add_mem(q_reads(u + 1), [k - 5, k - 5, k - 3, k - 3])
            if u == 0: st.post = []
        else:
            kr = k_reads(2, 0)
            st.salu[7].append(wstr("K3"))
            st.salu[8].append("s_barrier")
            st.add_mem(kr[:4], [8, 10, 11, 13])
        st.emit()
        if u == 1: g.e("s_barrier")
        st = mkstep(2 * u + 1)
        if u < NQ - 1:
            stamp(17 + u)
            g.e("s_waitcnt lgkmcnt(0)")
            g.es(prescale(u + 1, ps_blk(u + 1, 2 * u)))
            if u == 0:
                g.e(wstr("V1"))
                g.e("s_barrier")
                stamp(3)
            st.prepend(prepass_mfma(u + 1, UB))
            gs = []
            for x in topup.get(u + 1, []): gs += groups(x)
            for i, gi in enumerate(gs): st.mem[i] += gi
            k = len(st.M)
            for x, p in zip(prepass_neg(u + 1), (k - 5, k - 4, k - 3, k - 2)): st.valu[p] = st.valu[p] + [x]
            if u == 0:
                vv = v_reads(0, 0) + v_reads(1, 1)
                st.add_mem(vv, [i * k // 32 for i in range(32)])
        else:
            st.add_mem(kr[4:], [0, 0, 1, 1])
            st.post.append("s_waitcnt lgkmcnt(0)")
        st.emit()
    n = 2 * NQ
    st = mkstep(n, (0, 0))
    st.salu[15].append(wstr("V3"))
    st.emit()
    st = Step(n + 1, (0, 1), (0, p_of(2, 0, NQ), False), pv1(NQ - 1, 1, PF(n + 1), False))
    assert p_of(2, 0, NQ) == PF(n)
    st.salu[0].append("s_barrier")
    nv = 8 if NQ == 6 else 12
    st.add_mem(v_reads(2, 0)[:nv], [0, 0, 2, 2, 4, 6, 8, 10, 11, 12, 13, 14][:nv])
    st.emit()
    if dma:
        emit_dma_tile_plain()
        g.e(f"s_add_u32 s{S_QPO}, s{S_HOFF2}, s{S_CROW}")
        g.e(f"s_sub_u32 s{S_QPO}, s{S_QPO}, {4*4096}")
        g.e(f"s_mov_b32 s{S_QPL}, {STAGE - 4*4096}")
        for _ in range(2):
            pre, ld, post = qpf_group()
            g.es(pre + ["s_nop 0"] + ld + post)
    g.e(f"s_mov_b32 s{S_CNT}, 0")
    stamp(4)
    def emit_loop(ln, extra, chk_final, chk_trans):
        rot = not dma
        m_first = make_body(NQ, 2, dma, extra)[0].M[0]
        if rot: g.e(m_first)
        g.L.append(".p2align 6")
        g.lab(f"L_{ln}_{name}")
        for ph in (2, 3, 0, 1):
            if ph == 1: g.lab(f"L_{ln}1_{name}")
            S = make_body(NQ, ph + 4, dma, extra)
            if rot and ph == 2: S[0].M[0] = "; (first MFMA issued before the branch)"
            if ph == 3 and chk_final:
                S[NQ - 3].salu[14].append(f"s_cmp_eq_u32 s{S_CNT}, 10")
                S[NQ - 3].post.append(f"s_cbranch_scc1 L_final_{name}")
            if ph == 1:
                S[-1].salu[13].append(f"s_add_u32 s{S_CNT}, s{S_CNT}, 1")
                if chk_trans: S[-1].salu[15].append(f"s_cmp_lt_u32 s{S_CNT}, 4" if dma else f"s_cmp_lg_u32 s{S_CNT}, 5")
            for st in S: st.emit()
        if rot: g.e(m_first)
        if chk_trans:
            g.e(f"s_cbranch_scc1 L_{ln}_{name}")
            if dma:
                g.e(f"s_cmp_eq_u32 s{S_CNT}, 5")
                g.e(f"s_cbranch_scc1 L_trans_{name}")
                g.e(f"v_lshlrev_b32 v{CK_}, 3, v{OOFF}")
                for lab in ("L_trans_w0", "L_trans_w3", "L_trans_w0+8192", "L_trans_w3+8192", "L_trans_w0+16384", "L_trans_w3+16384"):
                    g.e(f"v_add_u32 v{CV_}, {lab}-L_pc0, v{CK_}")
                    g.e(f"global_load_dword v108, v{CV_}, s[58:59]")
                g.e(f"s_branch L_{ln}_{name}")
        else:
            g.e(f"s_branch L_{ln}_{name}")
    emit_loop("loop", "Q" if dma else None, not dma, True)
    g.lab(f"L_trans_{name}")
    stamp(5)
    f0 = len(g.L)
    S = make_body(NQ, 22, dma, None, "end")
    if not dma: S[0].M[0] = "; (first MFMA issued before the branch)"
    S23 = make_body(NQ, 23, dma, None, "new0")
    queue = []; pend_st = []
    def lead(st, us):
        ms = []
        for u in us: ms += prepass_mfma(u, 0)
        st.prepend(ms)
        return len(ms), [x for u in us for x in prepass_neg(u)]
    if dma: g.e(f"s_add_u32 s{S_OST}, s{S_HOFF}, s{S_ROWB}")
    else:
        S[2].salu[0].remove("s_barrier")
        S[1].salu[14].append("s_barrier")
    bca = BCA if dma else CB + 9
    for k, st in enumerate(S):
        if k & 1: st.append(pv1(k, 0, p_of(22, k, NQ), False))
        off = 0; neg = []
        if queue:
            if k == 2: st.pre.append("WAITL bc")
            off, neg = lead(st, queue); queue = []
        if dma and k == 0: st.pre.append("s_waitcnt vmcnt(60)")
        if dma and k == 3: st.pre.append("s_waitcnt vmcnt(40)")
        if dma and k == 4: st.pre.append("s_waitcnt vmcnt(24)")
        st.add_mem(tag(q_reads(k), f"q{k}"), [1, 1, 3, 3] if off else ([17, 17, 19, 19] if k & 1 else [8, 8, 10, 10]))
        kk = len(st.M)
        if pend_st:
            st.salu[4].append(f"WAITL rb{k-1}")
            st.add_mem(pend_st, [4, 5, 6, 7, kk - 3, kk - 2, kk - 1, kk - 1])
        pend_st = []
        st.repack(l_reduce(k), k, neg, off + 3)
        if k == 1 and not dma:
            st.valu[21] += [f"v_bfe_u32 v{bca}, v{ER}, 8, 2"]
            st.valu[22] += [f"v_lshlrev_b32 v{bca}, 4, v{bca}"]
        st.emit()
        us = [k - 1, k] if (k & 1) else ([k] if k == NQ - 1 else [])
        for u in us:
            g.e(f"WAITL q{u}")
            sdead = SB + ((st.n - 1) & 1) * 8
            if k & 1: pdead = [p_of(22, k - 1, NQ), p_of(21, k, NQ), p_of(22, k, NQ)]
            else: pdead = [p_of(22, k, NQ)]
            L, rb = merged_block(u, sdead, pdead, tag(bc_reads(23 % R, 0, bca), "bc") if u == 0 else None)
            g.es(L)
            if dma:
                g.es(tag(rb, f"rb{u}"))
                g.e(f"s_add_u32 s{88 + (u & 1)}, s{S_OST}, {u*4096}")
                pend_st += o_stores(u, OOFF, 88 + (u & 1))
            queue.insert(0, u)
    stamp(6)
    st = S23[0]
    off, neg = lead(st, queue)
    if dma:
        kk = len(st.M)
        st.salu[kk - 8].append(f"WAITL rb{NQ-1}")
        st.add_mem(pend_st, [kk - 8, kk - 7, kk - 4, kk - 3])
    st.repack(None, None, neg, off + 3)
    if dma:
        st.salu[0].append(f"s_add_u32 s{S_QPO}, s{S_HOFF}, s{S_CROW}")
        st.salu[1].append(f"s_mov_b32 s{S_QP}, 18")
        st.salu[2].append(f"s_add_u32 s{S_OST}, s{S_HOFF2}, s{S_ROWB}")
        st.valu[0].append(f"v_add_u32 v{ORD}, {STAGE}, v{DK}")
        st.valu[1].append(f"v_add_u32 v{ORD+1}, {STAGE}, v{DK+1}")
        S23[4].add_mem([f"buffer_store_dwordx4 {ar(ODAT)}, v{OOFF}, s[{SO}:{SO+3}], s{S_OOB} offen"] * 4, [3, 7, 11, 13])
    for st in S23: st.emit()
    S24 = make_body(NQ, 24, dma, "O" if dma else None, "new1")
    for st in S24: st.emit()
    resolve_waits(f0)
    stamp(10)
    if dma:
        g.e(f"s_branch L_loopb1_{name}")
        emit_loop("loopb", "O", True, False)
    else:
        g.e(f"s_branch L_loop1_{name}")
    g.lab(f"L_final_{name}")
    stamp(11)
    f0 = len(g.L)
    if dma: g.e("s_waitcnt vmcnt(32)")
    o43 = order_of(43, NQ)
    FO = OOFF if dma else PH(0)
    B43 = make_body(NQ, 43, dma, None)
    F = []
    for m in range(2 * NQ + 2):
        n = NQ * 44 + m
        qk = (m & 1, m >> 1) if m < 2 * NQ else None
        if m == 0: sm = (o43[NQ - 1], p_of(43, NQ - 1, NQ), False)
        else: sm = ((m - 1) >> 1, PF(m - 1), False) if m - 1 < 2 * NQ else None
        if m < 2: pv = B43[NQ - 2 + m].M[8:]
        else: pv = pv1((m - 2) >> 1, m & 1, PF(m), False)
        F.append(Step(n, qk, sm, pv))
    singles = [pv1(o43[p], 1, p_of(43, p, NQ), False) for p in range(1, NQ, 2)]
    F[0].append(singles[0] + (singles[1] if NQ == 6 else []))
    F[1].append(singles[-1])
    F[0].salu[0].append("s_barrier")
    F[0].add_mem(tag(k_reads(45 % R, 1), "k45"), [0, 0, 2, 2, 16, 16, 17, 17])
    F[0].salu[-1].append("WAITL k45")
    v44 = tag(v_reads(44 % R, 0), "v44"); v45 = tag(v_reads(45 % R, 1), "v45")
    if NQ == 6:
        F[0].add_mem(v44[:8], [18, 18, 19, 19, 20, 20, 21, 21])
        F[1].add_mem(v44[8:], [16, 16, 17, 17, 18, 18, 19, 19])
    else:
        F[0].add_mem(v44[:8], [18, 18, 19, 19, 20, 20, 21, 21])
        F[1].add_mem(v44[8:], [0, 0, 2, 2, 16, 16, 17, 17])
    F[1].add_mem(v45[:6], [20, 21, 22, 22, 23, 23])
    F[2].add_mem(v45[6:], [0, 0, 1, 2, 2, 3, 4, 6, 8, 10])
    F[2].salu[7].append("WAITL v44")
    F[3].salu[7].append("WAITL v45")
    if not dma:
        F[2].valu[11] += [f"v_mbcnt_lo_u32_b32 v{FO}, -1, 0"]
        F[2].valu[12] += [f"v_mbcnt_hi_u32_b32 v{FO}, -1, v{FO}"]
        F[2].valu[13] += [f"v_lshlrev_b32 v{FO}, 4, v{FO}"]
    adv = f"s_add_u32 s{S_OST}, s{S_OST}, 4096"
    for m, st in enumerate(F):
        if m < 2: st.repack()
        if m >= 3 and m % 2 == 1:
            if len(st.M) == 16: st.repack(l_reduce((m - 3) // 2), 6 + (m - 3) // 2)
            else: add_lreduce(st, (m - 3) // 2, 6 + (m - 3) // 2)
        st.emit()
        if m >= 3 and m % 2 == 1:
            u = (m - 3) // 2
            q = Q(u, 0)
            Gs, rb = epilogue_parts(u, SB + ((st.n - 1) & 1) * 8, [q, q + 4, q + 8, q + 12])
            if Oisv(u): va = Gs[1] + Gs[2]; wr = Gs[3]
            else: va = [x for G_ in Gs for x in G_[0] + G_[1] + G_[2]]; wr = [x for G_ in Gs for x in G_[3]]
            g.es(va)
            so = o_stores(u, FO)
            if m + 1 < 2 * NQ:
                F[m + 1].add_mem(wr + rb, [0, 1, 2, 3, 4, 6, 8, 10, 12, 12, 13, 13])
                F[m + 2].salu[1].append("s_waitcnt lgkmcnt(0)")
                F[m + 2].add_mem(so, [1, 5, 9, 15])
                F[m + 2].post.append(adv)
            elif u == NQ - 2:
                g.es(wr + rb)
                F[m + 1].salu[3].append("s_waitcnt lgkmcnt(0)")
                F[m + 1].add_mem(so, [3, 4, 5, 6])
                F[m + 1].salu[7].append(adv)
            else:
                g.es(wr + rb)
                g.e("s_waitcnt lgkmcnt(0)")
                g.es(so)
    resolve_waits(f0)
    stamp(12)
    g.e(f"s_cmp_lg_u32 s{S_BAD}, 0")
    g.e("s_cbranch_scc1 L_slow")
    stamp_out()
    g.e("s_endpgm")

def emit_dma_offsets(lane15, lane4, t0, t1):
    g.e(f"v_lshlrev_b32 v{t1}, 8, v{lane4}")
    for i in range(4):
        g.e(f"v_add_u32 v{t0}, {4*i}, v{lane4}")
        g.e(f"v_xor_b32 v{t0}, v{t0}, v{lane15}")
        g.e(f"v_lshl_add_u32 v{DK+i}, v{t0}, 4, v{t1}")
    for i in range(2):
        g.e(f"v_lshl_add_u32 v{t0}, v{lane4}, 1, {8*i}")
        g.e(f"v_xor_b32 v{t0}, v{t0}, v{lane15}")
        g.e(f"v_lshl_add_u32 v{DV+i}, v{t0}, 4, v{t1}")

def emit_slow():
    SB_, ST_, SH_, SR_, SX_ = 60, 61, 62, 63, 58
    VT = Q(1, 0); M_ = Q(2, 0)
    o = OVB; l = Lr(0); sreg = SB; p = PF(0)
    def tile_dma(which, ldsoff):
        srd = SK if which == 0 else SV
        for hh in range(2):
            g.e(f"s_add_u32 m0, s{S_STG}, {ldsoff + hh*4096}")
            g.e(f"s_add_u32 s{SX_}, s{ST_}, {hh*4096}")
            for i in range(4):
                va = DK + i if which == 0 else DV + (i & 1)
                g.e(f"buffer_load_dwordx4 v{va}, s[{srd}:{srd+3}], s{SX_} offen offset:{i*1024} lds")
    def kreads():
        for kt in range(2):
            for s_ in range(4): g.e(f"ds_read_b128 {Kf(0, kt*4+s_)}, v{QA+s_} offset:{4096+kt*4096}")
    def qk():
        for kt in range(2):
            for s_ in range(4):
                d = vr(sreg + kt * 4)
                g.e(mfma(d, Kf(0, kt * 4 + s_), vr(Q(0, s_)), "0" if s_ == 0 else d))
        g.e("s_nop 7")
    def xlane(r, t, op):
        for sw in ("v_permlane16_swap_b32", "v_permlane32_swap_b32"):
            g.es([f"v_mov_b32 v{t}, v{r}", "s_nop 1", f"{sw} v{r}, v{t}", "s_nop 1", f"{op} v{r}, v{r}, v{t}"])
    g.lab("L_slow")
    g.e("s_waitcnt vmcnt(0) lgkmcnt(0)")
    g.e(f"v_mbcnt_lo_u32_b32 v{M_}, -1, 0")
    g.e(f"v_mbcnt_hi_u32_b32 v{M_}, -1, v{M_}")
    g.e(f"v_lshlrev_b32 v{OOFF}, 4, v{M_}")
    g.e(f"v_and_b32 v{M_+1}, 15, v{M_}")
    g.e(f"v_lshrrev_b32 v{M_+2}, 4, v{M_}")
    emit_dma_offsets(M_ + 1, M_ + 2, M_ + 3, M_ + 4)
    g.e(f"s_sub_u32 s{SX_}, s{S_STG}, {VBASE - 12288}")
    for j in range(8): g.e(f"v_add_u32 v{VT+j}, s{SX_}, v{VAD+j}")
    g.lab("L_slow_next")
    g.e("s_waitcnt vmcnt(0) lgkmcnt(0)")
    g.e(f"s_ff1_i32_b32 s{SB_}, s{S_BAD}")
    g.e(f"s_bitset0_b32 s{S_BAD}, s{SB_}")
    g.e(f"s_cmp_ge_u32 s{SB_}, 6")
    g.e(f"s_cselect_b32 s{SH_}, s{S_HOFF2}, s{S_HOFF}")
    g.e(f"s_cselect_b32 s{SX_}, 6, 0")
    g.e(f"s_sub_u32 s{SB_}, s{SB_}, s{SX_}")
    g.e(f"s_lshl_b32 s{SB_}, s{SB_}, 12")
    g.e(f"s_add_u32 s{SR_}, s{SH_}, s{S_ROWB}")
    g.e(f"s_add_u32 s{SR_}, s{SR_}, s{SB_}")
    g.e(f"s_mov_b32 m0, s{S_STG}")
    g.e("s_nop 0")
    for i in range(4):
        g.e(f"buffer_load_dwordx4 v{DK+i}, s[{SQ}:{SQ+3}], s{SR_} offen offset:{i*1024} lds")
    g.e("s_waitcnt vmcnt(0)")
    g.es(q_reads(0))
    g.e("s_waitcnt lgkmcnt(0)")
    g.es(prescale(0, [SB, SB + 4, SB + 8, SB + 12]))
    g.e(f"v_mov_b32 v{M_}, 0xff800000")
    g.e(f"s_mov_b32 s{ST_}, s{SH_}")
    g.e(f"s_add_u32 s{SB_}, s{SH_}, {HEAD_BYTES}")
    g.lab("L_slow_p1")
    tile_dma(0, 4096)
    g.e("s_waitcnt vmcnt(0)")
    kreads()
    g.e("s_waitcnt lgkmcnt(0)")
    qk()
    for i in range(0, 8, 2): g.e(f"v_max3_f32 v{M_}, v{M_}, v{sreg+i}, v{sreg+i+1}")
    g.e(f"s_add_u32 s{ST_}, s{ST_}, {TILE}")
    g.e(f"s_cmp_lt_u32 s{ST_}, s{SB_}")
    g.e("s_cbranch_scc1 L_slow_p1")
    xlane(M_, M_ + 1, "v_max_f32")
    for k in range(32): g.e(f"v_mov_b32 v{o+k}, 0")
    g.e(f"v_mov_b32 v{l}, 0")
    g.e(f"s_mov_b32 s{ST_}, s{SH_}")
    g.lab("L_slow_p2")
    tile_dma(0, 4096)
    tile_dma(1, 12288)
    g.e("s_waitcnt vmcnt(0)")
    kreads()
    g.e("s_waitcnt lgkmcnt(0)")
    for j in range(8):
        for h in range(2): g.e(f"ds_read_b64_tr_b16 {Vf(0, j, 2, 2*h)}, v{VT+j} offset:{h*4096}")
    qk()
    for i in range(8): g.e(f"v_sub_f32 v{sreg+i}, v{sreg+i}, v{M_}")
    for i in range(8): g.e(f"v_exp_f32 v{sreg+i}, v{sreg+i}")
    g.e("s_nop 0")
    for i in range(8): g.e(f"v_add_f32 v{l}, v{l}, v{sreg+i}")
    for i in range(4): g.e(f"v_cvt_pk_bf16_f32 v{p+i}, v{sreg+2*i}, v{sreg+2*i+1}")
    g.e("s_waitcnt lgkmcnt(0)")
    g.e("s_nop 1")
    for j in range(8): g.e(mfma(vr(o + 4 * j), Vf(0, j), vr(p), vr(o + 4 * j)))
    g.e(f"s_add_u32 s{ST_}, s{ST_}, {TILE}")
    g.e(f"s_cmp_lt_u32 s{ST_}, s{SB_}")
    g.e("s_cbranch_scc1 L_slow_p2")
    xlane(l, M_ + 1, "v_add_f32")
    g.e(f"v_rcp_f32 v{l}, v{l}")
    g.e("s_nop 7")
    for k in range(0, 32, 2): g.e(pkmul(o + k, 0))
    for k in range(16): g.e(f"v_cvt_pk_bf16_f32 v{o+k}, v{o+2*k}, v{o+2*k+1}")
    for j in range(8): g.e(f"ds_write_b64 v{EW+(j&3)}, v[{o+2*j}:{o+2*j+1}] offset:{(j>>2)*128}")
    for i in range(4): g.e(f"ds_read_b128 {vr(o+16+4*i)}, v{ER+(i&1)} offset:{i*1024}")
    g.e("s_waitcnt lgkmcnt(0)")
    for i in range(4): g.e(f"buffer_store_dwordx4 {vr(o+16+4*i)}, v{OOFF}, s[{SO}:{SO+3}], s{SR_} offen offset:{i*1024}")
    g.e(f"s_cmp_lg_u32 s{S_BAD}, 0")
    g.e("s_cbranch_scc1 L_slow_next")
    g.e("s_endpgm")

def emit_addr_setup():
    for s in range(4):
        g.e(f"v_add_u32 v5, {4*s}, v14")
        g.e("v_xor_b32 v5, v5, v13")
        g.e("v_lshlrev_b32 v5, 4, v5")
        g.e(f"v_lshl_add_u32 v{KAD+s}, v13, 8, v5")
    g.e("v_lshrrev_b32 v6, 2, v12")
    g.e("v_and_b32 v7, 3, v12")
    g.e("v_lshlrev_b32 v8, 8, v6")
    g.e("v_lshl_add_u32 v8, v7, 3, v8")
    g.e(f"v_add_u32 v8, {VBASE}, v8")
    g.e("v_and_b32 v6, 7, v6")
    for j in range(8):
        g.e(f"v_xor_b32 v5, {j}, v6")
        g.e(f"v_lshl_add_u32 v{VAD+j}, v5, 5, v8")
    g.e(f"v_lshlrev_b32 v{OOFF}, 4, v12")
    g.e("v_lshrrev_b32 v5, 1, v14")
    g.e("v_and_b32 v6, 7, v13")
    g.e("v_xor_b32 v5, v5, v6")
    g.e("v_lshlrev_b32 v5, 4, v5")
    g.e("v_lshl_add_u32 v5, v13, 8, v5")
    g.e("v_and_b32 v6, 1, v14")
    g.e("v_lshl_add_u32 v5, v6, 3, v5")
    g.e(f"v_add_u32 v{EW}, s{S_STG}, v5")
    for j in range(1, 4): g.e(f"v_xor_b32 v{EW+j}, {j<<5}, v{EW}")
    g.e(f"v_add_u32 v{ER}, s{S_STG}, v{DK}")
    g.e(f"v_add_u32 v{ER+1}, s{S_STG}, v{DK+1}")
    for s in range(4): g.e(f"v_add_u32 v{QA+s}, s{S_STG}, v{KAD+s}")
    def bf16_rne(x):
        u = f2u(x); return (u + 0x7fff + ((u >> 16) & 1)) >> 16
    chi = bf16_rne(CSCALE); chi_f = struct.unpack("<f", struct.pack("<I", chi << 16))[0]
    clo = bf16_rne(CSCALE - chi_f)
    g.e(f"v_lshlrev_b32 v{BCA}, 4, v14")
    g.e("v_and_b32 v15, 3, v12")
    g.e("v_lshlrev_b32 v15, 4, v15")
    g.e(f"s_mov_b32 s{S_C}, {hex(chi)}")
    g.e(f"s_mov_b32 s{S_C+1}, 0")
    g.e(f"v_lshlrev_b64 v[{PT}:{PT+1}], v15, s[{S_C}:{S_C+1}]")
    g.e(f"s_mov_b32 s{S_C}, {hex(clo)}")
    g.e(f"v_lshlrev_b64 v[{PT+2}:{PT+3}], v15, s[{S_C}:{S_C+1}]")
    g.e(f"s_mov_b32 s{S_TLO}, {hex(f2u(2.0**(POFF - 16)))}")
    g.e(f"s_mov_b32 s{S_THR}, {hex(f2u(2.0**64) - f2u(2.0**(POFF - 16)))}")
    g.e(f"s_mov_b32 s{S_BAD}, 0")
    g.e(f"s_mov_b32 s{S_POFF}, {hex(f2u(POFF))}")
    g.e(f"s_add_u32 s{S_OST}, s{S_HOFF2}, s{S_ROWB}")

DOC = """;
"""
def main():
    hdr = open("cdna_kernels/" + NAME + ".s.ref").read().split("; @launch")[0]
    out = hdr + f"; @launch grid=(256,1,1) block=(256,1,1) lds={LDS_BYTES}\n"
    out += DOC
    out += f'''.amdgcn_target "amdgcn-amd-amdhsa--gfx950"
.text
.globl {NAME}_kernel
.p2align 8
.type {NAME}_kernel,@function
{NAME}_kernel:
'''
    if STAMP:
        g.es(["s_memrealtime s[38:39]", "s_waitcnt lgkmcnt(0)", "s_mov_b32 s94, s38"])
        stamp(0)
        for i in range(65, 88): g.e(f"s_mov_b32 s{i}, s64")
    g.e("s_load_dwordx8 s[40:47], s[0:1], 0")
    g.e("s_cmp_ge_u32 s2, 256")
    g.e("s_cbranch_scc1 L_done")
    g.e("s_getpc_b64 s[58:59]")
    g.lab("L_pc0")
    g.e("v_lshlrev_b32 v16, 7, v0")
    g.e("v_cmp_lt_u32 vcc, 127, v0")
    g.e("v_mov_b32 v17, L_start_w3-L_pc0-16384")
    g.e("s_nop 0")
    g.e("v_cndmask_b32 v17, 0, v17, vcc")
    g.e("v_add_u32 v16, v16, v17")
    g.e("global_load_dword v17, v16, s[58:59]")
    g.e("v_lshrrev_b32 v11, 6, v0")
    g.e("v_and_b32 v12, 63, v0")
    g.e(f"v_readfirstlane_b32 s{S_WAVE}, v11")
    g.e("v_and_b32 v13, 15, v12")
    g.e("v_lshrrev_b32 v14, 4, v12")
    g.e("s_and_b32 s3, s2, 7")
    g.e("s_lshr_b32 s4, s2, 3")
    g.e("s_lshr_b32 s5, s4, 1")
    g.e("s_and_b32 s4, s4, 1")
    g.e("s_lshl_b32 s3, s3, 5")
    g.e("s_add_u32 s3, s3, s5")
    g.e(f"s_mul_i32 s{S_HOFF}, s3, {HEAD_BYTES}")
    g.e(f"s_add_u32 s{S_HOFF2}, s{S_HOFF}, {16*HEAD_BYTES}")
    g.e(f"s_mul_i32 s{S_CROW}, s4, {368*256}")
    g.e(f"s_mul_i32 s5, s{S_WAVE}, {96*256}")
    g.e(f"s_add_u32 s{S_ROWB}, s{S_CROW}, s5")
    g.e(f"s_add_u32 s{S_STG}, s5, {STAGE}")
    g.e(f"s_add_u32 s{S_QPO}, s{S_HOFF}, s{S_ROWB}")
    g.e(f"s_mov_b32 s{S_QPL}, s{S_STG}")
    emit_dma_offsets(13, 14, 5, 15)
    g.e("v_lshl_add_u32 v5, v11, 2, v14")
    g.e("v_xor_b32 v6, v5, v13")
    g.e(f"v_lshl_add_u32 v{CK_}, v6, 4, v15")
    g.e("v_and_b32 v5, 7, v5")
    g.e("v_lshlrev_b32 v5, 1, v5")
    g.e("v_xor_b32 v6, v5, v13")
    g.e(f"v_lshl_add_u32 v{CV_}, v6, 4, v15")
    g.e(f"s_lshl_b32 s{S_CW}, s{S_WAVE}, 10")
    g.e(f"s_add_u32 s{S_CG}, s{S_HOFF}, s{S_CW}")
    g.e("s_waitcnt lgkmcnt(0)")
    def srd(i, r):
        g.e(f"s_mov_b32 s{r}, s{40+2*i}")
        g.e(f"s_and_b32 s{r+1}, s{41+2*i}, 0xffff")
        g.e(f"s_mov_b32 s{r+2}, {TOTAL_BYTES}")
        g.e(f"s_mov_b32 s{r+3}, 0x20000")
    srd(0, SQ); srd(1, SK)
    stamp(7); emit_q_dma(); emit_coop(0, 0); emit_coop(0, 1)
    emit_addr_setup()
    srd(2, SV); srd(3, SO)
    emit_q_dma(); emit_coop(1, 0); emit_coop(1, 1)
    g.e(f"s_cmp_eq_u32 s{S_WAVE}, 3")
    g.e("s_cbranch_scc1 L_start_w3")
    emit_variant(6, False, "w0")
    emit_variant(5, True, "w3")
    emit_slow()
    g.lab("L_done")
    g.e("s_endpgm")
    g.L.append(".fill 2048, 4, 0xbf810000")
    out += "\n".join(g.L) + "\n"
    out += f'''.section .rodata,"a"
.p2align 6
.amdhsa_kernel {NAME}_kernel
  .amdhsa_next_free_vgpr 512
  .amdhsa_next_free_sgpr 96
  .amdhsa_accum_offset 256
  .amdhsa_group_segment_fixed_size 0
  .amdhsa_kernarg_size 48
  .amdhsa_user_sgpr_count 2
  .amdhsa_user_sgpr_kernarg_segment_ptr 1
  .amdhsa_system_sgpr_workgroup_id_x 1
.end_amdhsa_kernel
'''
    fn = sys.argv[1] if len(sys.argv) > 1 else "cdna_kernels/" + NAME + ".s"
    open(fn, "w").write(out)
main()
```

```python
import sys, os, struct
NAME = "standalone__gqa_softmax__near_ridge"
R = 4
TILE = 8192
VBASE = R * TILE
STAGE = 2 * R * TILE
LDS_BYTES = STAGE + 24 * 4096
HEAD_BYTES = 736 * 256
TOTAL_BYTES = 256 * HEAD_BYTES
E = os.environ.get
STAMP = int(E("STAMP", "0"))
NT_KV = E("NT_KV", " nt"); NT_Q = E("NT_Q", " nt"); NT_O = E("NT_O", " sc1")
X = E("X", "vfirst").split(",")
def f2u(x): return struct.unpack("<I", struct.pack("<f", x))[0]
CSCALE = 1.4426950408889634 / (128 ** 0.5)
POFF = float(E('POFF', '-43'))

CUR_NQ = [6]
OVB = 112
def Oisv(u): return u >= CUR_NQ[0] - 2
def Obase(u): return OVB + (u - (CUR_NQ[0] - 2)) * 32 if Oisv(u) else u * 32
def Or(u, off, n=4):
    b = Obase(u) + off
    return (f"v[{b}:{b+n-1}]" if Oisv(u) else f"a[{b}:{b+n-1}]")
KA = 128; VA = 192
QB = 16; SB = 176
def PF(i): return 192 + 4 * (i & 1)
def PH(i): return 200 + 4 * (i & 3)
CB = 216
KAD = 240; VAD = 244
def Lr(u): return (252, 253, 254, 255, 0, 1)[u]
EW = 2; ER = 6; QA = 8; PT = 12
DK = 96; DV = 100; OOFF = 102; CK_ = 103; CV_ = 104; BCA = 105; ORD = 106
ODAT = 96
def Q(u, s): return QB + (u * 4 + s) * 4
def vr(b, n=4): return f"v[{b}:{b+n-1}]"
def ar(b, n=4): return f"a[{b}:{b+n-1}]"
def Kf(par, f, n=4, o=0): return ar(KA + par * 32 + f * 4 + o, n)
def Vf(par, j, n=4, o=0): return ar(VA + par * 32 + j * 4 + o, n)
SQ, SK, SV, SO = 8, 12, 16, 20
S_WAVE = 24; S_HOFF = 25; S_HOFF2 = 26; S_BAD = 27; S_CNT = 28; S_T = 29
S_C = 30
S_DOFF = 32; S_DCNT = 33; S_DSLOT = 34; S_D2 = 35; S_THR = 36; S_OOB = 37
S_ROWB = 50; S_STG = 51; S_QP = 52; S_QPO = 53; S_QPL = 54; S_OST = 55; S_T2 = 56
S_TLO = 57; S_POFF = 61; S_CROW = 63
S_CW = 6; S_CG = 7

class G:
    def __init__(self): self.L = []
    def e(self, s): self.L.append("    " + s)
    def es(self, l):
        for s in l: self.e(s)
    def lab(self, s): self.L.append(s + ":")
g = G()

NSPIN = 0
def stamp(i):
    if not STAMP: return
    g.e("s_memrealtime s[38:39]" if STAMP in (3, 4) else "s_memtime s[38:39]")
    g.e("s_waitcnt lgkmcnt(0)")
    g.e(f"s_mov_b32 s{64+i}, s38")
def stamp_out():
    if not STAMP: return
    g.e("s_waitcnt vmcnt(0)")
    stamp(13)
    g.e("s_memrealtime s[38:39]")
    g.e("s_load_dwordx2 s[48:49], s[0:1], 40")
    g.e("s_waitcnt lgkmcnt(0)")
    g.e("s_mov_b32 s95, s38")
    g.e("s_lshl_b32 s3, s2, 2")
    g.e(f"s_add_u32 s3, s3, s{S_WAVE}")
    g.e("s_lshl_b32 s3, s3, 7")
    g.e("v_mov_b32 v2, s3")
    g.e("s_mov_b64 exec, 1")
    for i in list(range(24)) + [30, 31]:
        g.e(f"v_mov_b32 v3, s{64+i}")
        g.e(f"global_store_dword v2, v3, s[48:49] offset:{i*4}")

def mfma(d, a, b, c): return f"v_mfma_f32_16x16x32_bf16 {d}, {a}, {b}, {c}"
def qk_mfmas(u, par, sbuf):
    M = []
    for kt in range(2):
        so = [3, 2, 1, 0] if kt == 1 else [0, 1, 2, 3]
        for s in so:
            d = vr(SB + sbuf * 8 + kt * 4)
            M.append(mfma(d, Kf(par, kt * 4 + s), vr(Q(u, s)), vr(CB + u * 4) if s == so[0] else d))
    return M
def pv1(u, par, p, first, js=range(8)):
    return [mfma(Or(u, 4 * j), Vf(par, j), vr(p), "0" if first else Or(u, 4 * j)) for j in js]
def pv2(u, par, pnew, pold, first, js):
    M = []
    for j in js:
        ops = [(par ^ 1, pold), (par, pnew)]
        if j & 1: ops.reverse()
        for i, (s_, p) in enumerate(ops):
            M.append(mfma(Or(u, 4 * j), Vf(s_, j), vr(p), "0" if (first and i == 0) else Or(u, 4 * j)))
    return M
def sm_units(u, sbuf, p, first):
    s = SB + sbuf * 8; l = Lr(u)
    Ex = lambda i: f"v_exp_f32 v{s+i}, v{s+i}"
    A = lambda i: f"v_mov_b32 v{l}, v{s}" if (first and i == 0) else f"v_add_f32 v{l}, v{l}, v{s+i}"
    C = lambda i: f"v_cvt_pk_bf16_f32 v{p+i}, v{s+2*i}, v{s+2*i+1}"
    return [[Ex(0)], [Ex(1)], [Ex(2)], [A(0), A(1)], [Ex(3)], [C(0), A(2)], [Ex(4)], [A(3), C(1)],
            [Ex(5)], [Ex(6)], [A(4), A(5)], [Ex(7)], [C(2), A(6)], [A(7), C(3)]]
def k_reads(slot, par):
    return [f"ds_read_b128 {Kf(par, kt*4+s)}, v{KAD+s} offset:{slot*TILE+kt*4096}" for kt in range(2) for s in range(4)]
def v_reads(slot, par):
    return [f"ds_read_b64_tr_b16 {Vf(par, j, 2, 2*h)}, v{VAD+j} offset:{slot*TILE+h*4096}" for j in range(8) for h in range(2)]
def q_reads(u):
    return [f"ds_read_b128 {vr(Q(u,s))}, v{QA+s} offset:{u*4096}" for s in range(4)]

class Step:
    def __init__(self, n, qk, sm, pv, free=(0, 2)):
        self.M = (qk_mfmas(qk[1], qk[0], n & 1) if qk else []) + list(pv)
        k = len(self.M)
        self.n = n
        self.salu = [[] for _ in range(k)]; self.mem = [[] for _ in range(k)]; self.valu = [[] for _ in range(k)]
        self.pre = []; self.post = []
        if sm:
            U = sm_units(sm[0], (n - 1) & 1, sm[1], sm[2])
            if k >= 16:
                gaps = [x for x in range(16) if x not in free]
                for p, x in zip(gaps, U): self.valu[p] = list(x)
            else:
                for i, x in enumerate(U): self.valu[(i + 2) * k // 16] += x
        if not qk: self.pre.append("s_nop 1")
        if not pv: self.post.append("s_nop 7")
    def prepend(self, ms):
        k = len(ms)
        self.M = list(ms) + self.M
        self.salu = [[] for _ in range(k)] + self.salu; self.mem = [[] for _ in range(k)] + self.mem; self.valu = [[] for _ in range(k)] + self.valu
    def append(self, ms):
        self.M += list(ms)
        for _ in ms: self.salu.append([]); self.mem.append([]); self.valu.append([])
    def add_mem(self, ops, pos):
        assert len(ops) == len(pos), (len(ops), len(pos))
        for o, p in zip(ops, pos): self.mem[p].append(o)
    def repack(self, lr=None, bit=None, neg=None, neg_from=0):
        cost = lambda x: 2 if x.startswith(("v_exp", "v_rcp")) else 1
        sm = [x for v in self.valu for x in v]
        k = len(self.M)
        self.valu = [[] for _ in range(k)]
        lr = [list(x) for x in (lr or [])]; neg = list(neg or [])
        memc = [sum(3 if x.startswith("buffer") else 1 for x in m) for m in self.mem]
        total = sum(map(cost, sm)) + sum(cost(x) for G_ in lr for x in G_) + len(neg) + sum(memc)
        used = 0; last_lr = -2; vc_gap = None
        for i in range(k):
            used += memc[i]
            target = max(2 * (i + 1), total * (i + 1) / k) if total > 2 * k else None
            room = lambda: (target - used) if target is not None else (2 - memc[i] - sum(map(cost, self.valu[i])))
            def put(xs):
                nonlocal used
                self.valu[i] += xs; used += sum(map(cost, xs))
            must_lr = lr and i - last_lr >= 2 and (k - 5 - i) // 2 < len(lr)
            if lr and i - last_lr >= 2 and (must_lr or room() >= min(2, sum(map(cost, lr[0])))):
                G_ = lr.pop(0); put(G_); last_lr = i
                if not lr: vc_gap = i
            while True:
                if sm and room() >= cost(sm[0]): put([sm.pop(0)])
                elif neg and i >= neg_from and room() >= 1: put([neg.pop(0)])
                else: break
            if i == k - 2: put(neg); neg = []
        self.valu[k - 1] += sm
        assert not lr
        if bit is not None:
            for q in range(vc_gap + 2, k - 2):
                if not (self.salu[q] or self.salu[q + 1] or self.salu[q + 2]) and not any(x.startswith("s_") for x in self.mem[q]):
                    for j, x in enumerate(bad_flag(bit)): self.salu[q + j].append(x)
                    break
            else:
                self.post += ["s_nop 0"] + bad_flag(bit)
    def emit(self):
        g.es(self.pre)
        for i, m in enumerate(self.M):
            g.e(m); g.es(self.salu[i]); g.es(self.mem[i]); g.es(self.valu[i])
        g.es(self.post)

def dma_tile_ops():
    ops = []
    for which in range(2):
        srd = SK if which == 0 else SV
        for hh in range(2):
            for i in range(4):
                pre = f"s_add_u32 m0, s{S_DSLOT}, {(VBASE if which else 0) + hh * 4096}" if i == 0 else None
                so = S_DOFF if hh == 0 else S_D2
                va = DK + i if which == 0 else DV + (i & 1)
                ops.append((pre, f"buffer_load_dwordx4 v{va}, s[{srd}:{srd+3}], s{so} offen offset:{i*1024}{NT_KV} lds"))
    return ops
def dma_advance():
    return [f"s_add_u32 s{S_DCNT}, s{S_DCNT}, 1", f"s_add_u32 s{S_DOFF}, s{S_DOFF}, {TILE}",
            f"s_cmp_eq_u32 s{S_DCNT}, 23", f"s_cselect_b32 s{S_DOFF}, s{S_HOFF2}, s{S_DOFF}",
            f"s_cmp_eq_u32 s{S_DCNT}, 46", f"s_cselect_b32 s{S_DOFF}, s{S_OOB}, s{S_DOFF}",
            f"s_add_u32 s{S_D2}, s{S_DOFF}, 4096", f"s_add_u32 s{S_DSLOT}, s{S_DSLOT}, {TILE}",
            f"s_and_b32 s{S_DSLOT}, s{S_DSLOT}, {R*TILE-1}"]
def emit_dma_tile_plain():
    for pre, d in dma_tile_ops():
        if pre: g.e(pre); g.e("s_nop 0")
        g.e(d)
    g.es(dma_advance())
def place_dma(slots):
    prev = None
    for (st, p), (pre, d) in zip(slots, dma_tile_ops()):
        if pre:
            if p > 0 and prev != (st, p - 1) and prev != (st, p): st.salu[p - 1].append(pre)
            else: st.mem[p] += [pre, "s_nop 0"]
        st.mem[p].append(d)
        prev = (st, p)
def q_dma_groups():
    G_ = [[f"buffer_load_dwordx4 v{DK+i}, s[{SQ}:{SQ+3}], s{S_QPO} offen offset:{i*1024}{NT_Q} lds"] for i in range(4)]
    G_[0] = [f"s_mov_b32 m0, s{S_QPL}", f"s_add_u32 s{S_QPL}, s{S_QPL}, 4096"] + G_[0]
    G_[3] = G_[3] + [f"s_add_u32 s{S_QPO}, s{S_QPO}, 4096"]
    return G_
def coop_groups(which, t):
    srd = SK if which == 0 else SV
    G_ = []
    for hh in range(2):
        off = t * TILE + hh * 4096
        G_.append([f"s_add_u32 m0, s{S_CW}, {off + (VBASE if which else 0)}", f"s_add_u32 s{S_T}, s{S_CG}, {off}",
                   f"buffer_load_dwordx4 v{CV_ if which else CK_}, s[{srd}:{srd+3}], s{S_T} offen{NT_KV} lds"])
    return G_
def emit_q_dma():
    for x in q_dma_groups(): g.es(x)
def emit_coop(which, t):
    for x in coop_groups(which, t): g.es(x)
def qpf_group():
    pre = [f"s_cmp_lt_u32 s{S_QPL}, {STAGE}", f"s_cselect_b32 s{S_QP}, s{S_OOB}, s{S_QPO}", f"s_cselect_b32 m0, {STAGE + 23*4096}, s{S_QPL}"]
    ld = [f"buffer_load_dwordx4 v{DK+i}, s[{SQ}:{SQ+3}], s{S_QP} offen offset:{i*1024}{NT_Q} lds" for i in range(4)]
    post = [f"s_add_u32 s{S_QPO}, s{S_QPO}, 4096", f"s_add_u32 s{S_QPL}, s{S_QPL}, 4096"]
    return pre, ld, post

def ps_ops(u, blk):
    q = Q(u, 0); nb = len(blk)
    H = lambda i: f"v_mfma_f32_4x4x4_16b_bf16 {vr(blk[i%nb])}, v[{PT}:{PT+1}], v[{q+2*i}:{q+2*i+1}], 0"
    Lo = lambda i: f"v_mfma_f32_4x4x4_16b_bf16 {vr(blk[i%nb])}, v[{PT+2}:{PT+3}], v[{q+2*i}:{q+2*i+1}], {vr(blk[i%nb])}"
    C = lambda i, h: f"v_cvt_pk_bf16_f32 v{q+2*i+h}, v{blk[i%nb]+2*h}, v{blk[i%nb]+2*h+1}"
    return H, Lo, C
def prescale(u, blk):
    H, Lo, C = ps_ops(u, blk)
    seq = [("H", 0)]
    for i in range(0, 10):
        if i + 1 < 8: seq.append(("H", i + 1))
        if 0 <= i - 2 < 8: seq.append(("C0", i - 2))
        if i < 8: seq.append(("L", i))
        if 0 <= i - 2 < 8: seq.append(("C1", i - 2))
    L = []; pos = {}; cur = 0
    for kind, i in seq:
        need = 0
        if kind == "L": need = pos[("H", i)] + 1 + 2
        if kind[0] == "C": need = pos[("L", i)] + 1 + 5
        if cur < need:
            L.append(f"s_nop {need - cur - 1}"); cur = need
        L.append(H(i) if kind == "H" else Lo(i) if kind == "L" else C(i, int(kind[1])))
        pos[(kind, i)] = cur; cur += 1
    return L
def bc_reads(slot, ub, areg):
    return [f"ds_read_b128 {Or(ub, 16+4*s_)}, v{areg} offset:{slot*TILE+s_*64}" for s_ in range(4)]
def prepass_mfma(u, ub):
    d = vr(CB + u * 4)
    return [mfma(d, Or(ub, 16 + 4 * s_), vr(Q(u, s_)), "0" if s_ == 0 else d) for s_ in range(4)]
def prepass_neg(u):
    c = CB + u * 4
    return [f"v_sub_f32 v{c+k}, s{S_POFF}, v{c+k}" for k in range(4)]
def l_reduce(u):
    l = Lr(u); t = CB + 4 * u
    return [[f"v_mov_b32 v{t}, v{l}"],
            [f"v_permlane16_swap_b32 v{l}, v{t}"],
            [f"v_add_f32 v{l}, v{l}, v{t}", f"v_mov_b32 v{t}, v{l}"],
            [f"v_permlane32_swap_b32 v{l}, v{t}"],
            [f"v_add_f32 v{l}, v{l}, v{t}", f"v_subrev_u32 v{t}, s{S_TLO}, v{l}"],
            [f"v_cmp_le_u32 vcc, s{S_THR}, v{t}", f"v_rcp_f32 v{l}, v{l}"]]
def bad_flag(bit):
    return ["s_cmp_lg_u64 vcc, 0", f"s_cselect_b32 s{S_T2}, {1<<bit}, 0", f"s_or_b32 s{S_BAD}, s{S_BAD}, s{S_T2}"]
def add_lreduce(st, u, bit, pos=None):
    Gs = l_reduce(u); k = len(st.M)
    if k >= 16:
        pos = pos or (0, 2, 4, 6, 8, 10)
        for gi, p in zip(Gs, pos): st.valu[p] = st.valu[p] + gi
    else:
        for i, gi in enumerate(Gs): st.valu[i] = st.valu[i] + (["s_nop 1"] if i in (1, 3) else []) + gi
        st.post += ["s_nop 1"]
    st.post += bad_flag(bit)
def pkmul(r, u):
    l = Lr(u); b = l & 1; lp = l - b
    return f"v_pk_mul_f32 v[{r}:{r+1}], v[{r}:{r+1}], v[{lp}:{lp+1}] op_sel:[0,{b}] op_sel_hi:[1,{b}]"
def epilogue_parts(u, t, packs):
    def wr(j, r): return f"ds_write_b64 v{EW+(j&3)}, v[{r}:{r+1}] offset:{u*4096+(j>>2)*128}"
    Gs = []
    if Oisv(u):
        b = Obase(u)
        Gs = [[], [pkmul(b + k, u) for k in range(0, 32, 2)],
              [f"v_cvt_pk_bf16_f32 v{b+k}, v{b+2*k}, v{b+2*k+1}" for k in range(16)], [wr(j, b + 2 * j) for j in range(8)]]
        rb = [f"ds_read_b128 {Or(u, 16+4*i)}, v{ER+(i&1)} offset:{u*4096+i*1024}" for i in range(4)]
        return Gs, rb
    for jp in range(4):
        p = packs[jp % len(packs)]
        Gs.append([[f"v_accvgpr_read_b32 v{t+k}, a{Obase(u)+8*jp+k}" for k in range(8)],
                   [pkmul(t + k, u) for k in range(0, 8, 2)],
                   [f"v_cvt_pk_bf16_f32 v{p+k}, v{t+2*k}, v{t+2*k+1}" for k in range(4)],
                   [wr(2 * jp, p), wr(2 * jp + 1, p + 2)]])
    rb = [f"ds_read_b128 {Or(u, 4*i)}, v{ER+(i&1)} offset:{u*4096+i*1024}" for i in range(4)]
    return Gs, rb
def merged_block(u, sdead, pdead, mid=None):
    out = []
    if not Oisv(u):
        Gs, rb = epilogue_parts(u, sdead, [pdead[0], CB + 4 * u])
        H, Lo, C = ps_ops(u, [pdead[1], pdead[2]])
        if mid: Gs = Gs[2:] + Gs[:2]
        pend = []
        for gi in range(4):
            r, m, c, w = Gs[gi]
            a, b = 2 * gi, 2 * gi + 1
            mm = mid if (mid and gi == 2) else []
            out += [H(a)] + pend[:1] + [r[0], H(b)] + pend[1:2] + [r[1], Lo(a)] + mm[:2] + [r[2], Lo(b)] + mm[2:] + r[3:] + m + c
            if gi == 3: out += w
            out += [C(a, 0), C(a, 1), C(b, 0), C(b, 1)]
            pend = w
    else:
        (_, m, c, w), rb = epilogue_parts(u, None, None)
        H, Lo, C = ps_ops(u, [sdead, sdead + 4, pdead[0], CB + 4 * u])
        out += m
        x = [H(0), H(1), Lo(0), H(2), Lo(1), H(3), Lo(2), Lo(3)]
        for i in range(8): out += [x[i]] + ([w[i // 2 - 1]] if i in (2, 4, 6) else []) + [c[2 * i], c[2 * i + 1]]
        cs = [C(i, h) for i in range(4) for h in range(2)]
        out += cs[0:2] + [H(4), w[3]] + cs[2:4] + [H(5), w[4]] + cs[4:5] + [Lo(4), w[5]] + cs[5:6] + [H(6), w[6]] + cs[6:7] + [Lo(5), w[7]] + cs[7:8] + [H(7), Lo(6), C(4, 0), Lo(7), C(4, 1)]
        out += [C(5, 0), C(5, 1), "s_nop 0", C(6, 0), C(6, 1), C(7, 0), C(7, 1)]
    return out, rb
def o_stores(u, areg, sreg=S_OST):
    o = 16 if Oisv(u) else 0
    return [f"buffer_store_dwordx4 {Or(u, o+4*i)}, v{areg}, s[{SO}:{SO+3}], s{sreg} offen offset:{i*1024}{NT_O}" for i in range(4)]

def order_of(t, NQ):
    o = list(range(NQ))
    if t & 1:
        for i in range(0, NQ - 1, 2): o[i], o[i + 1] = o[i + 1], o[i]
    return o
def p_of(t, pos, NQ):
    if pos & 1: return PH((NQ // 2) * t + (pos >> 1))
    return PF(3 * t + (pos >> 1))
def ngroups(t, extra): return 2 if (t % 4 == 2 and extra == "Q") else 1
def make_body(NQ, t, dma, extra=None, mode=None):
    par = t & 1
    o0 = order_of(t, NQ); o1 = order_of(t + 1, NQ)
    S = []
    for k in range(NQ):
        n = NQ * t + 2 + k
        qk = (par, o0[k + 2]) if k + 2 < NQ else (par ^ 1, o1[k + 2 - NQ])
        if k + 1 < NQ: sm = (o0[k + 1], p_of(t, k + 1, NQ), mode == "new0")
        else: sm = (o1[0], p_of(t + 1, 0, NQ), mode == "end")
        pos = k & ~1; u = o0[pos]
        if pos + 1 < NQ:
            js = range(4 * (k & 1), 4 * (k & 1) + 4)
            if mode == "new0": pv = pv1(u, par, p_of(t, pos, NQ), True, js)
            else: pv = pv2(u, par, p_of(t, pos, NQ), p_of(t - 1, pos + 1, NQ), mode == "new1", js)
        else:
            pv = pv1(u, par, p_of(t, pos, NQ), mode == "new0")
        S.append(Step(n, qk, sm, pv, free=(12, 14) if (NQ == 6 and k == 4) else (0, 2)))
    vc = v_reads(t % R, par); vn = v_reads((t + 1) % R, par ^ 1); kn = k_reads((t + 1) % R, par ^ 1)
    short = mode == "new0"
    if NQ == 6:
        S[0].add_mem(vc[8:12], [0, 0, 2, 2]); S[1].add_mem(vc[12:16], [0, 0, 2, 2] if not short else [0, 0, 1, 1])
        S[2].add_mem(kn[:4], [0, 0, 2, 2]); S[3].add_mem(kn[4:], [0, 0, 2, 2])
        S[4].add_mem(vn[0:4], [12, 12, 14, 14] if not short else [0, 0, 2, 2]); S[5].add_mem(vn[4:8], [0, 0, 2, 2])
        S[0].salu[7].append("s_waitcnt lgkmcnt(4)")
        S[1].salu[7].append("s_waitcnt lgkmcnt(4)")
        if short: S[1].salu[9].append("s_waitcnt lgkmcnt(0)")
        else:
            S[1].salu[12].append("s_waitcnt lgkmcnt(2)")
            S[1].salu[13].append("s_waitcnt lgkmcnt(0)")
        S[2].salu[0].append("s_barrier")
        S[3].salu[-1].append("s_waitcnt lgkmcnt(0)")
    else:
        S[0].add_mem(vc[12:16], [0, 0, 2, 2])
        S[1].add_mem(kn[:4], [0, 0, 2, 2]); S[2].add_mem(kn[4:], [0, 0, 2, 2])
        S[3].add_mem(vn[0:6], [0, 0, 2, 2, 5, 9]); S[4].add_mem(vn[6:12], [0, 0, 2, 2, 5, 9])
        S[0].salu[7].append("s_waitcnt lgkmcnt(4)")
        nx = 4 * sum(ngroups(t - d, extra) for d in (1, 2, 3)) if extra else 0
        S[0].salu[-1].append(f"s_waitcnt vmcnt({32 + nx}) lgkmcnt(0)")
        S[1].salu[0].append("s_barrier")
        S[2].salu[-1].append("s_waitcnt lgkmcnt(0)")
        if short: sl = [(S[1], p) for p in (3, 4, 5, 6, 8, 9, 10, 11)] + [(S[2], p) for p in (3, 4, 5, 6, 8, 9, 10, 11)]
        else: sl = [(S[1], p) for p in (3, 4, 6, 7, 9, 10, 12, 13, 15)] + [(S[2], p) for p in (3, 4, 6, 8, 9, 10, 12)]
        place_dma(sl)
        for q, a in enumerate(dma_advance()): S[3].salu[1 + q].append(a)
        if extra == "Q":
            for gi in range(ngroups(t, extra)):
                pre, ld, post = qpf_group()
                if gi == 0:
                    st = S[4]
                    for q, x in enumerate(pre): st.salu[q].append(x)
                    st.add_mem(ld, [3, 4, 6, 7])
                    for q, x in enumerate(post): st.salu[3 + q].append(x)
                else:
                    for q, x in enumerate(pre): st.salu[8 + q].append(x)
                    st.add_mem(ld, [11, 12, 13, 14])
                    for q, x in enumerate(post): st.salu[11 + q].append(x)
        if extra == "O":
            rd = [f"ds_read_b128 {ar(ODAT+4*i)}, v{ORD+(i&1)} offset:{(t % 4)*4096 + i*1024}" for i in range(4)]
            S[1].add_mem(rd, [5, 8, 11, 14])
            so = [f"buffer_store_dwordx4 {ar(ODAT+4*i)}, v{OOFF}, s[{SO}:{SO+3}], s{S_QPO} offen offset:{i*1024}{NT_O}" for i in range(4)]
            S[3].add_mem(so[:2], [7, 12]); S[4].add_mem(so[2:], [3, 7])
            for q, x in enumerate([f"s_add_u32 s{S_QPO}, s{S_QPO}, 4096", f"s_sub_u32 s{S_QP}, s{S_QP}, 1",
                                   f"s_cmp_le_i32 s{S_QP}, 0", f"s_cselect_b32 s{S_QPO}, s{S_OOB}, s{S_QPO}"]): S[4].salu[8 + q].append(x)
            if t % 4 == 3:
                S[3].valu[4].append(f"v_add_u32 v{ORD}, 16384, v{ORD}")
                S[3].valu[10].append(f"v_add_u32 v{ORD+1}, 16384, v{ORD+1}")
    return S

def resolve_waits(f0):
    for i in range(f0, len(g.L)):
        w = g.L[i].split()
        if w and w[0] in ("WAITL", "WAITV"):
            t = w[1]
            j = max(k for k in range(f0, i) if g.L[k].endswith("@" + t))
            pre = ("ds_",) if w[0] == "WAITL" else ("buffer_", "global_")
            n = sum(1 for k in range(j + 1, i) if g.L[k].strip().startswith(pre))
            g.L[i] = f"    s_waitcnt lgkmcnt({min(n, 15)})" if w[0] == "WAITL" else f"    s_waitcnt vmcnt({min(n, 63)})"
def tag(ops, t): return [f"{o} ; @{t}" for o in ops]

def emit_variant(NQ, dma, name):
    g.lab(f"L_start_{name}")
    CUR_NQ[0] = NQ
    order = ["Q0"] * 4 + ["K0"] * 2 + ["K1"] * 2 + ["Q1"] * 4 + ["V0"] * 2 + ["V1"] * 2
    def groups(nm):
        if nm[0] == "Q":
            order.extend([nm] * 4); return q_dma_groups()
        order.extend([nm] * 2); return coop_groups(0 if nm[0] == "K" else 1, int(nm[1]))
    def issue(nm):
        if nm[0] == "T":
            emit_dma_tile_plain(); order.extend([nm] * 16)
        else:
            for x in groups(nm): g.es(x)
    def wstr(nm):
        a = len(order) - 1 - max(i for i, x in enumerate(order) if x == nm)
        return f"s_waitcnt vmcnt({min(63, a)})"
    if dma:
        g.e(f"s_add_u32 s{S_DOFF}, s{S_HOFF}, {4*TILE}")
        g.e(f"s_add_u32 s{S_D2}, s{S_DOFF}, 4096")
        g.e(f"s_mov_b32 s{S_DCNT}, 4")
        g.e(f"s_mov_b32 s{S_DSLOT}, 0")
        g.e(f"s_mov_b32 s{S_OOB}, 0x10000000")
    stamp(1)
    topup = {1: ["Q4"], 3: ["K2", "K3"], 4: ["V2", "V3"]} if dma else {1: ["Q4"], 2: ["Q5"], 3: ["K2", "K3"], 4: ["V2", "V3"]}
    UB = NQ - 1
    def ps_blk(u, n):
        sb = SB + ((n - 1) & 1) * 8
        return [sb, sb + 4, PF(n), CB + 4 * u]
    g.e(wstr("Q0"))
    stamp(16)
    g.es(q_reads(0))
    issue("Q2")
    g.e("s_waitcnt lgkmcnt(0)")
    g.es(prescale(0, ps_blk(0, 0)))
    g.e(wstr("K1"))
    g.e("s_barrier")
    stamp(2)
    g.es(bc_reads(0, UB, BCA))
    g.es(k_reads(0, 0))
    issue("Q3")
    g.e("s_waitcnt lgkmcnt(8)")
    pm = prepass_mfma(0, UB); kr = k_reads(1, 1)
    for i in range(4): g.e(pm[i]); g.es(kr[2 * i:2 * i + 2])
    g.e("s_nop 5")
    g.es(prepass_neg(0))
    g.e("s_waitcnt lgkmcnt(8)")
    g.e("s_nop 0")
    def deferred(m): return (m & 1) and (m >> 1) % 2 == 0 and (m >> 1) + 1 < NQ
    def pdst(m): return p_of(1, (m >> 1) + 1, NQ) if deferred(m) else PF(m)
    def mkstep(n, qk=None):
        sm = ((n - 1) >> 1, pdst(n - 1), (n - 1) & 1 == 0) if n >= 1 else None
        pv = pv1((n - 2) >> 1, n & 1, PF(n), n & 1 == 0) if (n >= 2 and not deferred(n - 2)) else []
        return Step(n, qk or (n & 1, n >> 1), sm, pv)
    for u in range(NQ):
        if dma and u == NQ - 1: issue("T4")
        st = mkstep(2 * u)
        k = len(st.M)
        if u == 1: st.salu[7].append("s_waitcnt lgkmcnt(0)")
        if u < NQ - 1:
            st.salu[k - 5].append(wstr(f"Q{u+1}"))
            st.add_mem(q_reads(u + 1), [k - 5, k - 5, k - 3, k - 3])
            if u == 0: st.post = []
        else:
            kr = k_reads(2, 0)
            st.salu[7].append(wstr("K3"))
            st.salu[8].append("s_barrier")
            st.add_mem(kr[:4], [8, 10, 11, 13])
        st.emit()
        if u == 1: g.e("s_barrier")
        st = mkstep(2 * u + 1)
        if u < NQ - 1:
            stamp(17 + u)
            g.e("s_waitcnt lgkmcnt(0)")
            g.es(prescale(u + 1, ps_blk(u + 1, 2 * u)))
            if u == 0:
                g.e(wstr("V1"))
                g.e("s_barrier")
                stamp(3)
            st.prepend(prepass_mfma(u + 1, UB))
            gs = []
            for x in topup.get(u + 1, []): gs += groups(x)
            for i, gi in enumerate(gs): st.mem[i] += gi
            k = len(st.M)
            for x, p in zip(prepass_neg(u + 1), (k - 5, k - 4, k - 3, k - 2)): st.valu[p] = st.valu[p] + [x]
            if u == 0:
                vv = v_reads(0, 0) + v_reads(1, 1)
                st.add_mem(vv, [i * k // 32 for i in range(32)])
        else:
            st.add_mem(kr[4:], [0, 0, 1, 1])
            st.post.append("s_waitcnt lgkmcnt(0)")
        st.emit()
    n = 2 * NQ
    st = mkstep(n, (0, 0))
    st.salu[15].append(wstr("V3"))
    st.emit()
    st = Step(n + 1, (0, 1), (0, p_of(2, 0, NQ), False), pv1(NQ - 1, 1, PF(n + 1), False))
    assert p_of(2, 0, NQ) == PF(n)
    st.salu[0].append("s_barrier")
    nv = 8 if NQ == 6 else 12
    st.add_mem(v_reads(2, 0)[:nv], [0, 0, 2, 2, 4, 6, 8, 10, 11, 12, 13, 14][:nv])
    st.emit()
    if dma:
        emit_dma_tile_plain()
        g.e(f"s_add_u32 s{S_QPO}, s{S_HOFF2}, s{S_CROW}")
        g.e(f"s_sub_u32 s{S_QPO}, s{S_QPO}, {4*4096}")
        g.e(f"s_mov_b32 s{S_QPL}, {STAGE - 4*4096}")
        for _ in range(2):
            pre, ld, post = qpf_group()
            g.es(pre + ["s_nop 0"] + ld + post)
    g.e(f"s_mov_b32 s{S_CNT}, 0")
    stamp(4)
    def emit_loop(ln, extra, chk_final, chk_trans):
        rot = not dma
        m_first = make_body(NQ, 2, dma, extra)[0].M[0]
        if rot: g.e(m_first)
        g.L.append(".p2align 6")
        g.lab(f"L_{ln}_{name}")
        for ph in (2, 3, 0, 1):
            if ph == 1: g.lab(f"L_{ln}1_{name}")
            S = make_body(NQ, ph + 4, dma, extra)
            if rot and ph == 2: S[0].M[0] = "; (first MFMA issued before the branch)"
            if ph == 3 and chk_final:
                S[NQ - 3].salu[14].append(f"s_cmp_eq_u32 s{S_CNT}, 10")
                S[NQ - 3].post.append(f"s_cbranch_scc1 L_final_{name}")
            if ph == 1:
                S[-1].salu[13].append(f"s_add_u32 s{S_CNT}, s{S_CNT}, 1")
                if chk_trans: S[-1].salu[15].append(f"s_cmp_lt_u32 s{S_CNT}, 4" if dma else f"s_cmp_lg_u32 s{S_CNT}, 5")
            for st in S: st.emit()
        if rot: g.e(m_first)
        if chk_trans:
            g.e(f"s_cbranch_scc1 L_{ln}_{name}")
            if dma:
                g.e(f"s_cmp_eq_u32 s{S_CNT}, 5")
                g.e(f"s_cbranch_scc1 L_trans_{name}")
                g.e(f"v_lshlrev_b32 v{CK_}, 3, v{OOFF}")
                for lab in ("L_trans_w0", "L_trans_w3", "L_trans_w0+8192", "L_trans_w3+8192", "L_trans_w0+16384", "L_trans_w3+16384"):
                    g.e(f"v_add_u32 v{CV_}, {lab}-L_pc0, v{CK_}")
                    g.e(f"global_load_dword v108, v{CV_}, s[58:59]")
                g.e(f"s_branch L_{ln}_{name}")
        else:
            g.e(f"s_branch L_{ln}_{name}")
    emit_loop("loop", "Q" if dma else None, not dma, True)
    g.lab(f"L_trans_{name}")
    stamp(5)
    f0 = len(g.L)
    S = make_body(NQ, 22, dma, None, "end")
    if not dma: S[0].M[0] = "; (first MFMA issued before the branch)"
    S23 = make_body(NQ, 23, dma, None, "new0")
    queue = []; pend_st = []
    def lead(st, us):
        ms = []
        for u in us: ms += prepass_mfma(u, 0)
        st.prepend(ms)
        return len(ms), [x for u in us for x in prepass_neg(u)]
    if dma: g.e(f"s_add_u32 s{S_OST}, s{S_HOFF}, s{S_ROWB}")
    else:
        S[2].salu[0].remove("s_barrier")
        S[1].salu[14].append("s_barrier")
    bca = BCA if dma else CB + 9
    for k, st in enumerate(S):
        if k & 1: st.append(pv1(k, 0, p_of(22, k, NQ), False))
        off = 0; neg = []
        if queue:
            if k == 2: st.pre.append("WAITL bc")
            off, neg = lead(st, queue); queue = []
        if dma and k == 0: st.pre.append("s_waitcnt vmcnt(60)")
        if dma and k == 3: st.pre.append("s_waitcnt vmcnt(40)")
        if dma and k == 4: st.pre.append("s_waitcnt vmcnt(24)")
        st.add_mem(tag(q_reads(k), f"q{k}"), [1, 1, 3, 3] if off else ([17, 17, 19, 19] if k & 1 else [8, 8, 10, 10]))
        kk = len(st.M)
        if pend_st:
            st.salu[4].append(f"WAITL rb{k-1}")
            st.add_mem(pend_st, [4, 5, 6, 7, kk - 3, kk - 2, kk - 1, kk - 1])
        pend_st = []
        st.repack(l_reduce(k), k, neg, off + 3)
        if k == 1 and not dma:
            st.valu[21] += [f"v_bfe_u32 v{bca}, v{ER}, 8, 2"]
            st.valu[22] += [f"v_lshlrev_b32 v{bca}, 4, v{bca}"]
        st.emit()
        us = [k - 1, k] if (k & 1) else ([k] if k == NQ - 1 else [])
        for u in us:
            g.e(f"WAITL q{u}")
            sdead = SB + ((st.n - 1) & 1) * 8
            if k & 1: pdead = [p_of(22, k - 1, NQ), p_of(21, k, NQ), p_of(22, k, NQ)]
            else: pdead = [p_of(22, k, NQ)]
            L, rb = merged_block(u, sdead, pdead, tag(bc_reads(23 % R, 0, bca), "bc") if u == 0 else None)
            g.es(L)
            if dma:
                g.es(tag(rb, f"rb{u}"))
                g.e(f"s_add_u32 s{88 + (u & 1)}, s{S_OST}, {u*4096}")
                pend_st += o_stores(u, OOFF, 88 + (u & 1))
            queue.insert(0, u)
    stamp(6)
    st = S23[0]
    off, neg = lead(st, queue)
    if dma:
        kk = len(st.M)
        st.salu[kk - 8].append(f"WAITL rb{NQ-1}")
        st.add_mem(pend_st, [kk - 8, kk - 7, kk - 4, kk - 3])
    st.repack(None, None, neg, off + 3)
    if dma:
        st.salu[0].append(f"s_add_u32 s{S_QPO}, s{S_HOFF}, s{S_CROW}")
        st.salu[1].append(f"s_mov_b32 s{S_QP}, 18")
        st.salu[2].append(f"s_add_u32 s{S_OST}, s{S_HOFF2}, s{S_ROWB}")
        st.valu[0].append(f"v_add_u32 v{ORD}, {STAGE}, v{DK}")
        st.valu[1].append(f"v_add_u32 v{ORD+1}, {STAGE}, v{DK+1}")
        S23[4].add_mem([f"buffer_store_dwordx4 {ar(ODAT)}, v{OOFF}, s[{SO}:{SO+3}], s{S_OOB} offen"] * 4, [3, 7, 11, 13])
    for st in S23: st.emit()
    S24 = make_body(NQ, 24, dma, "O" if dma else None, "new1")
    for st in S24: st.emit()
    resolve_waits(f0)
    stamp(10)
    if dma:
        g.e(f"s_branch L_loopb1_{name}")
        emit_loop("loopb", "O", True, False)
    else:
        g.e(f"s_branch L_loop1_{name}")
    g.lab(f"L_final_{name}")
    stamp(11)
    f0 = len(g.L)
    if dma: g.e("s_waitcnt vmcnt(32)")
    o43 = order_of(43, NQ)
    FO = OOFF if dma else PH(0)
    B43 = make_body(NQ, 43, dma, None)
    F = []
    fo = list(range(NQ))
    if "vfirst" in X: fo = fo[-2:] + fo[:-2]
    if "vsplit" in X: fo = fo[-1:] + fo[:-1]
    for m in range(2 * NQ + 2):
        n = NQ * 44 + m
        qk = (m & 1, fo[m >> 1]) if m < 2 * NQ else None
        if m == 0: sm = (o43[NQ - 1], p_of(43, NQ - 1, NQ), False)
        else: sm = (fo[(m - 1) >> 1], PF(m - 1), False) if m - 1 < 2 * NQ else None
        if m < 2: pv = B43[NQ - 2 + m].M[8:]
        else: pv = pv1(fo[(m - 2) >> 1], m & 1, PF(m), False)
        F.append(Step(n, qk, sm, pv))
    singles = [pv1(o43[p], 1, p_of(43, p, NQ), False) for p in range(1, NQ, 2)]
    F[0].append(singles[0] + (singles[1] if NQ == 6 else []))
    F[1].append(singles[-1])
    F[0].salu[0].append("s_barrier")
    F[0].add_mem(tag(k_reads(45 % R, 1), "k45"), [0, 0, 2, 2, 16, 16, 17, 17])
    F[0].salu[-1].append("WAITL k45")
    v44 = tag(v_reads(44 % R, 0), "v44"); v45 = tag(v_reads(45 % R, 1), "v45")
    if NQ == 6:
        F[0].add_mem(v44[:8], [18, 18, 19, 19, 20, 20, 21, 21])
        F[1].add_mem(v44[8:], [16, 16, 17, 17, 18, 18, 19, 19])
    else:
        F[0].add_mem(v44[:8], [18, 18, 19, 19, 20, 20, 21, 21])
        F[1].add_mem(v44[8:], [0, 0, 2, 2, 16, 16, 17, 17])
    F[1].add_mem(v45[:6], [20, 21, 22, 22, 23, 23])
    F[2].add_mem(v45[6:], [0, 0, 1, 2, 2, 3, 4, 6, 8, 10])
    F[2].salu[7].append("WAITL v44")
    F[3].salu[7].append("WAITL v45")
    if not dma:
        F[2].valu[11] += [f"v_mbcnt_lo_u32_b32 v{FO}, -1, 0"]
        F[2].valu[12] += [f"v_mbcnt_hi_u32_b32 v{FO}, -1, v{FO}"]
        F[2].valu[13] += [f"v_lshlrev_b32 v{FO}, 4, v{FO}"]
    for i, u in enumerate(fo): F[0].salu[2 + i].append(f"s_add_u32 s{88+u}, s{S_OST}, {u*4096}")
    for m, st in enumerate(F):
        if m < 2: st.repack()
        if m >= 3 and m % 2 == 1:
            u = fo[(m - 3) // 2]
            if len(st.M) == 16: st.repack(l_reduce(u), 6 + u)
            else: add_lreduce(st, u, 6 + u)
        st.emit()
        if m >= 3 and m % 2 == 1:
            q = Q(u, 0)
            Gs, rb = epilogue_parts(u, SB + ((st.n - 1) & 1) * 8, [q, q + 4, q + 8, q + 12])
            if Oisv(u): va = Gs[1] + Gs[2]; wr = Gs[3]
            else: va = [x for G_ in Gs for x in G_[0] + G_[1] + G_[2]]; wr = [x for G_ in Gs for x in G_[3]]
            g.es(va)
            so = o_stores(u, FO, 88 + u)
            if m + 1 < 2 * NQ:
                F[m + 1].add_mem(wr + rb, [0, 1, 2, 3, 4, 6, 8, 10, 12, 12, 13, 13])
                F[m + 2].salu[1].append("s_waitcnt lgkmcnt(0)")
                F[m + 2].add_mem(so, [1, 5, 9, 15])
            elif m + 1 == 2 * NQ:
                g.es(wr + rb)
                F[m + 1].salu[3].append("s_waitcnt lgkmcnt(0)")
                F[m + 1].add_mem(so, [3, 4, 5, 6])
            else:
                g.es(wr + rb)
                g.e("s_waitcnt lgkmcnt(0)")
                g.es(so)
    resolve_waits(f0)
    stamp(12)
    g.e(f"s_cmp_lg_u32 s{S_BAD}, 0")
    g.e("s_cbranch_scc1 L_slow")
    stamp_out()
    g.e("s_endpgm")

def emit_dma_offsets(lane15, lane4, t0, t1):
    g.e(f"v_lshlrev_b32 v{t1}, 8, v{lane4}")
    for i in range(4):
        g.e(f"v_add_u32 v{t0}, {4*i}, v{lane4}")
        g.e(f"v_xor_b32 v{t0}, v{t0}, v{lane15}")
        g.e(f"v_lshl_add_u32 v{DK+i}, v{t0}, 4, v{t1}")
    for i in range(2):
        g.e(f"v_lshl_add_u32 v{t0}, v{lane4}, 1, {8*i}")
        g.e(f"v_xor_b32 v{t0}, v{t0}, v{lane15}")
        g.e(f"v_lshl_add_u32 v{DV+i}, v{t0}, 4, v{t1}")

def emit_slow():
    SB_, ST_, SH_, SR_, SX_ = 60, 61, 62, 63, 58
    VT = Q(1, 0); M_ = Q(2, 0)
    o = OVB; l = Lr(0); sreg = SB; p = PF(0)
    def tile_dma(which, ldsoff):
        srd = SK if which == 0 else SV
        for hh in range(2):
            g.e(f"s_add_u32 m0, s{S_STG}, {ldsoff + hh*4096}")
            g.e(f"s_add_u32 s{SX_}, s{ST_}, {hh*4096}")
            for i in range(4):
                va = DK + i if which == 0 else DV + (i & 1)
                g.e(f"buffer_load_dwordx4 v{va}, s[{srd}:{srd+3}], s{SX_} offen offset:{i*1024} lds")
    def kreads():
        for kt in range(2):
            for s_ in range(4): g.e(f"ds_read_b128 {Kf(0, kt*4+s_)}, v{QA+s_} offset:{4096+kt*4096}")
    def qk():
        for kt in range(2):
            for s_ in range(4):
                d = vr(sreg + kt * 4)
                g.e(mfma(d, Kf(0, kt * 4 + s_), vr(Q(0, s_)), "0" if s_ == 0 else d))
        g.e("s_nop 7")
    def xlane(r, t, op):
        for sw in ("v_permlane16_swap_b32", "v_permlane32_swap_b32"):
            g.es([f"v_mov_b32 v{t}, v{r}", "s_nop 1", f"{sw} v{r}, v{t}", "s_nop 1", f"{op} v{r}, v{r}, v{t}"])
    g.lab("L_slow")
    g.e("s_waitcnt vmcnt(0) lgkmcnt(0)")
    g.e(f"v_mbcnt_lo_u32_b32 v{M_}, -1, 0")
    g.e(f"v_mbcnt_hi_u32_b32 v{M_}, -1, v{M_}")
    g.e(f"v_lshlrev_b32 v{OOFF}, 4, v{M_}")
    g.e(f"v_and_b32 v{M_+1}, 15, v{M_}")
    g.e(f"v_lshrrev_b32 v{M_+2}, 4, v{M_}")
    emit_dma_offsets(M_ + 1, M_ + 2, M_ + 3, M_ + 4)
    g.e(f"s_sub_u32 s{SX_}, s{S_STG}, {VBASE - 12288}")
    for j in range(8): g.e(f"v_add_u32 v{VT+j}, s{SX_}, v{VAD+j}")
    g.lab("L_slow_next")
    g.e("s_waitcnt vmcnt(0) lgkmcnt(0)")
    g.e(f"s_ff1_i32_b32 s{SB_}, s{S_BAD}")
    g.e(f"s_bitset0_b32 s{S_BAD}, s{SB_}")
    g.e(f"s_cmp_ge_u32 s{SB_}, 6")
    g.e(f"s_cselect_b32 s{SH_}, s{S_HOFF2}, s{S_HOFF}")
    g.e(f"s_cselect_b32 s{SX_}, 6, 0")
    g.e(f"s_sub_u32 s{SB_}, s{SB_}, s{SX_}")
    g.e(f"s_lshl_b32 s{SB_}, s{SB_}, 12")
    g.e(f"s_add_u32 s{SR_}, s{SH_}, s{S_ROWB}")
    g.e(f"s_add_u32 s{SR_}, s{SR_}, s{SB_}")
    g.e(f"s_mov_b32 m0, s{S_STG}")
    g.e("s_nop 0")
    for i in range(4):
        g.e(f"buffer_load_dwordx4 v{DK+i}, s[{SQ}:{SQ+3}], s{SR_} offen offset:{i*1024} lds")
    g.e("s_waitcnt vmcnt(0)")
    g.es(q_reads(0))
    g.e("s_waitcnt lgkmcnt(0)")
    g.es(prescale(0, [SB, SB + 4, SB + 8, SB + 12]))
    g.e(f"v_mov_b32 v{M_}, 0xff800000")
    g.e(f"s_mov_b32 s{ST_}, s{SH_}")
    g.e(f"s_add_u32 s{SB_}, s{SH_}, {HEAD_BYTES}")
    g.lab("L_slow_p1")
    tile_dma(0, 4096)
    g.e("s_waitcnt vmcnt(0)")
    kreads()
    g.e("s_waitcnt lgkmcnt(0)")
    qk()
    for i in range(0, 8, 2): g.e(f"v_max3_f32 v{M_}, v{M_}, v{sreg+i}, v{sreg+i+1}")
    g.e(f"s_add_u32 s{ST_}, s{ST_}, {TILE}")
    g.e(f"s_cmp_lt_u32 s{ST_}, s{SB_}")
    g.e("s_cbranch_scc1 L_slow_p1")
    xlane(M_, M_ + 1, "v_max_f32")
    for k in range(32): g.e(f"v_mov_b32 v{o+k}, 0")
    g.e(f"v_mov_b32 v{l}, 0")
    g.e(f"s_mov_b32 s{ST_}, s{SH_}")
    g.lab("L_slow_p2")
    tile_dma(0, 4096)
    tile_dma(1, 12288)
    g.e("s_waitcnt vmcnt(0)")
    kreads()
    g.e("s_waitcnt lgkmcnt(0)")
    for j in range(8):
        for h in range(2): g.e(f"ds_read_b64_tr_b16 {Vf(0, j, 2, 2*h)}, v{VT+j} offset:{h*4096}")
    qk()
    for i in range(8): g.e(f"v_sub_f32 v{sreg+i}, v{sreg+i}, v{M_}")
    for i in range(8): g.e(f"v_exp_f32 v{sreg+i}, v{sreg+i}")
    g.e("s_nop 0")
    for i in range(8): g.e(f"v_add_f32 v{l}, v{l}, v{sreg+i}")
    for i in range(4): g.e(f"v_cvt_pk_bf16_f32 v{p+i}, v{sreg+2*i}, v{sreg+2*i+1}")
    g.e("s_waitcnt lgkmcnt(0)")
    g.e("s_nop 1")
    for j in range(8): g.e(mfma(vr(o + 4 * j), Vf(0, j), vr(p), vr(o + 4 * j)))
    g.e(f"s_add_u32 s{ST_}, s{ST_}, {TILE}")
    g.e(f"s_cmp_lt_u32 s{ST_}, s{SB_}")
    g.e("s_cbranch_scc1 L_slow_p2")
    xlane(l, M_ + 1, "v_add_f32")
    g.e(f"v_rcp_f32 v{l}, v{l}")
    g.e("s_nop 7")
    for k in range(0, 32, 2): g.e(pkmul(o + k, 0))
    for k in range(16): g.e(f"v_cvt_pk_bf16_f32 v{o+k}, v{o+2*k}, v{o+2*k+1}")
    for j in range(8): g.e(f"ds_write_b64 v{EW+(j&3)}, v[{o+2*j}:{o+2*j+1}] offset:{(j>>2)*128}")
    for i in range(4): g.e(f"ds_read_b128 {vr(o+16+4*i)}, v{ER+(i&1)} offset:{i*1024}")
    g.e("s_waitcnt lgkmcnt(0)")
    for i in range(4): g.e(f"buffer_store_dwordx4 {vr(o+16+4*i)}, v{OOFF}, s[{SO}:{SO+3}], s{SR_} offen offset:{i*1024}")
    g.e(f"s_cmp_lg_u32 s{S_BAD}, 0")
    g.e("s_cbranch_scc1 L_slow_next")
    g.e("s_endpgm")

def emit_addr_setup():
    for s in range(4):
        g.e(f"v_add_u32 v5, {4*s}, v14")
        g.e("v_xor_b32 v5, v5, v13")
        g.e("v_lshlrev_b32 v5, 4, v5")
        g.e(f"v_lshl_add_u32 v{KAD+s}, v13, 8, v5")
    g.e("v_lshrrev_b32 v6, 2, v12")
    g.e("v_and_b32 v7, 3, v12")
    g.e("v_lshlrev_b32 v8, 8, v6")
    g.e("v_lshl_add_u32 v8, v7, 3, v8")
    g.e(f"v_add_u32 v8, {VBASE}, v8")
    g.e("v_and_b32 v6, 7, v6")
    for j in range(8):
        g.e(f"v_xor_b32 v5, {j}, v6")
        g.e(f"v_lshl_add_u32 v{VAD+j}, v5, 5, v8")
    g.e(f"v_lshlrev_b32 v{OOFF}, 4, v12")
    g.e("v_lshrrev_b32 v5, 1, v14")
    g.e("v_and_b32 v6, 7, v13")
    g.e("v_xor_b32 v5, v5, v6")
    g.e("v_lshlrev_b32 v5, 4, v5")
    g.e("v_lshl_add_u32 v5, v13, 8, v5")
    g.e("v_and_b32 v6, 1, v14")
    g.e("v_lshl_add_u32 v5, v6, 3, v5")
    g.e(f"v_add_u32 v{EW}, s{S_STG}, v5")
    for j in range(1, 4): g.e(f"v_xor_b32 v{EW+j}, {j<<5}, v{EW}")
    g.e(f"v_add_u32 v{ER}, s{S_STG}, v{DK}")
    g.e(f"v_add_u32 v{ER+1}, s{S_STG}, v{DK+1}")
    for s in range(4): g.e(f"v_add_u32 v{QA+s}, s{S_STG}, v{KAD+s}")
    def bf16_rne(x):
        u = f2u(x); return (u + 0x7fff + ((u >> 16) & 1)) >> 16
    chi = bf16_rne(CSCALE); chi_f = struct.unpack("<f", struct.pack("<I", chi << 16))[0]
    clo = bf16_rne(CSCALE - chi_f)
    g.e(f"v_lshlrev_b32 v{BCA}, 4, v14")
    g.e("v_and_b32 v15, 3, v12")
    g.e("v_lshlrev_b32 v15, 4, v15")
    g.e(f"s_mov_b32 s{S_C}, {hex(chi)}")
    g.e(f"s_mov_b32 s{S_C+1}, 0")
    g.e(f"v_lshlrev_b64 v[{PT}:{PT+1}], v15, s[{S_C}:{S_C+1}]")
    g.e(f"s_mov_b32 s{S_C}, {hex(clo)}")
    g.e(f"v_lshlrev_b64 v[{PT+2}:{PT+3}], v15, s[{S_C}:{S_C+1}]")
    g.e(f"s_mov_b32 s{S_TLO}, {hex(f2u(2.0**(POFF - 16)))}")
    g.e(f"s_mov_b32 s{S_THR}, {hex(f2u(2.0**64) - f2u(2.0**(POFF - 16)))}")
    g.e(f"s_mov_b32 s{S_BAD}, 0")
    g.e(f"s_mov_b32 s{S_POFF}, {hex(f2u(POFF))}")
    g.e(f"s_add_u32 s{S_OST}, s{S_HOFF2}, s{S_ROWB}")

DOC = """;
"""
def main():
    hdr = open("cdna_kernels/" + NAME + ".s.ref").read().split("; @launch")[0]
    out = hdr + f"; @launch grid=(256,1,1) block=(256,1,1) lds={LDS_BYTES}\n"
    out += DOC
    out += f'''.amdgcn_target "amdgcn-amd-amdhsa--gfx950"
.text
.globl {NAME}_kernel
.p2align 8
.type {NAME}_kernel,@function
{NAME}_kernel:
'''
    if STAMP:
        g.es(["s_memrealtime s[38:39]", "s_waitcnt lgkmcnt(0)", "s_mov_b32 s94, s38"])
        stamp(0)
        for i in range(65, 88): g.e(f"s_mov_b32 s{i}, s64")
    g.e("s_load_dwordx8 s[40:47], s[0:1], 0")
    g.e("s_cmp_ge_u32 s2, 256")
    g.e("s_cbranch_scc1 L_done")
    g.e("s_getpc_b64 s[58:59]")
    g.lab("L_pc0")
    g.e("v_lshlrev_b32 v16, 7, v0")
    g.e("v_cmp_lt_u32 vcc, 127, v0")
    g.e("v_mov_b32 v17, L_start_w3-L_pc0-16384")
    g.e("s_nop 0")
    g.e("v_cndmask_b32 v17, 0, v17, vcc")
    g.e("v_add_u32 v16, v16, v17")
    g.e("global_load_dword v17, v16, s[58:59]")
    g.e("v_lshrrev_b32 v11, 6, v0")
    g.e("v_and_b32 v12, 63, v0")
    g.e(f"v_readfirstlane_b32 s{S_WAVE}, v11")
    g.e("v_and_b32 v13, 15, v12")
    g.e("v_lshrrev_b32 v14, 4, v12")
    g.e("s_and_b32 s3, s2, 7")
    g.e("s_lshr_b32 s4, s2, 3")
    g.e("s_lshr_b32 s5, s4, 1")
    g.e("s_and_b32 s4, s4, 1")
    g.e("s_lshl_b32 s3, s3, 5")
    g.e("s_add_u32 s3, s3, s5")
    g.e(f"s_mul_i32 s{S_HOFF}, s3, {HEAD_BYTES}")
    g.e(f"s_add_u32 s{S_HOFF2}, s{S_HOFF}, {16*HEAD_BYTES}")
    g.e(f"s_mul_i32 s{S_CROW}, s4, {368*256}")
    g.e(f"s_mul_i32 s5, s{S_WAVE}, {96*256}")
    g.e(f"s_add_u32 s{S_ROWB}, s{S_CROW}, s5")
    g.e(f"s_add_u32 s{S_STG}, s5, {STAGE}")
    g.e(f"s_add_u32 s{S_QPO}, s{S_HOFF}, s{S_ROWB}")
    g.e(f"s_mov_b32 s{S_QPL}, s{S_STG}")
    emit_dma_offsets(13, 14, 5, 15)
    g.e("v_lshl_add_u32 v5, v11, 2, v14")
    g.e("v_xor_b32 v6, v5, v13")
    g.e(f"v_lshl_add_u32 v{CK_}, v6, 4, v15")
    g.e("v_and_b32 v5, 7, v5")
    g.e("v_lshlrev_b32 v5, 1, v5")
    g.e("v_xor_b32 v6, v5, v13")
    g.e(f"v_lshl_add_u32 v{CV_}, v6, 4, v15")
    g.e(f"s_lshl_b32 s{S_CW}, s{S_WAVE}, 10")
    g.e(f"s_add_u32 s{S_CG}, s{S_HOFF}, s{S_CW}")
    g.e("s_waitcnt lgkmcnt(0)")
    def srd(i, r):
        g.e(f"s_mov_b32 s{r}, s{40+2*i}")
        g.e(f"s_and_b32 s{r+1}, s{41+2*i}, 0xffff")
        g.e(f"s_mov_b32 s{r+2}, {TOTAL_BYTES}")
        g.e(f"s_mov_b32 s{r+3}, 0x20000")
    srd(0, SQ); srd(1, SK)
    stamp(7); emit_q_dma(); emit_coop(0, 0); emit_coop(0, 1)
    emit_addr_setup()
    srd(2, SV); srd(3, SO)
    emit_q_dma(); emit_coop(1, 0); emit_coop(1, 1)
    g.e(f"s_cmp_eq_u32 s{S_WAVE}, 3")
    g.e("s_cbranch_scc1 L_start_w3")
    emit_variant(6, False, "w0")
    emit_variant(5, True, "w3")
    emit_slow()
    g.lab("L_done")
    g.e("s_endpgm")
    g.L.append(".fill 2048, 4, 0xbf810000")
    out += "\n".join(g.L) + "\n"
    out += f'''.section .rodata,"a"
.p2align 6
.amdhsa_kernel {NAME}_kernel
  .amdhsa_next_free_vgpr 512
  .amdhsa_next_free_sgpr 96
  .amdhsa_accum_offset 256
  .amdhsa_group_segment_fixed_size 0
  .amdhsa_kernarg_size 48
  .amdhsa_user_sgpr_count 2
  .amdhsa_user_sgpr_kernarg_segment_ptr 1
  .amdhsa_system_sgpr_workgroup_id_x 1
.end_amdhsa_kernel
'''
    fn = sys.argv[1] if len(sys.argv) > 1 else "cdna_kernels/" + NAME + ".s"
    open(fn, "w").write(out)
main()
```

```python
import sys, os, struct
NAME = "standalone__gqa_softmax__near_ridge"
R = 4
TILE = 8192
VBASE = R * TILE
STAGE = 2 * R * TILE
LDS_BYTES = STAGE + 24 * 4096
HEAD_BYTES = 736 * 256
TOTAL_BYTES = 256 * HEAD_BYTES
E = os.environ.get
STAMP = int(E("STAMP", "0"))
NT_KV = E("NT_KV", " nt"); NT_Q = E("NT_Q", " nt"); NT_O = E("NT_O", " sc1")
X = E("X", "vfirst").split(",")
def f2u(x): return struct.unpack("<I", struct.pack("<f", x))[0]
CSCALE = 1.4426950408889634 / (128 ** 0.5)
POFF = float(E('POFF', '-43'))

CUR_NQ = [6]
OVB = 112
def Oisv(u): return u >= CUR_NQ[0] - 2
def Obase(u): return OVB + (u - (CUR_NQ[0] - 2)) * 32 if Oisv(u) else u * 32
def Or(u, off, n=4):
    b = Obase(u) + off
    return (f"v[{b}:{b+n-1}]" if Oisv(u) else f"a[{b}:{b+n-1}]")
KA = 128; VA = 192
QB = 16; SB = 176
def PF(i): return 192 + 4 * (i & 1)
def PH(i): return 200 + 4 * (i & 3)
CB = 216
KAD = 240; VAD = 244
def Lr(u): return (252, 253, 254, 255, 0, 1)[u]
EW = 2; BCA = 4; ER = 6; QA = 8; PT = 12
DK = 96; OOFF = 102; CK_ = 103; CV_ = 104; ORD = 106
DV = DK
ODAT = 96
def Q(u, s): return QB + (u * 4 + s) * 4
def vr(b, n=4): return f"v[{b}:{b+n-1}]"
def ar(b, n=4): return f"a[{b}:{b+n-1}]"
def Kf(par, f, n=4, o=0): return ar(KA + par * 32 + f * 4 + o, n)
def Vf(par, j, n=4, o=0): return ar(VA + par * 32 + j * 4 + o, n)
SQ, SK, SV, SO = 8, 12, 16, 20
S_WAVE = 24; S_HOFF = 25; S_HOFF2 = 26; S_BAD = 27; S_CNT = 28; S_T = 29
S_C = 30
S_DOFF = 32; S_DCNT = 33; S_DSLOT = 34; S_D2 = 35; S_THR = 36; S_OOB = 37
S_ROWB = 50; S_STG = 51; S_QP = 52; S_QPO = 53; S_QPL = 54; S_OST = 55; S_T2 = 56
S_TLO = 57; S_POFF = 61; S_CROW = 63
S_CW = 6; S_CG = 7

class G:
    def __init__(self): self.L = []
    def e(self, s): self.L.append("    " + s)
    def es(self, l):
        for s in l: self.e(s)
    def lab(self, s): self.L.append(s + ":")
    def blk(self, l):
        need = True
        for s in l:
            small = s.startswith(("s_", "WAIT"))
            if need and not small and "noal" not in X: self.L.append(".p2align 3")
            need = small
            self.e(s)
g = G()

NSPIN = 0
def stamp(i):
    if not STAMP: return
    g.e("s_memrealtime s[38:39]" if STAMP in (3, 4) else "s_memtime s[38:39]")
    g.e("s_waitcnt lgkmcnt(0)")
    g.e(f"s_mov_b32 s{64+i}, s38")
def stamp_out():
    if not STAMP: return
    g.e("s_waitcnt vmcnt(0)")
    stamp(13)
    g.e("s_memrealtime s[38:39]")
    g.e("s_load_dwordx2 s[48:49], s[0:1], 40")
    g.e("s_waitcnt lgkmcnt(0)")
    g.e("s_mov_b32 s95, s38")
    g.e("s_lshl_b32 s3, s2, 2")
    g.e(f"s_add_u32 s3, s3, s{S_WAVE}")
    g.e("s_lshl_b32 s3, s3, 7")
    g.e("v_mov_b32 v2, s3")
    g.e("s_mov_b64 exec, 1")
    for i in list(range(24)) + [30, 31]:
        g.e(f"v_mov_b32 v3, s{64+i}")
        g.e(f"global_store_dword v2, v3, s[48:49] offset:{i*4}")

def mfma(d, a, b, c): return f"v_mfma_f32_16x16x32_bf16 {d}, {a}, {b}, {c}"
def qk_mfmas(u, par, sbuf):
    M = []
    for kt in range(2):
        so = [3, 2, 1, 0] if kt == 1 else [0, 1, 2, 3]
        for s in so:
            d = vr(SB + sbuf * 8 + kt * 4)
            M.append(mfma(d, Kf(par, kt * 4 + s), vr(Q(u, s)), vr(CB + u * 4) if s == so[0] else d))
    return M
def pv1(u, par, p, first, js=range(8)):
    return [mfma(Or(u, 4 * j), vr(p), Vf(par, j), "0" if first else Or(u, 4 * j)) for j in js]
def pv2(u, par, pnew, pold, first, js):
    M = []
    for j in js:
        ops = [(par ^ 1, pold), (par, pnew)]
        if j & 1: ops.reverse()
        for i, (s_, p) in enumerate(ops):
            M.append(mfma(Or(u, 4 * j), vr(p), Vf(s_, j), "0" if (first and i == 0) else Or(u, 4 * j)))
    return M
def sm_units(u, sbuf, p, first):
    s = SB + sbuf * 8; l = Lr(u)
    Ex = lambda i: f"v_exp_f32 v{s+i}, v{s+i}"
    A = lambda i: f"v_mov_b32 v{l}, v{s}" if (first and i == 0) else f"v_add_f32 v{l}, v{l}, v{s+i}"
    C = lambda i: f"v_cvt_pk_bf16_f32 v{p+i}, v{s+2*i}, v{s+2*i+1}"
    return [[Ex(0)], [Ex(1)], [Ex(2)], [A(0), A(1)], [Ex(3)], [C(0), A(2)], [Ex(4)], [A(3), C(1)],
            [Ex(5)], [Ex(6)], [A(4), A(5)], [Ex(7)], [C(2), A(6)], [A(7), C(3)]]
def k_reads(slot, par):
    return [f"ds_read_b128 {Kf(par, kt*4+s)}, v{KAD+s} offset:{slot*TILE+kt*4096}" for kt in range(2) for s in range(4)]
def v_reads(slot, par):
    return [f"ds_read_b64_tr_b16 {Vf(par, j, 2, 2*h)}, v{VAD+j} offset:{slot*TILE+h*4096}" for j in range(8) for h in range(2)]
def q_reads(u):
    return [f"ds_read_b128 {vr(Q(u,s))}, v{QA+s} offset:{u*4096}" for s in range(4)]

class Step:
    def __init__(self, n, qk, sm, pv, free=(0, 2)):
        self.M = (qk_mfmas(qk[1], qk[0], n & 1) if qk else []) + list(pv)
        k = len(self.M)
        self.n = n
        self.salu = [[] for _ in range(k)]; self.mem = [[] for _ in range(k)]; self.valu = [[] for _ in range(k)]
        self.pre = []; self.post = []
        if sm:
            U = sm_units(sm[0], (n - 1) & 1, sm[1], sm[2])
            if k >= 16:
                gaps = [x for x in range(16) if x not in free]
                for p, x in zip(gaps, U): self.valu[p] = list(x)
            else:
                for i, x in enumerate(U): self.valu[(i + 2) * k // 16] += x
        if not qk: self.pre.append("s_nop 1")
        if not pv: self.post.append("s_nop 7")
    def prepend(self, ms):
        k = len(ms)
        self.M = list(ms) + self.M
        self.salu = [[] for _ in range(k)] + self.salu; self.mem = [[] for _ in range(k)] + self.mem; self.valu = [[] for _ in range(k)] + self.valu
    def append(self, ms):
        self.M += list(ms)
        for _ in ms: self.salu.append([]); self.mem.append([]); self.valu.append([])
    def add_mem(self, ops, pos):
        assert len(ops) == len(pos), (len(ops), len(pos))
        for o, p in zip(ops, pos): self.mem[p].append(o)
    def repack(self, lr=None, bit=None, neg=None, neg_from=0, bp=None):
        cost = lambda x: 2 if x.startswith(("v_exp", "v_rcp")) else 1
        sm = [x for v in self.valu for x in v]
        k = len(self.M)
        self.valu = [[] for _ in range(k)]
        lr = [list(x) for x in (lr or [])]; neg = list(neg or [])
        memc = [sum(3 if x.startswith("buffer") else 1 for x in m) for m in self.mem]
        total = sum(map(cost, sm)) + sum(cost(x) for G_ in lr for x in G_) + len(neg) + sum(memc) + (4 * int(E("BPW", "2")) if bp else 0)
        used = 0; last_lr = -2; vc_gap = None
        for i in range(k):
            used += memc[i]
            target = max(2 * (i + 1), total * (i + 1) / k) if total > 2 * k else None
            room = lambda: max(2 - memc[i] - sum(map(cost, self.valu[i])), (target - used) if target is not None else -9)
            def put(xs):
                nonlocal used
                self.valu[i] += xs; used += sum(map(cost, xs))
            if lr and i - last_lr >= (2 if ("permlane" in lr[0][0] or E("LSP", "1") == "2") else 1):
                G_ = lr.pop(0); put(G_); last_lr = i
                if not lr:
                    vc_gap = i
                    for q, x in enumerate(bp):
                        d = int(E("BPD", "1")); w = int(E("BPW", "2"))
                        self.mem[i + 1 + q // d].append(x); memc[i + 1 + q // d] += w
            while True:
                if sm and room() >= cost(sm[0]): put([sm.pop(0)])
                elif neg and i >= neg_from and room() >= 1: put([neg.pop(0)])
                else: break
            if i == k - 2: put(neg); neg = []
        self.valu[k - 1] += sm
        assert not lr
        if bit is not None:
            for q in range(vc_gap + 2, k - 2):
                if not (self.salu[q] or self.salu[q + 1] or self.salu[q + 2]) and not any(x.startswith("s_") for x in self.mem[q]):
                    for j, x in enumerate(bad_flag(bit)): self.salu[q + j].append(x)
                    break
            else:
                self.post += ["s_nop 0"] + bad_flag(bit)
    def emit(self):
        g.es(self.pre)
        for i, m in enumerate(self.M):
            g.e(m); g.es(self.salu[i]); g.es(self.mem[i]); g.es(self.valu[i])
        g.es(self.post)

def dma_tile_ops():
    ops = []
    for which in range(2):
        srd = SK if which == 0 else SV
        for hh in range(2):
            for i in range(4):
                pre = f"s_add_u32 m0, s{S_DSLOT}, {(VBASE if which else 0) + hh * 4096}" if i == 0 else None
                so = S_DOFF if hh == 0 else S_D2
                va = DK + i if which == 0 else DV + (i & 1)
                ops.append((pre, f"buffer_load_dwordx4 v{va}, s[{srd}:{srd+3}], s{so} offen offset:{i*1024}{NT_KV} lds"))
    return ops
def dma_advance():
    return [f"s_add_u32 s{S_DCNT}, s{S_DCNT}, 1", f"s_add_u32 s{S_DOFF}, s{S_DOFF}, {TILE}",
            f"s_cmp_eq_u32 s{S_DCNT}, 23", f"s_cselect_b32 s{S_DOFF}, s{S_HOFF2}, s{S_DOFF}",
            f"s_cmp_eq_u32 s{S_DCNT}, 46", f"s_cselect_b32 s{S_DOFF}, s{S_OOB}, s{S_DOFF}",
            f"s_add_u32 s{S_D2}, s{S_DOFF}, 4096", f"s_add_u32 s{S_DSLOT}, s{S_DSLOT}, {TILE}",
            f"s_and_b32 s{S_DSLOT}, s{S_DSLOT}, {R*TILE-1}"]
def emit_dma_tile_plain():
    for pre, d in dma_tile_ops():
        if pre: g.e(pre); g.e("s_nop 0")
        g.e(d)
    g.es(dma_advance())
def place_dma(slots):
    prev = None
    for (st, p), (pre, d) in zip(slots, dma_tile_ops()):
        if pre:
            if p > 0 and prev != (st, p - 1) and prev != (st, p): st.salu[p - 1].append(pre)
            else: st.mem[p] += [pre, "s_nop 0"]
        st.mem[p].append(d)
        prev = (st, p)
def q_dma_groups():
    G_ = [[f"buffer_load_dwordx4 v{DK+i}, s[{SQ}:{SQ+3}], s{S_QPO} offen offset:{i*1024}{NT_Q} lds"] for i in range(4)]
    G_[0] = [f"s_mov_b32 m0, s{S_QPL}", f"s_add_u32 s{S_QPL}, s{S_QPL}, 4096"] + G_[0]
    G_[3] = G_[3] + [f"s_add_u32 s{S_QPO}, s{S_QPO}, 4096"]
    return G_
def coop_groups(which, t):
    srd = SK if which == 0 else SV
    G_ = []
    for hh in range(2):
        off = t * TILE + hh * 4096
        G_.append([f"s_add_u32 m0, s{S_CW}, {off + (VBASE if which else 0)}", f"s_add_u32 s{S_T}, s{S_CG}, {off}",
                   f"buffer_load_dwordx4 v{CV_ if which else CK_}, s[{srd}:{srd+3}], s{S_T} offen{NT_KV} lds"])
    return G_
def emit_q_dma():
    for x in q_dma_groups(): g.es(x)
def emit_coop(which, t):
    for x in coop_groups(which, t): g.es(x)
def qpf_group():
    pre = [f"s_cmp_lt_u32 s{S_QPL}, {STAGE}", f"s_cselect_b32 s{S_QP}, s{S_OOB}, s{S_QPO}", f"s_cselect_b32 m0, {STAGE + 23*4096}, s{S_QPL}"]
    ld = [f"buffer_load_dwordx4 v{DK+i}, s[{SQ}:{SQ+3}], s{S_QP} offen offset:{i*1024}{NT_Q} lds" for i in range(4)]
    post = [f"s_add_u32 s{S_QPO}, s{S_QPO}, 4096", f"s_add_u32 s{S_QPL}, s{S_QPL}, 4096"]
    return pre, ld, post

def ps_ops(u, blk):
    q = Q(u, 0); nb = len(blk)
    H = lambda i: f"v_mfma_f32_4x4x4_16b_bf16 {vr(blk[i%nb])}, v[{PT}:{PT+1}], v[{q+2*i}:{q+2*i+1}], 0"
    Lo = lambda i: f"v_mfma_f32_4x4x4_16b_bf16 {vr(blk[i%nb])}, v[{PT+2}:{PT+3}], v[{q+2*i}:{q+2*i+1}], {vr(blk[i%nb])}"
    C = lambda i, h: f"v_cvt_pk_bf16_f32 v{q+2*i+h}, v{blk[i%nb]+2*h}, v{blk[i%nb]+2*h+1}"
    return H, Lo, C
def prescale(u, blk):
    H, Lo, C = ps_ops(u, blk)
    seq = [("H", 0)]
    for i in range(0, 10):
        if i + 1 < 8: seq.append(("H", i + 1))
        if 0 <= i - 2 < 8: seq.append(("C0", i - 2))
        if i < 8: seq.append(("L", i))
        if 0 <= i - 2 < 8: seq.append(("C1", i - 2))
    L = []; pos = {}; cur = 0
    for kind, i in seq:
        need = 0
        if kind == "L": need = pos[("H", i)] + 1 + 2
        if kind[0] == "C": need = pos[("L", i)] + 1 + 5
        if cur < need:
            L.append(f"s_nop {need - cur - 1}"); cur = need
        L.append(H(i) if kind == "H" else Lo(i) if kind == "L" else C(i, int(kind[1])))
        pos[(kind, i)] = cur; cur += 1
    return L
def bc_reads(slot, ub, areg):
    return [f"ds_read_b128 {Or(ub, 16+4*s_)}, v{areg} offset:{slot*TILE+s_*64}" for s_ in range(4)]
def prepass_mfma(u, ub):
    d = vr(CB + u * 4)
    return [mfma(d, Or(ub, 16 + 4 * s_), vr(Q(u, s_)), "0" if s_ == 0 else d) for s_ in range(4)]
def prepass_neg(u):
    c = CB + u * 4
    return [f"v_sub_f32 v{c+k}, s{S_POFF}, v{c+k}" for k in range(4)]
def l_reduce(u):
    l = Lr(u); t = CB + 4 * u
    return [[f"v_mov_b32 v{t}, v{l}"],
            [f"v_permlane16_swap_b32 v{l}, v{t}"],
            [f"v_add_f32 v{l}, v{l}, v{t}", f"v_mov_b32 v{t}, v{l}"],
            [f"v_permlane32_swap_b32 v{l}, v{t}"],
            [f"v_add_f32 v{l}, v{l}, v{t}", f"v_subrev_u32 v{t}, s{S_TLO}, v{l}"],
            [f"v_cmp_le_u32 vcc, s{S_THR}, v{t}", f"v_rcp_f32 v{l}, v{l}"]]
def bad_flag(bit):
    return ["s_cmp_lg_u64 vcc, 0", f"s_cselect_b32 s{S_T2}, {1<<bit}, 0", f"s_or_b32 s{S_BAD}, s{S_BAD}, s{S_T2}"]
def add_lreduce(st, u, bit, pos=None):
    Gs = l_reduce(u); k = len(st.M)
    if k >= 16:
        pos = pos or (0, 2, 4, 6, 8, 10)
        for gi, p in zip(Gs, pos): st.valu[p] = st.valu[p] + gi
    else:
        for i, gi in enumerate(Gs): st.valu[i] = st.valu[i] + (["s_nop 1"] if i in (1, 3) else []) + gi
        st.add_mem(r_bcast(u), [6, 6, 7, 7])
    st.post += bad_flag(bit)
def r_bcast(u, src=None):
    return [f"ds_bpermute_b32 v{CB+4*u+r}, v{BCA}, v{Lr(u) if src is None else src} offset:{4*r} ; @R{u}" for r in range(4)]
def o_readback(dst, areg, off):
    return [f"ds_read_b64_tr_b16 {dst(4*i+2*b)}, v{areg+b} offset:{off+i*1024}" for i in range(4) for b in range(2)]
def epilogue_parts(u, t, packs, b=None):
    c = CB + 4 * u
    Gs = []
    inv = b is not None or Oisv(u)
    if b is None: b = Obase(u)
    for r in range(4):
        p = packs[r % len(packs)]
        w = [f"ds_write_b128 v{EW+(r&1)}, {vr(p)} offset:{u*4096+r*256}"]
        if inv:
            m = [f"v_pk_mul_f32 v[{b+4*j+r}:{b+4*j+r+1}], v[{b+4*j+r}:{b+4*j+r+1}], v[{c+r}:{c+r+1}]" for j in range(8)] if r & 1 == 0 else []
            Gs.append([[], m, [f"v_cvt_pk_bf16_f32 v{p+k}, v{b+8*k+r}, v{b+8*k+4+r}" for k in range(4)], w])
        else:
            h = r & 1
            Gs.append([[f"v_accvgpr_read_b32 v{t+j}, a{b+4*j+r}" for j in range(8)],
                       [f"v_pk_mul_f32 v[{t+k}:{t+k+1}], v[{t+k}:{t+k+1}], v[{c+r-h}:{c+r-h+1}] op_sel:[0,{h}] op_sel_hi:[1,{h}]" for k in range(0, 8, 2)],
                       [f"v_cvt_pk_bf16_f32 v{p+k}, v{t+2*k}, v{t+2*k+1}" for k in range(4)], w])
    o = 16 if inv else 0
    rb = o_readback((lambda x: vr(b + o + x, 2)) if inv else (lambda x: ar(b + x, 2)), ER, u * 4096)
    return Gs, rb
def merged_block(u, sdead, pdead, mid=None):
    out = []
    mid = mid or []
    if not Oisv(u):
        Gs, rb = epilogue_parts(u, sdead, [pdead[0]])
        H, Lo, C = ps_ops(u, [pdead[1], pdead[2]])
        pend = []
        for gi in range(4):
            r, m, c, w = Gs[gi]
            a, b = 2 * gi, 2 * gi + 1
            mm = mid if gi == 0 else []
            out += [H(a)] + pend + [r[0], H(b)] + mm[:2] + [r[1], Lo(a)] + mm[2:] + [r[2], Lo(b)] + r[3:]
            if gi == 0: out.append(f"WAITL R{u}")
            out += m + c
            if gi == 3: out += w
            out += [C(a, 0), C(a, 1), C(b, 0), C(b, 1)]
            pend = w
    else:
        Gs, rb = epilogue_parts(u, None, [pdead[0]])
        H, Lo, C = ps_ops(u, [sdead, sdead + 4, pdead[1], pdead[2]])
        out += [f"WAITL R{u}"] + Gs[0][1] + Gs[2][1]
        prev = []
        for gi in range(4):
            c, w = Gs[gi][2], Gs[gi][3]
            a, b = 2 * gi, 2 * gi + 1
            out += [H(a), c[0], H(b), c[1], c[2], Lo(a), c[3], Lo(b)] + w + prev
            prev = [C(a, 0), C(a, 1), C(b, 0), C(b, 1)]
        out += prev
    return out, rb
def o_stores(u, areg, sreg=S_OST):
    o = 16 if Oisv(u) else 0
    return [f"buffer_store_dwordx4 {Or(u, o+4*i)}, v{areg}, s[{SO}:{SO+3}], s{sreg} offen offset:{i*1024}{NT_O}" for i in range(4)]

def order_of(t, NQ):
    o = list(range(NQ))
    if t & 1:
        for i in range(0, NQ - 1, 2): o[i], o[i + 1] = o[i + 1], o[i]
    return o
def p_of(t, pos, NQ):
    if pos & 1: return PH((NQ // 2) * t + (pos >> 1))
    return PF(3 * t + (pos >> 1))
def ngroups(t, extra): return 2 if (t % 4 == 2 and extra == "Q") else 1
def make_body(NQ, t, dma, extra=None, mode=None):
    par = t & 1
    o0 = order_of(t, NQ); o1 = order_of(t + 1, NQ)
    S = []
    for k in range(NQ):
        n = NQ * t + 2 + k
        qk = (par, o0[k + 2]) if k + 2 < NQ else (par ^ 1, o1[k + 2 - NQ])
        if k + 1 < NQ: sm = (o0[k + 1], p_of(t, k + 1, NQ), mode == "new0")
        else: sm = (o1[0], p_of(t + 1, 0, NQ), mode == "end")
        pos = k & ~1; u = o0[pos]
        if pos + 1 < NQ:
            js = range(4 * (k & 1), 4 * (k & 1) + 4)
            if mode == "new0": pv = pv1(u, par, p_of(t, pos, NQ), True, js)
            else: pv = pv2(u, par, p_of(t, pos, NQ), p_of(t - 1, pos + 1, NQ), mode == "new1", js)
        else:
            pv = pv1(u, par, p_of(t, pos, NQ), mode == "new0")
        S.append(Step(n, qk, sm, pv, free=(12, 14) if (NQ == 6 and k == 4) else (0, 2)))
    vc = v_reads(t % R, par); vn = v_reads((t + 1) % R, par ^ 1); kn = k_reads((t + 1) % R, par ^ 1)
    short = mode == "new0"
    if NQ == 6:
        S[0].add_mem(vc[8:12], [0, 0, 2, 2]); S[1].add_mem(vc[12:16], [0, 0, 2, 2] if not short else [0, 0, 1, 1])
        S[2].add_mem(kn[:4], [0, 0, 2, 2]); S[3].add_mem(kn[4:], [0, 0, 2, 2])
        S[4].add_mem(vn[0:4], [12, 12, 14, 14] if not short else [0, 0, 2, 2]); S[5].add_mem(vn[4:8], [0, 0, 2, 2])
        S[0].salu[7].append("s_waitcnt lgkmcnt(4)")
        S[1].salu[7].append("s_waitcnt lgkmcnt(4)")
        if short: S[1].salu[9].append("s_waitcnt lgkmcnt(0)")
        else:
            S[1].salu[12].append("s_waitcnt lgkmcnt(2)")
            S[1].salu[13].append("s_waitcnt lgkmcnt(0)")
        S[2].salu[0].append("s_barrier")
        S[3].salu[-1].append("s_waitcnt lgkmcnt(0)")
    else:
        S[0].add_mem(vc[12:16], [0, 0, 2, 2])
        S[1].add_mem(kn[:4], [0, 0, 2, 2]); S[2].add_mem(kn[4:], [0, 0, 2, 2])
        S[3].add_mem(vn[0:6], [0, 0, 2, 2, 5, 9]); S[4].add_mem(vn[6:12], [0, 0, 2, 2, 5, 9])
        S[0].salu[7].append("s_waitcnt lgkmcnt(4)")
        nx = 4 * sum(ngroups(t - d, extra) for d in (1, 2, 3)) if extra else 0
        S[0].salu[-1].append(f"s_waitcnt vmcnt({32 + nx}) lgkmcnt(0)")
        S[1].salu[0].append("s_barrier")
        S[2].salu[-1].append("s_waitcnt lgkmcnt(0)")
        if short: sl = [(S[1], p) for p in (3, 4, 5, 6, 8, 9, 10, 11)] + [(S[2], p) for p in (3, 4, 5, 6, 8, 9, 10, 11)]
        else: sl = [(S[1], p) for p in (3, 4, 6, 7, 9, 10, 12, 13, 15)] + [(S[2], p) for p in (3, 4, 6, 8, 9, 10, 12)]
        place_dma(sl)
        for q, a in enumerate(dma_advance()): S[3].salu[1 + q].append(a)
        if extra == "Q":
            for gi in range(ngroups(t, extra)):
                pre, ld, post = qpf_group()
                if gi == 0:
                    st = S[4]
                    for q, x in enumerate(pre): st.salu[q].append(x)
                    st.add_mem(ld, [3, 4, 6, 7])
                    for q, x in enumerate(post): st.salu[3 + q].append(x)
                else:
                    for q, x in enumerate(pre): st.salu[8 + q].append(x)
                    st.add_mem(ld, [11, 12, 13, 14])
                    for q, x in enumerate(post): st.salu[11 + q].append(x)
        if extra == "O":
            rd = o_readback(lambda x: ar(ODAT + x, 2), ORD, (t % 4) * 4096)
            S[1].add_mem(rd, [5, 5, 8, 8, 11, 11, 14, 14])
            so = [f"buffer_store_dwordx4 {ar(ODAT+4*i)}, v{OOFF}, s[{SO}:{SO+3}], s{S_QPO} offen offset:{i*1024}{NT_O}" for i in range(4)]
            S[3].add_mem(so[:2], [7, 12]); S[4].add_mem(so[2:], [3, 7])
            for q, x in enumerate([f"s_add_u32 s{S_QPO}, s{S_QPO}, 4096", f"s_sub_u32 s{S_QP}, s{S_QP}, 1",
                                   f"s_cmp_le_i32 s{S_QP}, 0", f"s_cselect_b32 s{S_QPO}, s{S_OOB}, s{S_QPO}"]): S[4].salu[8 + q].append(x)
            if t % 4 == 3:
                S[3].valu[4].append(f"v_add_u32 v{ORD}, 16384, v{ORD}")
                S[3].valu[10].append(f"v_add_u32 v{ORD+1}, 16384, v{ORD+1}")
    return S

def resolve_waits(f0):
    for i in range(f0, len(g.L)):
        w = g.L[i].split()
        if w and w[0] in ("WAITL", "WAITV"):
            t = w[1]
            j = max(k for k in range(f0, i) if g.L[k].endswith("@" + t))
            pre = ("ds_",) if w[0] == "WAITL" else ("buffer_", "global_")
            n = sum(1 for k in range(j + 1, i) if g.L[k].strip().startswith(pre))
            g.L[i] = f"    s_waitcnt lgkmcnt({min(n, 15)})" if w[0] == "WAITL" else f"    s_waitcnt vmcnt({min(n, 63)})"
def tag(ops, t): return [f"{o} ; @{t}" for o in ops]

def emit_variant(NQ, dma, name):
    g.lab(f"L_start_{name}")
    CUR_NQ[0] = NQ
    order = ["Q0"] * 4 + ["K0"] * 2 + ["K1"] * 2 + ["Q1"] * 4 + ["V0"] * 2 + ["V1"] * 2
    def groups(nm):
        if nm[0] == "Q":
            order.extend([nm] * 4); return q_dma_groups()
        order.extend([nm] * 2); return coop_groups(0 if nm[0] == "K" else 1, int(nm[1]))
    def issue(nm):
        if nm[0] == "T":
            emit_dma_tile_plain(); order.extend([nm] * 16)
        else:
            for x in groups(nm): g.es(x)
    def wstr(nm):
        a = len(order) - 1 - max(i for i, x in enumerate(order) if x == nm)
        return f"s_waitcnt vmcnt({min(63, a)})"
    if dma:
        g.e(f"s_add_u32 s{S_DOFF}, s{S_HOFF}, {4*TILE}")
        g.e(f"s_add_u32 s{S_D2}, s{S_DOFF}, 4096")
        g.e(f"s_mov_b32 s{S_DCNT}, 4")
        g.e(f"s_mov_b32 s{S_DSLOT}, 0")
        g.e(f"s_mov_b32 s{S_OOB}, 0x10000000")
    stamp(1)
    topup = {1: ["Q4"], 3: ["K2", "K3"], 4: ["V2", "V3"]} if dma else {1: ["Q4"], 2: ["Q5"], 3: ["K2", "K3"], 4: ["V2", "V3"]}
    UB = NQ - 1
    def ps_blk(u, n):
        sb = SB + ((n - 1) & 1) * 8
        return [sb, sb + 4, PF(n), CB + 4 * u]
    g.e(wstr("Q0"))
    stamp(16)
    g.es(q_reads(0))
    issue("Q2")
    g.e("s_waitcnt lgkmcnt(0)")
    g.blk(prescale(0, ps_blk(0, 0)))
    g.e(wstr("K1"))
    g.e("s_barrier")
    stamp(2)
    g.es(bc_reads(0, UB, BCA))
    g.es(k_reads(0, 0))
    issue("Q3")
    g.e("s_waitcnt lgkmcnt(8)")
    pm = prepass_mfma(0, UB); kr = k_reads(1, 1)
    for i in range(4): g.e(pm[i]); g.es(kr[2 * i:2 * i + 2])
    g.e("s_nop 5")
    g.es(prepass_neg(0))
    g.e("s_waitcnt lgkmcnt(8)")
    g.e("s_nop 0")
    def deferred(m): return (m & 1) and (m >> 1) % 2 == 0 and (m >> 1) + 1 < NQ
    def pdst(m): return p_of(1, (m >> 1) + 1, NQ) if deferred(m) else PF(m)
    def mkstep(n, qk=None):
        sm = ((n - 1) >> 1, pdst(n - 1), (n - 1) & 1 == 0) if n >= 1 else None
        pv = pv1((n - 2) >> 1, n & 1, PF(n), n & 1 == 0) if (n >= 2 and not deferred(n - 2)) else []
        return Step(n, qk or (n & 1, n >> 1), sm, pv)
    for u in range(NQ):
        if dma and u == NQ - 1: issue("T4")
        st = mkstep(2 * u)
        k = len(st.M)
        if u == 1: st.salu[7].append("s_waitcnt lgkmcnt(0)")
        if u < NQ - 1:
            st.salu[k - 5].append(wstr(f"Q{u+1}"))
            st.add_mem(q_reads(u + 1), [k - 5, k - 5, k - 3, k - 3])
            if u == 0: st.post = []
        else:
            kr = k_reads(2, 0)
            st.salu[7].append(wstr("K3"))
            st.salu[8].append("s_barrier")
            st.add_mem(kr[:4], [8, 10, 11, 13])
        st.emit()
        if u == 1: g.e("s_barrier")
        st = mkstep(2 * u + 1)
        if u < NQ - 1:
            stamp(17 + u)
            g.e("s_waitcnt lgkmcnt(0)")
            g.blk(prescale(u + 1, ps_blk(u + 1, 2 * u)))
            if u == 0:
                g.e(wstr("V1"))
                g.e("s_barrier")
                stamp(3)
            st.prepend(prepass_mfma(u + 1, UB))
            gs = []
            for x in topup.get(u + 1, []): gs += groups(x)
            for i, gi in enumerate(gs): st.mem[i] += gi
            k = len(st.M)
            for x, p in zip(prepass_neg(u + 1), (k - 5, k - 4, k - 3, k - 2)): st.valu[p] = st.valu[p] + [x]
            if u == 0:
                vv = v_reads(0, 0) + v_reads(1, 1)
                st.add_mem(vv, [i * k // 32 for i in range(32)])
        else:
            st.add_mem(kr[4:], [0, 0, 1, 1])
            st.post.append("s_waitcnt lgkmcnt(0)")
        st.emit()
    n = 2 * NQ
    st = mkstep(n, (0, 0))
    st.salu[15].append(wstr("V3"))
    st.emit()
    st = Step(n + 1, (0, 1), (0, p_of(2, 0, NQ), False), pv1(NQ - 1, 1, PF(n + 1), False))
    assert p_of(2, 0, NQ) == PF(n)
    st.salu[0].append("s_barrier")
    nv = 8 if NQ == 6 else 12
    st.add_mem(v_reads(2, 0)[:nv], [0, 0, 2, 2, 4, 6, 8, 10, 11, 12, 13, 14][:nv])
    st.emit()
    if dma:
        emit_dma_tile_plain()
        g.e(f"s_add_u32 s{S_QPO}, s{S_HOFF2}, s{S_CROW}")
        g.e(f"s_sub_u32 s{S_QPO}, s{S_QPO}, {4*4096}")
        g.e(f"s_mov_b32 s{S_QPL}, {STAGE - 4*4096}")
        for _ in range(2):
            pre, ld, post = qpf_group()
            g.es(pre + ["s_nop 0"] + ld + post)
    g.e(f"s_mov_b32 s{S_CNT}, 0")
    stamp(4)
    def emit_loop(ln, extra, chk_final, chk_trans):
        rot = not dma
        m_first = make_body(NQ, 2, dma, extra)[0].M[0]
        if rot: g.e(m_first)
        g.L.append(".p2align 6")
        g.lab(f"L_{ln}_{name}")
        for ph in (2, 3, 0, 1):
            if ph == 1: g.lab(f"L_{ln}1_{name}")
            S = make_body(NQ, ph + 4, dma, extra)
            if rot and ph == 2: S[0].M[0] = "; (first MFMA issued before the branch)"
            if ph == 3 and chk_final:
                S[NQ - 3].salu[14].append(f"s_cmp_eq_u32 s{S_CNT}, 10")
                S[NQ - 3].post.append(f"s_cbranch_scc1 L_final_{name}")
            if ph == 1:
                S[-1].salu[13].append(f"s_add_u32 s{S_CNT}, s{S_CNT}, 1")
                if chk_trans: S[-1].salu[15].append(f"s_cmp_lt_u32 s{S_CNT}, 4" if dma else f"s_cmp_lg_u32 s{S_CNT}, 5")
            for st in S: st.emit()
        if rot: g.e(m_first)
        if chk_trans:
            g.e(f"s_cbranch_scc1 L_{ln}_{name}")
            if dma:
                g.e(f"s_cmp_eq_u32 s{S_CNT}, 5")
                g.e(f"s_cbranch_scc1 L_trans_{name}")
                g.e(f"v_lshlrev_b32 v{CK_}, 3, v{OOFF}")
                for lab in ("L_trans_w0", "L_trans_w3", "L_trans_w0+8192", "L_trans_w3+8192", "L_trans_w0+16384", "L_trans_w3+16384"):
                    g.e(f"v_add_u32 v{CV_}, {lab}-L_pc0, v{CK_}")
                    g.e(f"global_load_dword v108, v{CV_}, s[58:59]")
                g.e(f"s_branch L_{ln}_{name}")
        else:
            g.e(f"s_branch L_{ln}_{name}")
    emit_loop("loop", "Q" if dma else None, not dma, True)
    g.lab(f"L_trans_{name}")
    stamp(5)
    f0 = len(g.L)
    S = make_body(NQ, 22, dma, None, "end")
    if not dma: S[0].M[0] = "; (first MFMA issued before the branch)"
    S23 = make_body(NQ, 23, dma, None, "new0")
    queue = []; pend_st = []
    def lead(st, us):
        ms = []
        for u in us: ms += prepass_mfma(u, 0)
        st.prepend(ms)
        return len(ms), [x for u in us for x in prepass_neg(u)]
    if dma: g.e(f"s_add_u32 s{S_OST}, s{S_HOFF}, s{S_ROWB}")
    else:
        S[2].salu[0].remove("s_barrier")
        S[1].mem[2][-1] += " ; @v22"
        S[1].salu[12] = ["WAITL v22"]; S[1].salu[13] = []
        S[1].salu[14].append("s_barrier")
    for k, st in enumerate(S):
        if k & 1: st.append(pv1(k, 0, p_of(22, k, NQ), False))
        off = 0; neg = []
        if queue:
            if k == 2: st.pre.append("WAITL bc")
            off, neg = lead(st, queue); queue = []
        if dma and k == 0: st.pre.append("s_waitcnt vmcnt(60)")
        if dma and k == 3: st.pre.append("s_waitcnt vmcnt(40)")
        if dma and k == 4: st.pre.append("s_waitcnt vmcnt(24)")
        st.add_mem(tag(q_reads(k), f"q{k}"), [1, 1, 3, 3] if off else ([17, 17, 19, 19] if k & 1 else [8, 8, 10, 10]))
        kk = len(st.M)
        if pend_st:
            st.salu[4].append(f"WAITL rb{k-1}")
            st.add_mem(pend_st, [4, 5, 6, 7, kk - 3, kk - 2, kk - 1, kk - 1])
        pend_st = []
        st.repack(l_reduce(k), k, neg, off + 3, r_bcast(k))
        st.emit()
        us = [k - 1, k] if (k & 1) else ([k] if k == NQ - 1 else [])
        for u in us:
            g.e(f"WAITL q{u}")
            sdead = SB + ((st.n - 1) & 1) * 8
            if k & 1: pdead = [p_of(22, k - 1, NQ), p_of(21, k, NQ), p_of(22, k, NQ)]
            else: pdead = [p_of(22, k, NQ), p_of(21, k - 1, NQ), p_of(22, k - 1, NQ)]
            L, rb = merged_block(u, sdead, pdead, tag(bc_reads(23 % R, 0, BCA), "bc") if u == 1 else None)
            g.blk(L)
            if dma:
                g.es(tag(rb, f"rb{u}"))
                g.e(f"s_add_u32 s{88 + (u & 1)}, s{S_OST}, {u*4096}")
                pend_st += o_stores(u, OOFF, 88 + (u & 1))
            queue.insert(0, u)
    stamp(6)
    st = S23[0]
    off, neg = lead(st, queue)
    if dma:
        kk = len(st.M)
        st.salu[kk - 8].append(f"WAITL rb{NQ-1}")
        st.add_mem(pend_st, [kk - 8, kk - 7, kk - 4, kk - 3])
    st.repack(None, None, neg, off + 3)
    if dma:
        st.salu[0].append(f"s_add_u32 s{S_QPO}, s{S_HOFF}, s{S_CROW}")
        st.salu[1].append(f"s_mov_b32 s{S_QP}, 18")
        st.salu[2].append(f"s_add_u32 s{S_OST}, s{S_HOFF2}, s{S_ROWB}")
        st.valu[0].append(f"v_subrev_u32 v{ORD}, {3*24576}, v{ER}")
        st.valu[1].append(f"v_subrev_u32 v{ORD+1}, {3*24576}, v{ER+1}")
        S23[4].add_mem([f"buffer_store_dwordx4 {ar(ODAT)}, v{OOFF}, s[{SO}:{SO+3}], s{S_OOB} offen"] * 4, [3, 7, 11, 13])
    for st in S23: st.emit()
    S24 = make_body(NQ, 24, dma, "O" if dma else None, "new1")
    for st in S24: st.emit()
    resolve_waits(f0)
    stamp(10)
    if dma:
        g.e(f"s_branch L_loopb1_{name}")
        emit_loop("loopb", "O", True, False)
    else:
        g.e(f"s_branch L_loop1_{name}")
    g.lab(f"L_final_{name}")
    stamp(11)
    f0 = len(g.L)
    if dma: g.e("s_waitcnt vmcnt(32)")
    o43 = order_of(43, NQ)
    FO = OOFF if dma else PH(0)
    B43 = make_body(NQ, 43, dma, None)
    F = []
    fo = list(range(NQ))
    if "vfirst" in X: fo = fo[-2:] + fo[:-2]
    if "vsplit" in X: fo = fo[-1:] + fo[:-1]
    for m in range(2 * NQ + 2):
        n = NQ * 44 + m
        qk = (m & 1, fo[m >> 1]) if m < 2 * NQ else None
        if m == 0: sm = (o43[NQ - 1], p_of(43, NQ - 1, NQ), False)
        else: sm = (fo[(m - 1) >> 1], PF(m - 1), False) if m - 1 < 2 * NQ else None
        if m < 2: pv = B43[NQ - 2 + m].M[8:]
        else: pv = pv1(fo[(m - 2) >> 1], m & 1, PF(m), False)
        F.append(Step(n, qk, sm, pv))
    singles = [pv1(o43[p], 1, p_of(43, p, NQ), False) for p in range(1, NQ, 2)]
    F[0].append(singles[0] + (singles[1] if NQ == 6 else []))
    F[1].append(singles[-1])
    F[0].salu[0].append("s_barrier")
    F[0].add_mem(tag(k_reads(45 % R, 1), "k45"), [0, 0, 2, 2, 16, 16, 17, 17])
    F[0].salu[-1].append("WAITL k45")
    v44 = tag(v_reads(44 % R, 0), "v44"); v45 = tag(v_reads(45 % R, 1), "v45")
    if NQ == 6:
        F[0].add_mem(v44[:8], [18, 18, 19, 19, 20, 20, 21, 21])
        F[1].add_mem(v44[8:], [16, 16, 17, 17, 18, 18, 19, 19])
    else:
        F[0].add_mem(v44[:8], [18, 18, 19, 19, 20, 20, 21, 21])
        F[1].add_mem(v44[8:], [0, 0, 2, 2, 16, 16, 17, 17])
    F[1].add_mem(v45[:6], [20, 21, 22, 22, 23, 23])
    F[2].add_mem(v45[6:], [0, 0, 1, 2, 2, 3, 4, 6, 8, 10])
    F[2].salu[7].append("WAITL v44")
    F[3].salu[7].append("WAITL v45")
    if not dma:
        F[2].valu[11] += [f"v_mbcnt_lo_u32_b32 v{FO}, -1, 0"]
        F[2].valu[12] += [f"v_mbcnt_hi_u32_b32 v{FO}, -1, v{FO}"]
        F[2].valu[13] += [f"v_lshlrev_b32 v{FO}, 4, v{FO}"]
    for i, u in enumerate(fo): F[0].salu[2 + i].append(f"s_add_u32 s{88+u}, s{S_OST}, {u*4096}")
    for m, st in enumerate(F):
        if m < 2: st.repack()
        if m >= 3 and m % 2 == 1:
            u = fo[(m - 3) // 2]
            if len(st.M) == 16: st.repack(l_reduce(u), 6 + u, None, 0, r_bcast(u))
            else: add_lreduce(st, u, 6 + u)
        st.emit()
        if m >= 3 and m % 2 == 1:
            q = Q(u, 0)
            Gs, rb = epilogue_parts(u, SB + ((st.n - 1) & 1) * 8, [q, q + 4, q + 8, q + 12])
            if Oisv(u): va = [f"WAITL R{u}"] + Gs[0][1] + Gs[2][1] + [x for G_ in Gs for x in G_[2]]
            else: va = ["s_nop 3"] + Gs[0][0] + [f"WAITL R{u}"] + Gs[0][1] + Gs[0][2] + [x for G_ in Gs[1:] for x in G_[0] + G_[1] + G_[2]]
            wr = [x for G_ in Gs for x in G_[3]]
            g.blk(va)
            so = o_stores(u, FO, 88 + u)
            if m + 1 < 2 * NQ:
                F[m + 1].add_mem(wr + rb, [0, 2, 4, 6, 9, 9, 10, 11, 11, 12, 13, 13])
                F[m + 2].salu[1].append("s_waitcnt lgkmcnt(0)")
                F[m + 2].add_mem(so, [1, 5, 9, 15])
            elif m + 1 == 2 * NQ:
                g.es(wr + rb)
                F[m + 1].salu[3].append("s_waitcnt lgkmcnt(0)")
                F[m + 1].add_mem(so, [3, 4, 5, 6])
            else:
                g.es(wr + rb)
                g.e("s_waitcnt lgkmcnt(0)")
                g.es(so)
    resolve_waits(f0)
    stamp(12)
    g.e(f"s_cmp_lg_u32 s{S_BAD}, 0")
    g.e("s_cbranch_scc1 L_slow")
    stamp_out()
    g.e("s_endpgm")

def emit_dma_offsets(lane15, lane4, t0, t1):
    g.e(f"v_lshlrev_b32 v{t1}, 8, v{lane4}")
    for i in range(4):
        g.e(f"v_add_u32 v{t0}, {4*i}, v{lane4}")
        g.e(f"v_xor_b32 v{t0}, v{t0}, v{lane15}")
        g.e(f"v_lshl_add_u32 v{DK+i}, v{t0}, 4, v{t1}")

def emit_slow():
    SB_, ST_, SH_, SR_, SX_ = 60, 61, 62, 63, 58
    VT = Q(1, 0); M_ = Q(2, 0)
    o = OVB; l = Lr(0); sreg = SB; p = PF(0)
    def tile_dma(which, ldsoff):
        srd = SK if which == 0 else SV
        for hh in range(2):
            g.e(f"s_add_u32 m0, s{S_STG}, {ldsoff + hh*4096}")
            g.e(f"s_add_u32 s{SX_}, s{ST_}, {hh*4096}")
            for i in range(4):
                va = DK + i if which == 0 else DV + (i & 1)
                g.e(f"buffer_load_dwordx4 v{va}, s[{srd}:{srd+3}], s{SX_} offen offset:{i*1024} lds")
    def kreads():
        for kt in range(2):
            for s_ in range(4): g.e(f"ds_read_b128 {Kf(0, kt*4+s_)}, v{QA+s_} offset:{4096+kt*4096}")
    def qk():
        for kt in range(2):
            for s_ in range(4):
                d = vr(sreg + kt * 4)
                g.e(mfma(d, Kf(0, kt * 4 + s_), vr(Q(0, s_)), "0" if s_ == 0 else d))
        g.e("s_nop 7")
    def xlane(r, t, op):
        for sw in ("v_permlane16_swap_b32", "v_permlane32_swap_b32"):
            g.es([f"v_mov_b32 v{t}, v{r}", "s_nop 1", f"{sw} v{r}, v{t}", "s_nop 1", f"{op} v{r}, v{r}, v{t}"])
    g.lab("L_slow")
    g.e("s_waitcnt vmcnt(0) lgkmcnt(0)")
    g.e(f"v_mbcnt_lo_u32_b32 v{M_}, -1, 0")
    g.e(f"v_mbcnt_hi_u32_b32 v{M_}, -1, v{M_}")
    g.e(f"v_lshlrev_b32 v{OOFF}, 4, v{M_}")
    g.e(f"v_and_b32 v{M_+1}, 15, v{M_}")
    g.e(f"v_lshrrev_b32 v{M_+2}, 4, v{M_}")
    emit_dma_offsets(M_ + 1, M_ + 2, M_ + 3, M_ + 4)
    g.e(f"s_sub_u32 s{SX_}, s{S_STG}, {VBASE - 12288}")
    for j in range(8): g.e(f"v_add_u32 v{VT+j}, s{SX_}, v{VAD+j}")
    g.lab("L_slow_next")
    g.e("s_waitcnt vmcnt(0) lgkmcnt(0)")
    g.e(f"s_ff1_i32_b32 s{SB_}, s{S_BAD}")
    g.e(f"s_bitset0_b32 s{S_BAD}, s{SB_}")
    g.e(f"s_cmp_ge_u32 s{SB_}, 6")
    g.e(f"s_cselect_b32 s{SH_}, s{S_HOFF2}, s{S_HOFF}")
    g.e(f"s_cselect_b32 s{SX_}, 6, 0")
    g.e(f"s_sub_u32 s{SB_}, s{SB_}, s{SX_}")
    g.e(f"s_lshl_b32 s{SB_}, s{SB_}, 12")
    g.e(f"s_add_u32 s{SR_}, s{SH_}, s{S_ROWB}")
    g.e(f"s_add_u32 s{SR_}, s{SR_}, s{SB_}")
    g.e(f"s_mov_b32 m0, s{S_STG}")
    g.e("s_nop 0")
    for i in range(4):
        g.e(f"buffer_load_dwordx4 v{DK+i}, s[{SQ}:{SQ+3}], s{SR_} offen offset:{i*1024} lds")
    g.e("s_waitcnt vmcnt(0)")
    g.es(q_reads(0))
    g.e("s_waitcnt lgkmcnt(0)")
    g.es(prescale(0, [SB, SB + 4, SB + 8, SB + 12]))
    g.e(f"v_mov_b32 v{M_}, 0xff800000")
    g.e(f"s_mov_b32 s{ST_}, s{SH_}")
    g.e(f"s_add_u32 s{SB_}, s{SH_}, {HEAD_BYTES}")
    g.lab("L_slow_p1")
    tile_dma(0, 4096)
    g.e("s_waitcnt vmcnt(0)")
    kreads()
    g.e("s_waitcnt lgkmcnt(0)")
    qk()
    for i in range(0, 8, 2): g.e(f"v_max3_f32 v{M_}, v{M_}, v{sreg+i}, v{sreg+i+1}")
    g.e(f"s_add_u32 s{ST_}, s{ST_}, {TILE}")
    g.e(f"s_cmp_lt_u32 s{ST_}, s{SB_}")
    g.e("s_cbranch_scc1 L_slow_p1")
    xlane(M_, M_ + 1, "v_max_f32")
    for k in range(32): g.e(f"v_mov_b32 v{o+k}, 0")
    g.e(f"v_mov_b32 v{l}, 0")
    g.e(f"s_mov_b32 s{ST_}, s{SH_}")
    g.lab("L_slow_p2")
    tile_dma(0, 4096)
    tile_dma(1, 12288)
    g.e("s_waitcnt vmcnt(0)")
    kreads()
    g.e("s_waitcnt lgkmcnt(0)")
    for j in range(8):
        for h in range(2): g.e(f"ds_read_b64_tr_b16 {Vf(0, j, 2, 2*h)}, v{VT+j} offset:{h*4096}")
    qk()
    for i in range(8): g.e(f"v_sub_f32 v{sreg+i}, v{sreg+i}, v{M_}")
    for i in range(8): g.e(f"v_exp_f32 v{sreg+i}, v{sreg+i}")
    g.e("s_nop 0")
    for i in range(8): g.e(f"v_add_f32 v{l}, v{l}, v{sreg+i}")
    for i in range(4): g.e(f"v_cvt_pk_bf16_f32 v{p+i}, v{sreg+2*i}, v{sreg+2*i+1}")
    g.e("s_waitcnt lgkmcnt(0)")
    g.e("s_nop 1")
    for j in range(8): g.e(mfma(vr(o + 4 * j), vr(p), Vf(0, j), vr(o + 4 * j)))
    g.e(f"s_add_u32 s{ST_}, s{ST_}, {TILE}")
    g.e(f"s_cmp_lt_u32 s{ST_}, s{SB_}")
    g.e("s_cbranch_scc1 L_slow_p2")
    xlane(l, M_ + 1, "v_add_f32")
    g.e(f"v_rcp_f32 v{l}, v{l}")
    g.e("s_nop 7")
    g.es(r_bcast(0))
    g.e("s_waitcnt lgkmcnt(0)")
    Gs, rb = epilogue_parts(0, None, [Q(0, s_) for s_ in range(4)], o)
    g.es(Gs[0][1] + Gs[2][1] + [x for G_ in Gs for x in G_[2]] + [x for G_ in Gs for x in G_[3]] + rb)
    g.e("s_waitcnt lgkmcnt(0)")
    for i in range(4): g.e(f"buffer_store_dwordx4 {vr(o+16+4*i)}, v{OOFF}, s[{SO}:{SO+3}], s{SR_} offen offset:{i*1024}")
    g.e(f"s_cmp_lg_u32 s{S_BAD}, 0")
    g.e("s_cbranch_scc1 L_slow_next")
    g.e("s_endpgm")

def emit_addr_setup():
    for s in range(4):
        g.e(f"v_add_u32 v5, {4*s}, v14")
        g.e("v_xor_b32 v5, v5, v13")
        g.e("v_lshlrev_b32 v5, 4, v5")
        g.e(f"v_lshl_add_u32 v{KAD+s}, v13, 8, v5")
    g.e("v_lshrrev_b32 v6, 2, v12")
    g.e("v_and_b32 v7, 1, v12")
    g.e("v_bfe_u32 v9, v12, 1, 1")
    g.e("v_lshlrev_b32 v7, 3, v7")
    g.e("v_lshl_add_u32 v7, v9, 7, v7")
    g.e("v_lshl_add_u32 v8, v6, 8, v7")
    g.e(f"v_add_u32 v8, {VBASE}, v8")
    g.e("v_and_b32 v10, 7, v6")
    for j in range(8):
        g.e(f"v_xor_b32 v5, {j}, v10")
        g.e(f"v_lshl_add_u32 v{VAD+j}, v5, 4, v8")
    g.e(f"v_lshlrev_b32 v{OOFF}, 4, v12")
    g.e("v_lshlrev_b32 v5, 10, v14")
    g.e("v_lshl_add_u32 v5, v13, 4, v5")
    g.e(f"v_add_u32 v{EW}, s{S_STG}, v5")
    g.e(f"v_xor_b32 v{EW+1}, 64, v{EW}")
    g.e("v_and_b32 v6, 3, v6")
    g.e("v_lshl_add_u32 v7, v6, 4, v7")
    g.e("v_lshl_add_u32 v7, v14, 8, v7")
    g.e("v_and_b32 v5, 1, v14")
    g.e("v_lshl_add_u32 v7, v5, 6, v7")
    g.e(f"v_add_u32 v{ER}, s{S_STG}, v7")
    g.e(f"v_xor_b32 v{ER+1}, 64, v{ER}")
    for s in range(4): g.e(f"v_add_u32 v{QA+s}, s{S_STG}, v{KAD+s}")
    def bf16_rne(x):
        u = f2u(x); return (u + 0x7fff + ((u >> 16) & 1)) >> 16
    chi = bf16_rne(CSCALE); chi_f = struct.unpack("<f", struct.pack("<I", chi << 16))[0]
    clo = bf16_rne(CSCALE - chi_f)
    g.e(f"v_lshlrev_b32 v{BCA}, 4, v14")
    g.e("v_and_b32 v15, 3, v12")
    g.e("v_lshlrev_b32 v15, 4, v15")
    g.e(f"s_mov_b32 s{S_C}, {hex(chi)}")
    g.e(f"s_mov_b32 s{S_C+1}, 0")
    g.e(f"v_lshlrev_b64 v[{PT}:{PT+1}], v15, s[{S_C}:{S_C+1}]")
    g.e(f"s_mov_b32 s{S_C}, {hex(clo)}")
    g.e(f"v_lshlrev_b64 v[{PT+2}:{PT+3}], v15, s[{S_C}:{S_C+1}]")
    g.e(f"s_mov_b32 s{S_TLO}, {hex(f2u(2.0**(POFF - 16)))}")
    g.e(f"s_mov_b32 s{S_THR}, {hex(f2u(2.0**64) - f2u(2.0**(POFF - 16)))}")
    g.e(f"s_mov_b32 s{S_BAD}, 0")
    g.e(f"s_mov_b32 s{S_POFF}, {hex(f2u(POFF))}")
    g.e(f"s_add_u32 s{S_OST}, s{S_HOFF2}, s{S_ROWB}")

DOC = """;
"""
def main():
    hdr = open("cdna_kernels/" + NAME + ".s.ref").read().split("; @launch")[0]
    out = hdr + f"; @launch grid=(256,1,1) block=(256,1,1) lds={LDS_BYTES}\n"
    out += DOC
    out += f'''.amdgcn_target "amdgcn-amd-amdhsa--gfx950"
.text
.globl {NAME}_kernel
.p2align 8
.type {NAME}_kernel,@function
{NAME}_kernel:
'''
    if STAMP:
        g.es(["s_memrealtime s[38:39]", "s_waitcnt lgkmcnt(0)", "s_mov_b32 s94, s38"])
        stamp(0)
        for i in range(65, 88): g.e(f"s_mov_b32 s{i}, s64")
    g.e("s_load_dwordx8 s[40:47], s[0:1], 0")
    g.e("s_cmp_ge_u32 s2, 256")
    g.e("s_cbranch_scc1 L_done")
    g.e("s_getpc_b64 s[58:59]")
    g.lab("L_pc0")
    g.e("v_lshlrev_b32 v16, 7, v0")
    g.e("v_cmp_lt_u32 vcc, 127, v0")
    g.e("v_mov_b32 v17, L_start_w3-L_pc0-16384")
    g.e("s_nop 0")
    g.e("v_cndmask_b32 v17, 0, v17, vcc")
    g.e("v_add_u32 v16, v16, v17")
    g.e("global_load_dword v17, v16, s[58:59]")
    g.e("v_lshrrev_b32 v11, 6, v0")
    g.e("v_and_b32 v12, 63, v0")
    g.e(f"v_readfirstlane_b32 s{S_WAVE}, v11")
    g.e("v_and_b32 v13, 15, v12")
    g.e("v_lshrrev_b32 v14, 4, v12")
    g.e("s_and_b32 s3, s2, 7")
    g.e("s_lshr_b32 s4, s2, 3")
    g.e("s_lshr_b32 s5, s4, 1")
    g.e("s_and_b32 s4, s4, 1")
    g.e("s_lshl_b32 s3, s3, 5")
    g.e("s_add_u32 s3, s3, s5")
    g.e(f"s_mul_i32 s{S_HOFF}, s3, {HEAD_BYTES}")
    g.e(f"s_add_u32 s{S_HOFF2}, s{S_HOFF}, {16*HEAD_BYTES}")
    g.e(f"s_mul_i32 s{S_CROW}, s4, {368*256}")
    g.e(f"s_mul_i32 s5, s{S_WAVE}, {96*256}")
    g.e(f"s_add_u32 s{S_ROWB}, s{S_CROW}, s5")
    g.e(f"s_add_u32 s{S_STG}, s5, {STAGE}")
    g.e(f"s_add_u32 s{S_QPO}, s{S_HOFF}, s{S_ROWB}")
    g.e(f"s_mov_b32 s{S_QPL}, s{S_STG}")
    emit_dma_offsets(13, 14, 5, 15)
    g.e("v_lshl_add_u32 v5, v11, 2, v14")
    g.e("v_xor_b32 v6, v5, v13")
    g.e(f"v_lshl_add_u32 v{CK_}, v6, 4, v15")
    g.e("v_and_b32 v5, 7, v5")
    g.e("v_xor_b32 v6, v5, v13")
    g.e(f"v_lshl_add_u32 v{CV_}, v6, 4, v15")
    g.e(f"s_lshl_b32 s{S_CW}, s{S_WAVE}, 10")
    g.e(f"s_add_u32 s{S_CG}, s{S_HOFF}, s{S_CW}")
    g.e("s_waitcnt lgkmcnt(0)")
    def srd(i, r):
        g.e(f"s_mov_b32 s{r}, s{40+2*i}")
        g.e(f"s_and_b32 s{r+1}, s{41+2*i}, 0xffff")
        g.e(f"s_mov_b32 s{r+2}, {TOTAL_BYTES}")
        g.e(f"s_mov_b32 s{r+3}, 0x20000")
    srd(0, SQ); srd(1, SK)
    stamp(7); emit_q_dma(); emit_coop(0, 0); emit_coop(0, 1)
    emit_addr_setup()
    srd(2, SV); srd(3, SO)
    emit_q_dma(); emit_coop(1, 0); emit_coop(1, 1)
    g.e(f"s_cmp_eq_u32 s{S_WAVE}, 3")
    g.e("s_cbranch_scc1 L_start_w3")
    emit_variant(6, False, "w0")
    emit_variant(5, True, "w3")
    emit_slow()
    g.lab("L_done")
    g.e("s_endpgm")
    AL = E("ALP", "0")
    if AL != "0":
        import alignpass
        act = (lambda l: True) if AL == "2" else (lambda l: not l.startswith("L_loop"))
        print("promoted, still misaligned:", alignpass.run(g.L, act), file=sys.stderr)
    g.L.append(".fill 2048, 4, 0xbf810000")
    out += "\n".join(g.L) + "\n"
    out += f'''.section .rodata,"a"
.p2align 6
.amdhsa_kernel {NAME}_kernel
  .amdhsa_next_free_vgpr 512
  .amdhsa_next_free_sgpr 96
  .amdhsa_accum_offset 256
  .amdhsa_group_segment_fixed_size 0
  .amdhsa_kernarg_size 48
  .amdhsa_user_sgpr_count 2
  .amdhsa_user_sgpr_kernarg_segment_ptr 1
  .amdhsa_system_sgpr_workgroup_id_x 1
.end_amdhsa_kernel
'''
    fn = sys.argv[1] if len(sys.argv) > 1 else "cdna_kernels/" + NAME + ".s"
    open(fn, "w").write(out)
main()
```
